```python
import torch

def _softmax(x, axis=-1):
    return torch.softmax(x, dim=axis)

def _gelu(x):
    return torch.nn.functional.gelu(x, approximate='tanh')

def _silu(x):
    return torch.nn.functional.silu(x)

def _sigmoid(x):
    return torch.sigmoid(x)

def _layernorm(x, axis=-1, eps=1e-05):
    m = x.mean(dim=axis, keepdim=True)
    v = x.var(dim=axis, keepdim=True, unbiased=False)
    return (x - m) / torch.sqrt(v + eps)

def _scatter_add(tgt, idx, src, axis=0):
    return tgt.clone().index_add_(axis, idx, src)

def _segment_sum(src, seg, n):
    out = torch.zeros((n,) + src.shape[1:], dtype=src.dtype)
    return out.index_add_(0, seg, src)

def _pad(x, pw):
    flat = tuple((v for pair in reversed(pw) for v in pair))
    return torch.nn.functional.pad(x, flat)
kernel_name = 'adaLN_cond__sliding_block_cached__dense_activation_squared_relu__prompt'

def setup_inputs():

    _w = lambda a: (lambda t: t.to(torch.bfloat16) if t.is_floating_point() else t)(torch.as_tensor(a))

    def _A_setup():
        B, Sq, D = (1, 2048, 640)
        Hq, Hkv, Sk, Dh = (32, 32, 2048, 128)
        assert Hq % Hkv == 0, (Hq, Hkv)
        return {'x': _w((lambda *s: torch.randn(*s, dtype=torch.bfloat16) * 0.05)(B, Sq, D)), 'k_cache': _w((lambda *s: torch.randn(*s, dtype=torch.bfloat16) * 3.2)(B, Hkv, Sk, Dh)), 'v_cache': _w((lambda *s: torch.randn(*s, dtype=torch.bfloat16) * 0.4)(B, Hkv, Sk, Dh)), 'wq': _w((lambda *s: torch.randn(*s, dtype=torch.bfloat16) * 3.2)(D, Hq * Dh) * D ** (-0.5)), 'wo': _w((lambda *s: torch.randn(*s, dtype=torch.bfloat16) * 0.4)(Hq * Dh, D) * (Hq * Dh) ** (-0.5))}
    _A_in = _A_setup()

    def _B_setup():
        B, S, D, F = (1, 2048, 640, 1728)
        return {'x': _w((lambda *s: torch.randn(*s, dtype=torch.bfloat16) * 0.05)(B, S, D)), 'w1': _w((lambda *s: torch.randn(*s, dtype=torch.bfloat16) * 0.05)(D, F)), 'b1': _w((lambda *s: torch.randn(*s, dtype=torch.bfloat16) * 0.8)(F)), 'w2': _w((lambda *s: torch.randn(*s, dtype=torch.bfloat16) * 0.05)(F, D)), 'b2': _w((lambda *s: torch.randn(*s, dtype=torch.bfloat16) * 6.4)(D))}
    _B_in = _B_setup()
    return {'A_x': _A_in['x'], 'A_k_cache': _A_in['k_cache'], 'A_v_cache': _A_in['v_cache'], 'A_wq': _A_in['wq'], 'A_wo': _A_in['wo'], 'B_x': _B_in['x'], 'B_w1': _B_in['w1'], 'B_b1': _B_in['b1'], 'B_w2': _B_in['w2'], 'B_b2': _B_in['b2'], 'c': _w((lambda *s: torch.randn(*s, dtype=torch.bfloat16) * 0.1)(1, 640) * 8.0), 'w_mod': _w((lambda *s: torch.randn(*s, dtype=torch.bfloat16) * 0.1)(640, 6 * 640) * 640 ** (-0.5) * 8.0)}

def reference(A_x, A_k_cache, A_v_cache, A_wq, A_wo, B_x, B_w1, B_b1, B_w2, B_b2, c, w_mod):

    def _A_ref(x, k_cache, v_cache, wq, wo):
        B, Sq, D = x.shape
        Hq, Dh = (32, 128)
        Hkv, Sk = (k_cache.shape[1], k_cache.shape[2])
        W = min(4096, max(256, Sk // 4))
        rep = Hq // Hkv
        q = (lambda x, *d: x.permute(*d))((x @ wq).reshape(B, Sq, Hq, Dh), 0, 2, 1, 3)
        k = (lambda x, n, axis: torch.repeat_interleave(x, n, dim=axis))(k_cache[:, :, Sk - W:, :], rep, axis=1)
        v = (lambda x, n, axis: torch.repeat_interleave(x, n, dim=axis))(v_cache[:, :, Sk - W:, :], rep, axis=1)
        scores = torch.einsum('bhqd,bhkd->bhqk', q, k) * Dh ** (-0.5)
        p = _softmax(scores, axis=-1)
        o = torch.einsum('bhqk,bhkd->bhqd', p, v)
        return (lambda x, *d: x.permute(*d))(o, 0, 2, 1, 3).reshape(B, Sq, Hq * Dh) @ wo

    def _B_ref(x, w1, b1, w2, b2):
        h = torch.einsum('bsd,df->bsf', x, w1) + b1
        zero = torch.zeros_like(h)
        r = torch.where(h > zero, h, zero)
        h = r * r
        out = torch.einsum('bsf,fd->bsd', h, w2) + b2
        return out
    x = A_x
    mod = (_silu(c) @ w_mod).reshape(c.shape[0], 6, 1, -1)
    sa, ca, ga, sb, cb, gb = (mod[:, 0].clone(), mod[:, 1].clone(), mod[:, 2].clone(), mod[:, 3].clone(), mod[:, 4].clone(), mod[:, 5].clone())
    h = _layernorm(x, axis=-1) * (1 + ca) + sa
    x = x + ga * _A_ref(h, A_k_cache, A_v_cache, A_wq, A_wo)
    h = _layernorm(x, axis=-1) * (1 + cb) + sb
    x = x + gb * _B_ref(h, B_w1, B_b1, B_w2, B_b2)
    return x
```

```python
import re

class K:
    def __init__(self, name, vgprs=256, agprs=0, sgprs=102):
        self.name = name
        self.items = []
        self.vgprs = vgprs
        self.agprs = agprs
        self.sgprs = sgprs
        self.nlabel = 0
    def __call__(self, s, *a):
        if a:
            s = s % a
        for line in s.split('\n'):
            line = line.strip()
            if line:
                self.items.append(line)
    def label(self, base='L'):
        self.nlabel += 1
        return '%s_%s_%d' % (self.name, base, self.nlabel)
    def place(self, lab):
        self.items.append(lab + ':')

def v(i, n=1):
    return 'v%d' % i if n == 1 else 'v[%d:%d]' % (i, i + n - 1)
def a(i, n=1):
    return 'a%d' % i if n == 1 else 'a[%d:%d]' % (i, i + n - 1)
def s(i, n=1):
    return 's%d' % i if n == 1 else 's[%d:%d]' % (i, i + n - 1)
def r(i, n=1):
    if i >= 256:
        return a(i - 256, n)
    assert i + n <= 256, (i, n)
    return v(i, n)

_REG = re.compile(r'\b([vas])(\d+)\b|\b([vas])\[(\d+):(\d+)\]|\b(vcc|exec|m0|scc|vcc_lo|vcc_hi|exec_lo|exec_hi)\b')

def regs_of(op):
    out = []
    for m in _REG.finditer(op):
        if m.group(1):
            out.append((m.group(1), int(m.group(2))))
        elif m.group(3):
            out += [(m.group(3), i) for i in range(int(m.group(4)), int(m.group(5)) + 1)]
        else:
            n = m.group(6)
            if n.startswith('vcc'): n = 'vcc'
            if n.startswith('exec'): n = 'exec'
            out.append((n, 0))
    return out

TRANS = ('v_exp_', 'v_log_', 'v_rcp_', 'v_rsq_', 'v_sqrt_', 'v_sin_', 'v_cos_')

class Ins:
    __slots__ = ('text', 'op', 'kind', 'dst', 'src', 'passes', 'srcC', 'srcAB', 'dpp', 'sdst', 'trans', 'lds_dma', 'store_data')
    def __init__(self, text):
        self.text = text
        t = text.split(';')[0].strip()
        parts = t.split(None, 1)
        self.op = op = parts[0]
        rest = parts[1] if len(parts) > 1 else ''
        ops = [x.strip() for x in re.split(r',(?![^\[]*\])', rest)] if rest else []
        self.dst = []; self.src = []; self.passes = 0; self.srcC = []; self.srcAB = []
        self.dpp = ('dpp' in op) or (' row_' in t) or ('quad_perm' in t) or ('row_bcast' in t) or ('wave_' in t)
        self.trans = op.startswith(TRANS)
        self.lds_dma = False
        self.store_data = []
        if op.startswith('v_mfma'):
            self.kind = 'mfma'
            self.dst = regs_of(ops[0]); self.srcAB = regs_of(ops[1]) + regs_of(ops[2]); self.srcC = regs_of(ops[3].split()[0])
            self.src = self.srcAB + self.srcC
            self.passes = 8 if '32x32' in op else 4
        elif op.startswith('v_'):
            self.kind = 'valu'
            if op.startswith('v_cmp'):
                if op.endswith('_e32') or len(ops) == 2:
                    self.dst = [('vcc', 0)] if len(ops) == 2 else regs_of(ops[0])
                    self.src = sum((regs_of(o) for o in (ops if len(ops) == 2 else ops[1:])), [])
                else:
                    self.dst = regs_of(ops[0]); self.src = sum((regs_of(o) for o in ops[1:]), [])
                if op.startswith('v_cmpx'):
                    self.dst = self.dst + [('exec', 0)]
            elif op.startswith(('v_add_co', 'v_sub_co', 'v_addc_co', 'v_subb_co', 'v_subrev_co', 'v_mad_u64', 'v_div_scale')):
                self.dst = regs_of(ops[0]) + regs_of(ops[1]); self.src = sum((regs_of(o) for o in ops[2:]), [])
            elif op.startswith(('v_permlane32_swap', 'v_permlane16_swap', 'v_swap')):
                self.dst = regs_of(ops[0]) + regs_of(ops[1]); self.src = list(self.dst)
            else:
                self.dst = regs_of(ops[0]); self.src = sum((regs_of(o) for o in ops[1:]), [])
                if op.startswith(('v_fmac', 'v_mac', 'v_dot2c', 'v_writelane')) or self.dpp:
                    self.src = self.src + self.dst
                if op.startswith('v_cndmask') and len(ops) == 3:
                    self.src.append(('vcc', 0))
        elif op.startswith(('buffer_', 'global_', 'flat_', 'scratch_')):
            self.kind = 'vmem'
            allr = sum((regs_of(o) for o in ops), [])
            if ' lds' in t:
                self.lds_dma = True
                self.src = allr + [('m0', 0)]
            elif '_load' in op:
                self.dst = regs_of(ops[0]); self.src = sum((regs_of(o) for o in ops[1:]), [])
            elif '_store' in op:
                self.src = allr
                self.store_data = regs_of(ops[0]) if op.startswith('buffer_') else regs_of(ops[1])
            elif 'atomic' in op:
                self.src = allr
                if ' sc0' in t:
                    self.dst = regs_of(ops[0])
            else:
                self.src = allr
        elif op.startswith('ds_'):
            self.kind = 'ds'
            if op.startswith(('ds_read', 'ds_bpermute', 'ds_permute', 'ds_swizzle')) or '_rtn' in op:
                self.dst = regs_of(ops[0]); self.src = sum((regs_of(o) for o in ops[1:]), [])
            else:
                self.src = sum((regs_of(o) for o in ops), [])
                self.store_data = sum((regs_of(o) for o in ops[1:]), [])
        elif op.startswith('s_'):
            self.kind = 'salu'
            if op.startswith(('s_waitcnt', 's_nop', 's_barrier', 's_branch', 's_cbranch', 's_endpgm', 's_setprio', 's_sleep', 's_cmp', 's_bitcmp')):
                self.src = sum((regs_of(o) for o in ops), [])
            elif op.startswith(('s_load', 's_buffer_load')):
                self.kind = 'smem'
                self.dst = regs_of(ops[0]); self.src = sum((regs_of(o) for o in ops[1:]), [])
            else:
                self.dst = regs_of(ops[0]) if ops else []
                self.src = sum((regs_of(o) for o in ops[1:]), [])
                if 'saveexec' in op:
                    self.dst = self.dst + [('exec', 0)]
        else:
            raise ValueError('unknown instr ' + text)

def _states(ins):
    if ins.op == 's_nop':
        return int(ins.text.split()[1], 0) + 1
    return 1

def need(prev, cur):
    n = 0
    pd = set(prev.dst)
    if prev.kind == 'valu':
        vd = {x for x in pd if x[0] in 'va'}
        sd = {x for x in pd if x[0] in ('s', 'vcc')}
        if cur.kind == 'mfma' and vd & set(cur.src): n = max(n, 2)
        if cur.kind == 'mfma' and ('exec', 0) in pd: n = max(n, 4)
        if cur.kind == 'vmem' and sd & set(cur.src): n = max(n, 5)
        if cur.kind == 'valu' and sd & set(cur.src):
            n = max(n, 4 if cur.op.startswith(('v_readlane', 'v_writelane')) else 2)
        if cur.kind == 'valu' and prev.trans and vd & set(cur.src): n = max(n, 1)
        if cur.kind in ('vmem', 'ds') and prev.trans and vd & set(cur.src): n = max(n, 1)
        if cur.kind == 'valu' and cur.op.startswith('v_permlane') and vd & set(cur.src): n = max(n, 2)
        if cur.kind == 'valu' and cur.op.startswith(('v_readfirstlane', 'v_readlane')) and vd & set(cur.src): n = max(n, 1)
        if cur.kind == 'valu' and cur.dpp and vd & set(cur.src): n = max(n, 2)
        if cur.kind == 'valu' and cur.dpp and ('exec', 0) in pd: n = max(n, 5)
        if cur.kind == 'salu' and sd & set(cur.src): n = max(n, 1)
        if ('exec', 0) in pd and cur.kind in ('valu',) and cur.op.startswith(('v_readlane','v_readfirstlane','v_writelane')): n = max(n, 4)
    elif prev.kind == 'mfma':
        big = prev.passes == 8
        if cur.kind == 'mfma':
            if pd & set(cur.srcAB): n = max(n, 12 if big else 8)
            if pd & set(cur.srcC):
                if set(cur.srcC) == pd and cur.passes == prev.passes: pass
                else: n = max(n, 12 if big else 8)
            if pd & set(cur.dst) and set(cur.dst) != pd: n = max(n, 12 if big else 8)
        elif cur.kind in ('valu', 'vmem', 'ds'):
            if pd & (set(cur.src) | set(cur.dst)): n = max(n, 12 if big else 8)
            if cur.kind == 'valu' and set(prev.srcC) & set(cur.dst): n = max(n, 7 if big else 3)
    elif prev.kind == 'salu':
        if ('m0', 0) in pd and (cur.lds_dma or cur.kind == 'ds' and 'gds' in cur.text): n = max(n, 1)
        if ('exec', 0) in pd and False: pass
    if prev.kind in ('vmem', 'ds') and len(prev.store_data) > 2 and cur.kind in ('valu', 'mfma'):
        if set(prev.store_data) & set(cur.dst): n = max(n, 2)
    return n

def fix_hazards(lines, window=16):
    out = []
    hist = []
    labels = {}
    def add(ins):
        st = _states(ins)
        for h in hist:
            h[1] += st
        hist.append([ins, 0])
        while hist and hist[0][1] > window:
            hist.pop(0)
    for ln in lines:
        if ln.endswith(':') or ln.startswith('.') or ln.startswith(';'):
            out.append(ln)
            continue
        ins = Ins(ln)
        mo = re.search(r'offset:(\d+)', ln)
        if mo:
            lim = 4095 if ins.kind == 'vmem' else 65535 if ins.kind == 'ds' else 1 << 20
            assert int(mo.group(1)) <= lim, ln
        req = 0
        for p, d in hist:
            nd = need(p, ins)
            if nd > d:
                req = max(req, nd - d)
        while req > 0:
            k = min(req, 16)
            nop = 's_nop %d' % (k - 1)
            out.append(nop); add(Ins(nop)); req -= k
        out.append(ln); add(ins)
    idx = {l[:-1]: i for i, l in enumerate(out) if l.endswith(':')}
    res = list(out)
    inserts = []
    for i, ln in enumerate(out):
        if ln.startswith(('s_cbranch', 's_branch')):
            tgt = ln.split()[1]
            if tgt not in idx: continue
            tail = []; d = 1; j = i - 1
            while j >= 0 and d <= window:
                l2 = out[j]
                if not (l2.endswith(':') or l2.startswith('.') or l2.startswith(';')):
                    ii = Ins(l2); tail.append((ii, d)); d += _states(ii)
                j -= 1
            j = idx[tgt] + 1; off = 0; req = 0
            while j < len(out) and off <= window:
                l2 = out[j]
                if not (l2.endswith(':') or l2.startswith('.') or l2.startswith(';')):
                    ii = Ins(l2)
                    for p, d in tail:
                        nd = need(p, ii)
                        if nd > d + off: req = max(req, nd - d - off)
                    off += _states(ii)
                    if ii.op in ('s_branch', 's_endpgm'): break
                j += 1
            if req > 0:
                inserts.append((i, req))
    for i, req in reversed(inserts):
        while req > 0:
            k = min(req, 16)
            res.insert(i, 's_nop %d' % (k - 1)); req -= k
    return res

HEADER = '''; Kernarg layout (120 bytes, ptrs only, base s[0:1]): 0 A_x, 8 A_k_cache, 16 A_v_cache, 24 A_wq, 32 A_wo,
'''

def render(kernels, launches, header=HEADER):
    o = [header.rstrip()]
    for (name, g, b, lds) in launches:
        o.append('; @launch kernel=%s grid=(%d,1,1) block=(%d,1,1) lds=%d' % (name, g, b, lds))
    o.append('.amdgcn_target "amdgcn-amd-amdhsa--gfx950"')
    o.append('.text')
    for k in kernels:
        o.append('.globl %s' % k.name)
        o.append('.p2align 8')
        o.append('.type %s,@function' % k.name)
        o.append('%s:' % k.name)
        for ln in fix_hazards(k.items):
            o.append(ln if ln.endswith(':') else '    ' + ln)
    o.append('.section .rodata,"a"')
    for k in kernels:
        acc = (k.vgprs + 3) // 4 * 4
        tot = acc + k.agprs if k.agprs else k.vgprs
        o.append('.p2align 6')
        o.append('.amdhsa_kernel %s' % k.name)
        o.append('  .amdhsa_next_free_vgpr %d' % tot)
        o.append('  .amdhsa_next_free_sgpr %d' % k.sgprs)
        o.append('  .amdhsa_accum_offset %d' % acc)
        o.append('  .amdhsa_group_segment_fixed_size 0')
        o.append('  .amdhsa_kernarg_size 120')
        o.append('  .amdhsa_user_sgpr_count 2')
        o.append('  .amdhsa_user_sgpr_kernarg_segment_ptr 1')
        o.append('  .amdhsa_system_sgpr_workgroup_id_x 1')
        o.append('.end_amdhsa_kernel')
    return '\n'.join(o) + '\n'
```

```python
from asmlib import *
from layout import *
import struct
def f32(x): return '0x%08x' % struct.unpack('<I', struct.pack('<f', x))[0]

def srd(k, sb, off, size, add=0):
    if add:
        k('s_add_u32 s%d, s%d, %d' % (sb, sb, add)); k('s_addc_u32 s%d, s%d, 0' % (sb + 1, sb + 1))
    k('s_mov_b32 s%d, %d' % (sb + 2, size)); k('s_mov_b32 s%d, 0x00020000' % (sb + 3))

def gen_k1():
    k = K('prep_kernel', vgprs=96)
    Lln, Lend = k.label('ln'), k.label('end')
    k('s_cmp_ge_u32 s2, 256'); k('s_cbranch_scc1 %s' % Lend)
    k('s_load_dwordx2 s[12:13], s[0:1], %d' % KA['ws'])
    k('s_cmp_ge_u32 s2, 128'); k('s_cbranch_scc1 %s' % Lln)
    k('s_load_dwordx2 s[4:5], s[0:1], %d' % KA['c'])
    k('s_load_dwordx2 s[8:9], s[0:1], %d' % KA['wmod'])
    k('s_and_b32 s16, s2, 7'); k('s_lshr_b32 s17, s2, 3')
    k('s_lshr_b32 s18, s17, 1'); k('s_lshl_b32 s18, s18, 4'); k('s_lshl_b32 s16, s16, 1'); k('s_add_u32 s18, s18, s16')
    k('s_and_b32 s17, s17, 1'); k('s_add_u32 s18, s18, s17')
    k('s_cmp_ge_u32 s18, 120'); k('s_cbranch_scc1 %s' % Lend)
    k('v_lshrrev_b32 v1, 2, v0')
    k('v_and_b32 v2, 3, v0')
    k('v_lshlrev_b32 v3, 1, v1')
    k('v_mul_u32_u24 v4, 7680, v1'); k('v_lshl_add_u32 v4, v2, 4, v4')
    k('s_lshl_b32 s19, s18, 6')
    k('s_waitcnt lgkmcnt(0)')
    srd(k, 4, 0, 1280); srd(k, 8, 0, 640 * 7680); srd(k, 12, 0, GS + 2560)
    for i in range(10):
        k('buffer_load_ushort v%d, v3, s[4:7], 0 offen offset:%d' % (8 + i, 128 * i))
    for i in range(10):
        k('buffer_load_dwordx4 %s, v4, s[8:11], s19 offen' % v(20 + 4 * i, 4))
        if i < 9: k('s_add_u32 s19, s19, %d' % (64 * 7680))
    k('s_waitcnt vmcnt(10)')
    for i in range(10):
        c = 8 + i
        k('v_lshlrev_b32 v%d, 16, v%d' % (c, c))
        k('v_mul_f32 v60, %s, v%d' % (f32(-1.4426950408889634), c))
        k('v_exp_f32 v60, v60'); k('v_add_f32 v60, 1.0, v60'); k('v_rcp_f32 v60, v60')
        k('v_mul_f32 v60, v60, v%d' % c)
        k('v_cvt_pk_bf16_f32 v60, v60, v60'); k('v_lshlrev_b32 v%d, 16, v60' % c)
    for j in range(8): k('v_mov_b32 v%d, 0' % (64 + j))
    for i in range(10):
        k('s_waitcnt vmcnt(%d)' % (9 - i))
        for j in range(4):
            w = 20 + 4 * i + j
            k('v_lshlrev_b32 v60, 16, v%d' % w); k('v_and_b32 v61, 0xffff0000, v%d' % w)
            k('v_fmac_f32 v%d, v60, v%d' % (64 + 2 * j, 8 + i)); k('v_fmac_f32 v%d, v61, v%d' % (65 + 2 * j, 8 + i))
    for sh in (4, 8):
        for j in range(8):
            k('v_add_f32_dpp v%d, v%d, v%d row_ror:%d row_mask:0xf bank_mask:0xf' % (72 + j, 64 + j, 64 + j, sh))
        for j in range(8): k('v_mov_b32 v%d, v%d' % (64 + j, 72 + j))
    k('v_lshrrev_b32 v5, 4, v0'); k('v_lshlrev_b32 v5, 7, v5'); k('v_lshl_add_u32 v5, v2, 5, v5')
    k('v_and_b32 v6, 15, v0'); k('v_cmp_gt_u32 vcc, 4, v6'); k('s_and_saveexec_b64 s[20:21], vcc')
    k('ds_write_b128 v5, v[64:67]'); k('ds_write_b128 v5, v[68:71] offset:16')
    k('s_mov_b64 exec, s[20:21]')
    k('s_waitcnt lgkmcnt(0)'); k('s_barrier')
    k('v_cmp_gt_u32 vcc, 32, v0'); k('s_and_saveexec_b64 s[20:21], vcc'); k('s_cbranch_execz %s' % Lend)
    k('v_lshlrev_b32 v5, 2, v0')
    for j in range(16): k('ds_read_b32 v%d, v5 offset:%d' % (20 + j, 128 * j))
    k('s_waitcnt lgkmcnt(0)')
    for st in (8, 4, 2, 1):
        for j in range(st): k('v_add_f32 v%d, v%d, v%d' % (20 + j, 20 + j, 20 + j + st))
    k('v_cvt_pk_bf16_f32 v20, v20, v20'); k('v_lshlrev_b32 v20, 16, v20')
    k('s_sub_u32 s22, s18, 20'); k('s_cmp_lt_u32 s22, 20'); k('s_cselect_b32 s23, 1, 0')
    k('s_sub_u32 s22, s18, 80'); k('s_cmp_lt_u32 s22, 20'); k('s_cselect_b32 s23, 1, s23')
    Lno = k.label('no1')
    k('s_cmp_eq_u32 s23, 0'); k('s_cbranch_scc1 %s' % Lno)
    k('v_add_f32 v20, 1.0, v20'); k('v_cvt_pk_bf16_f32 v20, v20, v20'); k('v_lshlrev_b32 v20, 16, v20')
    k.place(Lno)
    k('s_lshl_b32 s19, s18, 7')
    k('buffer_store_dword v20, v5, s[12:15], s19 offen')
    k('s_cmp_ge_u32 s18, 40'); k('s_cbranch_scc1 %s' % Lend)
    k('s_cmp_lt_u32 s18, 20'); k('s_cselect_b32 s22, %s, 1.0' % f32(QSCALE)); k('s_mov_b32 s23, %d' % (GS - 20 * 128)); k('s_cselect_b32 s23, %d, s23' % (GS + 16))
    k('s_add_u32 s19, s19, s23')
    k('v_mul_f32 v21, s22, v20'); k('v_cvt_f16_f32 v21, v21')
    k('v_lshrrev_b32 v6, 3, v0'); k('v_lshlrev_b32 v6, 5, v6'); k('v_and_b32 v7, 7, v0'); k('v_lshl_add_u32 v6, v7, 1, v6')
    k('buffer_store_short v21, v6, s[12:15], s19 offen')
    k('s_endpgm')
    k.place(Lln)
    k('s_load_dwordx2 s[4:5], s[0:1], %d' % KA['x'])
    k('s_and_b32 s16, s2, 7'); k('s_lshl_b32 s16, s16, 4'); k('s_bfe_u32 s17, s2, 0x40003'); k('s_add_u32 s16, s16, s17')
    k('v_and_b32 v1, 15, v0')
    k('v_bfe_u32 v2, v0, 4, 2')
    k('v_lshrrev_b32 v3, 6, v0')
    k('v_mul_u32_u24 v4, 1280, v1'); k('v_mul_u32_u24 v5, 320, v3'); k('v_add_u32 v4, v4, v5'); k('v_lshl_add_u32 v4, v2, 4, v4')
    k('s_mul_i32 s17, s16, %d' % (16 * 1280))
    k('s_waitcnt lgkmcnt(0)')
    srd(k, 4, 0, T * 1280); srd(k, 12, 0, 64 * 40960, add=XH)
    for i in range(5):
        k('buffer_load_dwordx4 %s, v4, s[4:7], s17 offen offset:%d' % (v(8 + 4 * i, 4), 64 * i))
    k('v_mul_u32_u24 v5, 10240, v3'); k('v_lshl_add_u32 v5, v2, 9, v5'); k('v_lshl_add_u32 v5, v1, 4, v5')
    k('s_and_b32 s18, s16, 1'); k('s_lshl_b32 s18, s18, 8'); k('s_lshr_b32 s19, s16, 1'); k('s_mul_i32 s19, s19, 40960'); k('s_add_u32 s19, s19, s18')
    k('v_lshlrev_b32 v6, 3, v1'); k('v_lshl_add_u32 v7, v3, 7, v6')
    for j in range(4): k('v_mov_b32 v%d, 0' % (72 + j))
    for i in range(5):
        k('s_waitcnt vmcnt(%d)' % (4 - i))
        for j in range(4):
            w = 8 + 4 * i + j; d = 32 + 8 * i + 2 * j
            k('v_lshlrev_b32 v%d, 16, v%d' % (d, w)); k('v_and_b32 v%d, 0xffff0000, v%d' % (d + 1, w))
            k('v_pk_add_f32 v[72:73], v[72:73], %s' % v(d, 2))
            k('v_pk_fma_f32 v[74:75], %s, %s, v[74:75]' % (v(d, 2), v(d, 2)))
    k('v_add_f32 v72, v72, v73'); k('v_add_f32 v73, v74, v75')
    for sw in ('v_permlane32_swap_b32', 'v_permlane16_swap_b32'):
        k('v_mov_b32 v74, v72'); k('v_mov_b32 v75, v73')
        k('%s v72, v74' % sw); k('%s v73, v75' % sw)
        k('v_add_f32 v72, v72, v74'); k('v_add_f32 v73, v73, v75')
    k('ds_write_b64 v7, v[72:73]')
    k('s_waitcnt lgkmcnt(0)'); k('s_barrier')
    for j in range(4): k('ds_read_b64 %s, v6 offset:%d' % (v(76 + 2 * j, 2), 128 * j))
    k('s_waitcnt lgkmcnt(0)')
    k('v_pk_add_f32 v[76:77], v[76:77], v[78:79]'); k('v_pk_add_f32 v[80:81], v[80:81], v[82:83]'); k('v_pk_add_f32 v[76:77], v[76:77], v[80:81]')
    k('v_mul_f32 v76, %s, v76' % f32(1.0 / 640))
    k('v_mul_f32 v77, %s, v77' % f32(1.0 / 640))
    k('v_fma_f32 v77, -v76, v76, v77'); k('v_max_f32 v77, 0, v77'); k('v_add_f32 v77, %s, v77' % f32(1e-5))
    k('v_rsq_f32 v78, v77')
    k('v_mul_f32 v78, %s, v78' % f32(QSCALE))
    k('v_mul_f32 v80, -v76, v78')
    for i in range(5):
        for j in range(4):
            w = 8 + 4 * i + j; d = 32 + 8 * i + 2 * j
            k('v_pk_fma_f32 %s, %s, v[78:79], v[80:81] op_sel_hi:[1,0,0]' % (v(d, 2), v(d, 2)))
            k('v_cvt_pk_f16_f32 v%d, v%d, v%d' % (w, d, d + 1))
        k('buffer_store_dwordx4 %s, v5, s[12:15], s19 offen' % v(8 + 4 * i, 4))
        if i < 4: k('s_add_u32 s19, s19, 2048')
    k.place(Lend)
    k('s_endpgm')
    return k
```

```python
from asmlib import *
from layout import *
from sched import *
from k1 import f32, srd

BLK, WST = 1088, 4480
SLOT = 4 * WST
R = 7
GSOFF = R * SLOT
FLAGOFF = GSOFF + 2560 + 512
K2_LDS = FLAGOFF + 64
MF = 'v_mfma_f32_32x32x16_bf16'

def ACC(tg, t): return (tg * 4 + t) * 16
XR = 128
HB = 192
GB = 208
TM = 224
S_ = 128
NM = 160
P_ = 192
LA = 208
vF = 232
vKV = 236
vX0, vX1 = 240, 241
cW, cK0, cK1, cV = 242, 243, 244, 245
vRW, vRK0, vRK1, vRV = 246, 247, 248, 249
vGS, vO = 250, 251
def QF(tg, s): return (tg * 8 + s) * 4
def KF(s): return 64 + 4 * s
def VF(f): return 96 + 4 * f
def WF(b, t): return 128 + 16 * b + 4 * t
sWQ, sK, sV, sXH, sOB, sGS = 4, 8, 12, 16, 20, 24
sW, sFILL, sRD, sFOFF, sXOFF, sCNT, sHEAD, sQB, sFB, sT0, sT1, sW44, sFSTR, sRV, sRK = 28, 29, 30, 31, 32, 33, 34, 35, 36, 37, 38, 39, 40, 41, 42
sFA, sFB2 = 44, 48

COST = {'v_exp': 8}
def cost(t):
    if isinstance(t, tuple):
        if t[0] in ('NEED', 'TOUCH'): return 4
        t = t[0]
    return 8 if t.startswith(('v_exp', 'v_rcp')) else 4

def pack(gaps, stream, g0, g1):
    n = g1 - g0 + 1
    tot = sum(cost(x) for x in stream) + sum(cost(x) for g in range(g0, g1 + 1) for x in gaps[g])
    i = 0; cum = 0
    for q, g in enumerate(range(g0, g1 + 1)):
        cum += sum(cost(x) for x in gaps[g])
        lim = tot * (q + 1) / n
        while i < len(stream) and (cum + cost(stream[i]) / 2 <= lim or g == g1):
            gaps[g].append(stream[i]); cum += cost(stream[i]); i += 1
    assert i == len(stream)

def fill_dma(i, u):
    srdr = sFA if i < 2 else sFB2
    return ('buffer_load_dwordx4 v%d, %s, s%d offen offset:%d lds' % (vF + i, s(srdr, 4), sFOFF, i * BLK), ('dma', u))

def adv(sreg, tmp):
    return ['s_add_u32 s%d, s%d, %d' % (sreg, sreg, SLOT), 's_cmp_ge_u32 s%d, %d' % (sreg, R * SLOT),
            's_cselect_b32 s%d, %d, 0' % (tmp, R * SLOT), 's_sub_u32 s%d, s%d, s%d' % (sreg, sreg, tmp)]

def h_stream(s1):
    out = []
    gb = GB + 8 * (s1 & 1)
    n = 0
    for tg in range(2):
        x = XR + ((s1 & 7) * 2 + tg) * 4
        h = HB + ((s1 & 1) * 2 + tg) * 4
        for q in range(4):
            t0 = TM + 2 * (n & 3); n += 1
            out.append('v_fma_mix_f32 v%d, v%d, v%d, v%d op_sel:[0,0,0] op_sel_hi:[1,1,1]' % (t0, x + q, gb + q, gb + 4 + q))
            out.append('v_fma_mix_f32 v%d, v%d, v%d, v%d op_sel:[1,1,1] op_sel_hi:[1,1,1]' % (t0 + 1, x + q, gb + q, gb + 4 + q))
            out.append('v_cvt_pk_bf16_f32 v%d, v%d, v%d' % (h + q, t0, t0 + 1))
    o2 = []
    for i in range(0, len(out), 3):
        o2 += out[i:i + 2]
        if i >= 3: o2.append(out[i - 1])
    o2.append(out[-1])
    return o2

def w_reads(s1):
    b = s1 & 1; sl = s1 & 3
    return ['ds_read_b64_tr_b16 %s, v%d offset:%d' % (a(WF(b, t) + 2 * jh, 2), vRW, sl * WST + jh * 256 + t * 64)
            for t in range(4) for jh in range(2)]
def gs_reads(s2):
    gb = GB + 8 * (s2 & 1)
    return ['ds_read_b128 %s, v%d offset:%d' % (v(gb + 4 * h, 4), vGS, (s2 & 7) * 64 + h * 16) for h in range(2)]
def x_loads(s8):
    return [('buffer_load_dwordx4 %s, v%d, %s, s%d offen offset:%d' % (v(XR + ((s8 & 7) * 2 + tg) * 4, 4), vX0 + tg, s(sXH, 4), sXOFF, (s8 & 3) * 1024), None)
            for tg in range(2)]
def k_read(sd):
    return 'ds_read_b128 %s, v%d offset:%d' % (a(KF(sd), 4), vRK0 + (sd & 1), (sd >> 1) * 64)
def v_reads(f):
    sp, t = f >> 2, f & 3
    return ['ds_read_b64_tr_b16 %s, v%d offset:%d' % (a(VF(f) + 2 * jh, 2), vRV, sp * 2 * WST + jh * 512 + t * 64) for jh in range(2)]
def softmax(tg):
    sb = S_ + 16 * tg
    out = []
    def E(r): return 'v_exp_f32 v%d, v%d' % (sb + r, sb + r)
    def C(q): return 'v_cvt_pk_bf16_f32 v%d, v%d, v%d' % (P_ + 8 * tg + q, sb + 2 * q, sb + 2 * q + 1)
    def A(r): return 'v_add_f32 v%d, v%d, v%d' % (LA + 2 * tg + (r & 1), LA + 2 * tg + (r & 1), sb + r)
    for q in range(9):
        if q < 8: out += [E(2 * q), E(2 * q + 1)]
        if q > 0: out += [C(q - 1), A(2 * q - 2), A(2 * q - 1)]
    return out
def s_mfma(tg, czero=False):
    d = v(S_ + 16 * tg, 16)
    return ['%s %s, %s, %s, %s' % (MF, d, a(KF(sd), 4), a(QF(tg, sd), 4), (('0' if czero else v(NM + 16 * tg, 16)) if sd == 0 else d)) for sd in range(8)]
def pv_mfma(tg, first=False):
    return ['%s %s, %s, %s, %s' % (MF, v(ACC(tg, f & 3), 16), a(VF(f), 4), v(P_ + 8 * tg + 4 * (f >> 2), 4),
                                   '0' if (first and f < 4) else v(ACC(tg, f & 3), 16)) for f in range(8)]

PROF = 0x3000000
def gen_k2(prof=False):
    def stamp(q, i):
        if prof: q('s_memtime s[%d:%d]' % (60 + 2 * i, 61 + 2 * i))

    k = K('attn_kernel', vgprs=256, agprs=160)
    Lend, L1, L1s, L2, Lent, Lnom, Lfb, Lmx = [k.label(x) for x in ('end', 'p1', 'p1s', 'p2', 'ent', 'nom', 'fb', 'mx')]
    segs = []
    p = Seq()
    p('s_cmp_ge_u32 s2, 256'); p('s_cbranch_scc1 %s' % Lend)
    stamp(p, 0)
    if prof: p('s_memrealtime s[76:77]'); p('s_load_dwordx2 s[80:81], s[0:1], %d' % KA['ws'])
    p('s_load_dwordx2 s[%d:%d], s[0:1], %d' % (sWQ, sWQ + 1, KA['wq']))
    p('s_load_dwordx4 s[%d:%d], s[0:1], %d' % (sFA, sFA + 3, KA['k']))
    p('s_load_dwordx2 s[%d:%d], s[0:1], %d' % (sGS, sGS + 1, KA['ws']))
    p('v_lshrrev_b32 v1, 6, v0'); p('v_and_b32 v2, 63, v0')
    p('v_readfirstlane_b32 s%d, v1' % sW)
    p('s_and_b32 s%d, s2, 7' % sT0); p('s_lshr_b32 s%d, s2, 3' % sT1)
    p('s_and_b32 s%d, s%d, 1' % (sQB, sT0)); p('s_lshl_b32 s%d, s%d, 2' % (sQB, sQB)); p('s_and_b32 s%d, s%d, 3' % (sCNT, sT1)); p('s_add_u32 s%d, s%d, s%d' % (sQB, sQB, sCNT))
    p('s_lshr_b32 s%d, s%d, 1' % (sHEAD, sT0)); p('s_lshl_b32 s%d, s%d, 3' % (sHEAD, sHEAD)); p('s_lshr_b32 s%d, s%d, 2' % (sT1, sT1)); p('s_add_u32 s%d, s%d, s%d' % (sHEAD, sHEAD, sT1))
    p('s_mul_i32 s%d, s%d, %d' % (sW44, sW, WST))
    p('v_lshrrev_b32 v3, 4, v2'); p('v_and_b32 v4, 15, v2')
    p('v_lshlrev_b32 v5, 4, v1'); p('v_lshl_add_u32 v5, v3, 2, v5'); p('v_lshlrev_b32 v5, 13, v5'); p('v_lshl_add_u32 v%d, v4, 4, v5' % vF)
    for r_ in range(1, 4): p('v_add_u32 v%d, %d, v%d' % (vF + r_, r_ * (8192 - BLK), vF))
    p('v_mul_u32_u24 v5, 81920, v1'); p('v_lshl_add_u32 v%d, v2, 4, v5' % vX0); p('v_add_u32 v%d, 40960, v%d' % (vX1, vX0))
    p('s_waitcnt lgkmcnt(0)')
    p('s_lshl_b32 s%d, s%d, 8' % (sT0, sHEAD))
    p('s_add_u32 s%d, s%d, s%d' % (sWQ, sWQ, sT0)); p('s_addc_u32 s%d, s%d, 0' % (sWQ + 1, sWQ + 1))
    p('s_sub_u32 s%d, %d, s%d' % (sWQ + 2, 640 * 8192, sT0)); p('s_mov_b32 s%d, 0x00020000' % (sWQ + 3))
    p('s_lshl_b32 s%d, s%d, 19' % (sT0, sHEAD)); p('s_add_u32 s%d, s%d, %d' % (sT0, sT0, 393216 - 4096))
    for dst, src in ((sK, sFA), (sV, sFA + 2)):
        p('s_add_u32 s%d, s%d, s%d' % (dst, src, sT0)); p('s_addc_u32 s%d, s%d, 0' % (dst + 1, src + 1))
        p('s_mov_b32 s%d, %d' % (dst + 2, 131072 + 4096)); p('s_mov_b32 s%d, 0x00020000' % (dst + 3))
    p('s_mul_i32 s%d, s%d, %d' % (sT0, sQB, 8 * 40960)); p('s_add_u32 s%d, s%d, %d' % (sT0, sT0, XH))
    p('s_add_u32 s%d, s%d, s%d' % (sXH, sGS, sT0)); p('s_addc_u32 s%d, s%d, 0' % (sXH + 1, sGS + 1))
    p('s_mov_b32 s%d, %d' % (sXH + 2, 8 * 40960)); p('s_mov_b32 s%d, 0x00020000' % (sXH + 3))
    p('s_lshl_b32 s%d, s%d, 21' % (sT0, sQB)); p('s_add_u32 s%d, s%d, %d' % (sT0, sT0, OB))
    p('s_add_u32 s%d, s%d, s%d' % (sOB, sGS, sT0)); p('s_addc_u32 s%d, s%d, 0' % (sOB + 1, sGS + 1))
    p('s_mov_b32 s%d, %d' % (sOB + 2, 4 * 524288)); p('s_mov_b32 s%d, 0x00020000' % (sOB + 3))
    p('s_add_u32 s%d, s%d, %d' % (sGS, sGS, GS)); p('s_addc_u32 s%d, s%d, 0' % (sGS + 1, sGS + 1))
    p('s_mov_b32 s%d, 2560' % (sGS + 2)); p('s_mov_b32 s%d, 0x00020000' % (sGS + 3))
    for j in range(4):
        p('s_mov_b32 s%d, s%d' % (sFA + j, sWQ + j)); p('s_mov_b32 s%d, s%d' % (sFB2 + j, sWQ + j))
    p('s_mov_b32 s%d, 524288' % sFSTR); p('s_mov_b32 s%d, 0' % sFOFF); p('s_mov_b32 s%d, 0' % sXOFF); p('s_mov_b32 s%d, 0' % sFB)
    p('s_mov_b32 s%d, 0' % sFILL)
    def fill_begin(): return ['s_add_u32 m0, s%d, s%d' % (sFILL, sW44)]
    def fill_end(): return adv(sFILL, sT0) + ['s_add_u32 s%d, s%d, s%d' % (sFOFF, sFOFF, sFSTR)]
    for u in range(2):
        for x in fill_begin(): p(x)
        for i in range(4): p(*fill_dma(i, u))
        for x in fill_end(): p(x)
        if u == 0:
            p('v_lshlrev_b32 v5, 4, v0'); p('s_lshl_b32 s%d, s%d, 10' % (sT0, sW)); p('s_add_u32 m0, s%d, %d' % (sT0, GSOFF))
            p('s_cmp_eq_u32 s%d, 3' % sW); Lg = k.label('gs'); p('s_cbranch_scc1 %s' % Lg)
            p('buffer_load_dwordx4 v5, %s, 0 offen lds' % s(sGS, 4))
            p(Lg + ':')
            p('s_nop 0')
    for s8 in range(8):
        if s8 == 4: p('s_add_u32 s%d, s%d, 4096' % (sXOFF, sXOFF))
        for x in x_loads(s8): p(*x)
        if s8 & 3 == 0:
            for x in fill_begin(): p(x)
        p(*fill_dma(s8 & 3, 2 + (s8 >> 2)))
        if s8 & 3 == 3:
            for x in fill_end()[:(5 if s8 == 3 else 4)]: p(x)
    p('v_lshl_add_u32 v5, v1, 3, v3'); p('v_lshlrev_b32 v5, 8, v5'); p('v_xor_b32 v6, v4, v3'); p('v_lshl_add_u32 v5, v6, 4, v5')
    p('v_add_u32 v%d, 4096, v5' % vKV); p('v_add_u32 v%d, %d, v5' % (vKV + 1, 4096 + 1024 - BLK))
    p('v_lshrrev_b32 v5, 1, v1'); p('v_lshlrev_b32 v5, 4, v5'); p('v_lshl_add_u32 v5, v3, 2, v5'); p('v_and_b32 v6, 1, v1'); p('v_lshl_add_u32 v5, v6, 1, v5')
    p('v_lshlrev_b32 v5, 8, v5'); p('v_lshl_add_u32 v5, v4, 4, v5')
    p('v_add_u32 v%d, %d, v5' % (vKV + 2, 4096 - 2 * BLK)); p('v_add_u32 v%d, %d, v5' % (vKV + 3, 4096 + 256 - 3 * BLK))
    p('v_bfe_u32 v5, v2, 2, 2'); p('v_and_b32 v6, 3, v2'); p('v_lshrrev_b32 v7, 5, v2'); p('v_and_b32 v8, 1, v3')
    p('v_mul_u32_u24 v9, %d, v5' % BLK); p('v_lshl_add_u32 v9, v7, 9, v9'); p('v_lshl_add_u32 v9, v8, 5, v9')
    p('v_and_b32 v10, 1, v6'); p('v_lshl_add_u32 v9, v10, 4, v9'); p('v_lshrrev_b32 v10, 1, v6'); p('v_lshl_add_u32 v%d, v10, 3, v9' % cW)
    p('v_lshrrev_b32 v9, 1, v5'); p('v_mul_u32_u24 v9, %d, v9' % WST); p('v_and_b32 v10, 1, v5'); p('v_mul_u32_u24 v10, %d, v10' % BLK)
    p('v_add3_u32 v9, v9, v10, %d' % 0); p('v_add_u32 v9, %d, v9' % (2 * BLK))
    p('v_lshl_add_u32 v9, v7, 8, v9'); p('v_lshl_add_u32 v9, v8, 5, v9'); p('v_lshl_add_u32 v%d, v6, 3, v9' % cV)
    p('v_bfe_u32 v9, v2, 3, 2'); p('v_mul_u32_u24 v9, %d, v9' % WST); p('v_bfe_u32 v10, v2, 2, 1'); p('v_mul_u32_u24 v10, %d, v10' % BLK)
    p('v_add_u32 v9, v9, v10'); p('v_lshl_add_u32 v9, v6, 8, v9')
    p('v_xor_b32 v10, v7, v6'); p('v_lshl_add_u32 v%d, v10, 4, v9' % cK0)
    p('v_xor_b32 v10, 2, v10'); p('v_lshl_add_u32 v%d, v10, 4, v9' % cK1)
    p('v_lshlrev_b32 v%d, 5, v7' % vGS); p('v_add_u32 v%d, %d, v%d' % (vGS, GSOFF, vGS))
    p('v_lshlrev_b32 v9, 19, v1'); p('v_lshl_add_u32 v9, v8, 10, v9'); p('v_lshl_add_u32 v9, v7, 8, v9'); p('v_lshl_add_u32 v%d, v4, 4, v9' % vO)
    p('v_mov_b32 v%d, v%d' % (vRW, cW))
    p('s_mov_b32 s%d, 0' % sRD); p('s_mov_b32 s%d, 5' % sCNT)
    for r_ in range(128): p('v_mov_b32 v%d, 0' % r_)
    p('s_waitcnt vmcnt(28)'); p('s_barrier')
    for x in gs_reads(0) + gs_reads(1) + w_reads(0): p(x)
    for x in h_stream(0): p(x)
    stamp(p, 1)
    p('s_waitcnt lgkmcnt(0)')
    segs.append(('once', p))

    def p1(it):
        q = Seq()
        q(L1 + ':')
        for st in range(8):
            sg = 8 * it + st; c = sg >> 2
            b = sg & 1
            mf = ['%s %s, %s, %s, %s' % (MF, v(ACC(tg, t), 16), a(WF(b, t), 4), v(HB + (b * 2 + tg) * 4, 4), v(ACC(tg, t), 16))
                  for t in range(4) for tg in range(2)]
            g = [[] for _ in range(8)]
            q.touch(a(WF(b, 0), 16) + ' ' + v(GB + 8 * ((sg + 1) & 1), 8) + ' ' + v(XR + ((sg + 1) & 7) * 8, 8))
            if st == 6: g[0].append('v_add_u32 v%d, 512, v%d' % (vGS, vGS))
            g[0] += gs_reads(sg + 2)
            if st & 3 == 2: g[5] += adv(sRD, sT1)[:2]; g[6] += adv(sRD, sT1)[2:]
            if st & 3 == 3:
                g[0] += [('NEED', lambda t, c=c: t[0] == 'dma' and t[1] <= c + 1), 's_barrier']
                g[0] += ['v_add_u32 v%d, s%d, v%d' % (vRW, sRD, cW)]
            wr = w_reads(sg + 1)
            for i in range(8): g[1 + i // 2].append(wr[i])
            xl = x_loads(sg + 8)
            g[5].append(xl[0]); g[6].append(xl[1])
            if st & 3 == 0:
                g[1].append('s_add_u32 s%d, s%d, 4096' % (sXOFF, sXOFF)); g[2].append(fill_end()[4]); g[6] += fill_begin()
            if st & 3 == 1: g[5] += fill_end()[:2]; g[6] += fill_end()[2:4]
            g[7].append(fill_dma(st & 3, c + 4))
            if st == 7:
                g[6] += ['s_sub_u32 s%d, s%d, 1' % (sCNT, sCNT), 's_cmp_eq_u32 s%d, 1' % sCNT, 's_cselect_b32 s%d, 0, s%d' % (sXH + 2, sXH + 2)]
            pack(g, h_stream(sg + 1), 0, 7)
            interleave(q, mf, g)
        q('s_cmp_eq_u32 s%d, 2' % sCNT); q('s_cbranch_scc0 %s' % L1s)
        for j in range(4):
            q('s_mov_b32 s%d, s%d' % (sFA + j, sK + j)); q('s_mov_b32 s%d, s%d' % (sFB2 + j, sV + j)); q('v_mov_b32 v%d, v%d' % (vF + j, vKV + j))
        q('s_mov_b32 s%d, 8192' % sFSTR); q('s_mov_b32 s%d, -8192' % sFOFF)
        q(L1s + ':')
        q('s_cmp_lg_u32 s%d, 0' % sCNT); q('s_cbranch_scc1 %s' % L1)
        return q
    segs.append(('loop', 5, p1))

    t_ = Seq()
    stamp(t_, 2)
    t_(fill_end()[4])
    for u in (14, 15):
        for x in fill_begin(): t_(x)
        for i in range(4): t_(*fill_dma(i, u))
        for x in fill_end(): t_(x)
    n = 0
    for tg in range(2):
        for sd in range(8):
            for q in range(4):
                src = ACC(tg, sd >> 1) + 8 * (sd & 1) + 2 * q
                tm = TM + (n & 7); n += 1
                t_('v_cvt_pk_bf16_f32 v%d, v%d, v%d' % (tm, src, src + 1))
                t_('v_accvgpr_write_b32 a%d, v%d' % (QF(tg, sd) + q, tm))
    t_('s_waitcnt lgkmcnt(0)')
    t_(Lent + ':')
    t_('v_add_u32 v%d, s%d, v%d' % (vRK0, sRD, cK0)); t_('v_add_u32 v%d, s%d, v%d' % (vRK1, sRD, cK1)); t_('v_add_u32 v%d, s%d, v%d' % (vRV, sRD, cV))
    for sd in range(8): t_(k_read(sd))
    for f in range(8):
        for x in v_reads(f): t_(x)
    t_('s_mov_b32 s%d, s%d' % (sRK, sRD))
    for x in adv(sRK, sT1): t_(x)
    t_.need(lambda t: t[0] == 'dma' and t[1] <= 11); t_('s_barrier')
    for tg in range(2): t_('v_mov_b32 v%d, 0' % (LA + 2 * tg)); t_('v_mov_b32 v%d, 0' % (LA + 2 * tg + 1))
    for x in s_mfma(0, True): t_(x)
    t_('v_add_u32 v%d, s%d, v%d' % (vRK0, sRK, cK0)); t_('v_add_u32 v%d, s%d, v%d' % (vRK1, sRK, cK1))
    m1 = s_mfma(1, True)
    for sd in range(8): t_(m1[sd]); t_(k_read(sd))
    t_('s_cmp_lg_u32 s%d, 0' % sFB); t_('s_cbranch_scc1 %s' % Lnom)
    for tg in range(2):
        sb = S_ + 16 * tg; tm = TM + 2 * tg
        t_('v_max3_f32 v%d, v%d, v%d, v%d' % (tm, sb, sb + 1, sb + 2))
        for r_ in range(3, 15, 2): t_('v_max3_f32 v%d, v%d, v%d, v%d' % (tm, tm, sb + r_, sb + r_ + 1))
        t_('v_max_f32 v%d, v%d, v%d' % (tm, tm, sb + 15))
        t_('v_mov_b32 v%d, v%d' % (tm + 1, tm))
        t_('v_permlane32_swap_b32 v%d, v%d' % (tm, tm + 1))
        t_('v_max_f32 v%d, v%d, v%d' % (tm, tm, tm + 1))
        t_('v_sub_f32 v%d, %s, v%d' % (tm, f32(-40.0), tm))
        for r_ in range(16): t_('v_mov_b32 v%d, v%d' % (NM + 16 * tg + r_, tm))
    t_(Lnom + ':')
    for tg in range(2):
        for r_ in range(16): t_('v_add_f32 v%d, v%d, v%d' % (S_ + 16 * tg + r_, S_ + 16 * tg + r_, NM + 16 * tg))
    for x in softmax(0): t_(x)
    t_('s_mov_b32 s%d, 14' % sCNT)
    stamp(t_, 3)
    t_('s_waitcnt lgkmcnt(0)')
    segs.append(('once', t_))

    def p2(j, first=False, last=False, loop=False):
        q = Seq()
        if loop: q(L2 + ':')
        g = [[] for _ in range(32)]
        q('s_waitcnt lgkmcnt(8)')
        if last:
            mf = pv_mfma(0) + pv_mfma(1)
            pack(g, softmax(1), 0, 7)
            interleave(q, mf, g)
            return q
        mf = pv_mfma(0, first) + s_mfma(0) + pv_mfma(1, first) + s_mfma(1)
        g[0] += fill_begin()
        for i in range(4): g[1 + i].append(fill_dma(i, j + 16))
        fe = fill_end()
        g[5] += fe[:2]; g[6] += fe[2:4]; g[7] += fe[4:]
        g[8].append('v_add_u32 v%d, s%d, v%d' % (vRV, sRK, cV))
        ad = adv(sRK, sT1)
        g[9] += ad[:2]; g[10] += ad[2:]
        g[11] += ['v_add_u32 v%d, s%d, v%d' % (vRK0, sRK, cK0)]; g[12] += ['v_add_u32 v%d, s%d, v%d' % (vRK1, sRK, cK1)]
        if loop: g[13] += ['s_sub_u32 s%d, s%d, 1' % (sCNT, sCNT)]
        for f in range(8): g[16 + f] += v_reads(f)
        g[15] += [('NEED', lambda t, j=j: t[0] == 'dma' and t[1] <= j + 12), 's_barrier']
        for sd in range(8): g[24 + sd].append(k_read(sd))
        pack(g, softmax(1), 2, 15)
        g[7].append('s_waitcnt lgkmcnt(0)')
        pack(g, softmax(0), 18, 31)
        if loop: g[31].append('s_cmp_lg_u32 s%d, 0' % sCNT)
        interleave(q, mf, g)
        if loop: q('s_cbranch_scc1 %s' % L2)
        return q
    segs.append(('once', p2(0, first=True)))
    segs.append(('loop', 14, lambda it: p2(it + 1, loop=True)))
    segs.append(('once', p2(15, last=True)))

    e = Seq()
    stamp(e, 4)
    e('s_lshl_b32 s%d, s%d, 14' % (sT0, sHEAD))
    for tg in range(2):
        la = LA + 2 * tg
        e('v_add_f32 v%d, v%d, v%d' % (la, la, la + 1)); e('v_mov_b32 v%d, v%d' % (la + 1, la))
        e('v_permlane32_swap_b32 v%d, v%d' % (la, la + 1)); e('v_add_f32 v%d, v%d, v%d' % (la, la, la + 1))
        e('v_rcp_f32 v%d, v%d' % (TM + 2 * tg, la))
    n = 0
    for t in range(4):
        for tg in range(2):
            for c in range(2):
                src = ACC(tg, t) + 8 * c
                dst = S_ + 4 * (n & 7); n += 1
                for q in range(4):
                    e('v_pk_mul_f32 %s, %s, %s op_sel_hi:[1,0]' % (v(src + 2 * q, 2), v(src + 2 * q, 2), v(TM + 2 * tg, 2)))
                for q in range(4):
                    e('v_cvt_pk_bf16_f32 v%d, v%d, v%d' % (dst + q, src + 2 * q, src + 2 * q + 1))
                e('buffer_store_dwordx4 %s, v%d, %s, s%d offen offset:%d' % (v(dst, 4), vO, s(sOB, 4), sT0, tg * 2048 + c * 512))
        if t < 3: e('s_add_u32 s%d, s%d, 4096' % (sT0, sT0))
    e('s_mov_b32 s%d, %s' % (sT1, f32(2.0 ** 64)))
    e('v_cmp_lt_f32 vcc, v%d, s%d' % (LA, sT1)); e('v_cndmask_b32 v%d, 1, 0, vcc' % TM)
    e('v_cmp_lt_f32 vcc, v%d, s%d' % (LA + 2, sT1)); e('v_cndmask_b32 v%d, 1, v%d, vcc' % (TM, TM))
    e('v_cmp_ne_u32 vcc, 0, v%d' % TM); e('s_cmp_lg_u64 vcc, 0'); e('s_cselect_b32 s%d, 1, 0' % sT1)
    e('s_lshl_b32 s%d, s%d, 2' % (sT0, sW)); e('s_add_u32 s%d, s%d, %d' % (sT0, sT0, FLAGOFF))
    e('v_mov_b32 v%d, s%d' % (TM, sT0)); e('v_mov_b32 v%d, s%d' % (TM + 1, sT1)); e('ds_write_b32 v%d, v%d' % (TM, TM + 1))
    e('v_mov_b32 v%d, %d' % (TM + 2, FLAGOFF))
    e('s_waitcnt lgkmcnt(0)'); e('s_barrier')
    e('ds_read_b128 %s, v%d' % (v(TM + 4, 4), TM + 2))
    e('v_or_b32 v%d, v%d, v%d' % (TM, TM + 4, TM + 5)); e('v_or3_b32 v%d, v%d, v%d, v%d' % (TM, TM, TM + 6, TM + 7))
    e('v_readfirstlane_b32 s%d, v%d' % (sT1, TM))
    if prof:
        stamp(e, 5); e('s_waitcnt vmcnt(0)'); stamp(e, 6); e('s_memrealtime s[78:79]'); e('s_waitcnt lgkmcnt(0)')
        e('s_add_u32 s80, s80, %d' % PROF); e('s_addc_u32 s81, s81, 0'); e('s_mov_b32 s82, 0x100000'); e('s_mov_b32 s83, 0x00020000')
        e('s_lshl_b32 s84, s2, 2'); e('s_add_u32 s84, s84, s%d' % sW); e('s_lshl_b32 s84, s84, 6')
        for i in range(10): e('v_mov_b32 v%d, s%d' % (i, 60 + 2 * i))
        e('v_mov_b32 v10, s%d' % sT1); e('v_mov_b32 v11, s%d' % sFB); e('v_mov_b32 v12, 0')
        for i in range(3): e('buffer_store_dwordx4 %s, v12, s[80:83], s84 offen offset:%d' % (v(4 * i, 4), 16 * i))
    e('s_cmp_eq_u32 s%d, 0' % sT1); e('s_cbranch_scc1 %s' % Lend)
    e('s_cmp_lg_u32 s%d, 0' % sFB); e('s_cbranch_scc1 %s' % Lend)
    e('s_mov_b32 s%d, 1' % sFB)
    e('s_waitcnt vmcnt(0) lgkmcnt(0)')
    e('s_mov_b32 s%d, 0' % sFOFF); e('s_mov_b32 s%d, 16' % sCNT); e('s_mov_b32 m0, s%d' % sW44)
    e('v_mov_b32 v%d, 0xff800000' % TM); e('v_mov_b32 v%d, 0xff800000' % (TM + 2))
    e('v_mov_b32 v%d, v%d' % (vRK0, cK0)); e('v_mov_b32 v%d, v%d' % (vRK1, cK1))
    e(Lmx + ':')
    e('s_barrier')
    for i in range(2): e(*fill_dma(i, 0))
    e('s_add_u32 s%d, s%d, 8192' % (sFOFF, sFOFF))
    e('s_waitcnt vmcnt(0)'); e('s_barrier')
    for sd in range(8): e(k_read(sd))
    e('s_waitcnt lgkmcnt(0)')
    for tg in range(2):
        for x in s_mfma(tg, True): e(x)
    for tg in range(2):
        sb = S_ + 16 * tg; tm = TM + 2 * tg
        for r_ in range(0, 16, 2): e('v_max3_f32 v%d, v%d, v%d, v%d' % (tm, tm, sb + r_, sb + r_ + 1))
    e('s_sub_u32 s%d, s%d, 1' % (sCNT, sCNT)); e('s_cmp_lg_u32 s%d, 0' % sCNT); e('s_cbranch_scc1 %s' % Lmx)
    for tg in range(2):
        tm = TM + 2 * tg
        e('v_mov_b32 v%d, v%d' % (tm + 1, tm)); e('v_permlane32_swap_b32 v%d, v%d' % (tm, tm + 1)); e('v_max_f32 v%d, v%d, v%d' % (tm, tm, tm + 1))
        e('v_sub_f32 v%d, 0, v%d' % (tm, tm))
        for r_ in range(16): e('v_mov_b32 v%d, v%d' % (NM + 16 * tg + r_, tm))
    e('s_barrier')
    e('s_mov_b32 s%d, 0' % sFOFF); e('s_mov_b32 s%d, 0' % sFILL); e('s_mov_b32 s%d, 0' % sRD)
    for u in range(6):
        for x in fill_begin(): e(x)
        for i in range(4): e(*fill_dma(i, 0))
        for x in fill_end(): e(x)
    e('s_waitcnt vmcnt(0)'); e('s_barrier')
    e('s_branch %s' % Lent)
    e(Lend + ':'); e('s_endpgm')
    segs.append(('once', e))
    assemble(k, segs)
    return k
```

```python
from asmlib import *
from layout import *
from sched import *
from k1 import f32
MF = 'v_mfma_f32_16x16x32_bf16'
PROF = 0x3000000

CFG = {
    'oproj': dict(NG=5, TG=2, E=2, nst=32, U=8, pitch=1280, K=4096, w='wo', bsrc=OB,  nks=128, omap=True,  grid=256),
    'mlp2':  dict(NG=5, TG=2, E=2, nst=14, U=7, pitch=1280, K=1728, w='w2', bsrc=HID, nks=54,  omap=False, grid=256),
    'mlp1':  dict(NG=8, TG=4, E=1, nst=10, U=5, pitch=3456, K=640,  w='w1', bsrc=XG,  nks=20,  omap=False, grid=224),
}
def lds_size(kind):
    c = CFG[kind]
    ring = c['U'] * 64 * c['E'] * c['NG'] * 32
    return ring + (2048 if kind == 'mlp1' else 0)

def mk_srd(p, dst, src, soff, size):
    if soff is None:
        if dst != src: p('s_mov_b32 s%d, s%d' % (dst, src)); p('s_mov_b32 s%d, s%d' % (dst + 1, src + 1))
    else:
        p('s_add_u32 s%d, s%d, %s' % (dst, src, soff)); p('s_addc_u32 s%d, s%d, 0' % (dst + 1, src + 1))
    p('s_mov_b32 s%d, %s' % (dst + 2, size)); p('s_mov_b32 s%d, 0x00020000' % (dst + 3))

def gen(kind, prof=False, pidx=0):
    c = CFG[kind]
    NG, TG, E, nst, U, pitch, KK, nks = c['NG'], c['TG'], c['E'], c['nst'], c['U'], c['pitch'], c['K'], c['nks']
    D = U - 1 if kind != 'oproj' else 6
    RB = NG * 32; RS = 64 * E; SB = RS * RB; WQ = SB // 4; ND = WQ // 1024
    CPR = RB // 16
    H2 = TG // 2
    NT = NG * TG
    def ACC(ng, t): return (t * NG + ng) * 4
    vb = NT * 4
    vD = vb; vb += ND
    vB = vb; vb += 2 * E
    if NG == 5:
        NBASE = (U + 2) // 3; vA = vb; vb += NBASE
    else:
        vA = vb; vb += 16
    vT = vb; vb += 26
    vE = vb
    def BF(sl, e, t): return ((sl * E + e) * TG + t) * 4
    AO = U * E * TG * 4
    def AF(e, ng): return AO + (e * NG + ng) * 4
    nag = AO + E * NG * 4
    k = K(kind + '_kernel', vgprs=256, agprs=nag)
    sWS, sWT, sBS, sX, sMD, sO1, sO2, sO3, sU1, sU2 = 4, 8, 12, 16, 20, 24, 28, 32, 36, 40
    sW, sTH, sKH, sTT, sNT, sWO, sBO, sWQ, sCNT, sT0, sT1, sT2, sT3 = range(44, 57)
    sG = 60
    Lend, Lp = k.label('end'), k.label('loop')
    def stamp(q, i):
        if prof: q('s_memtime s[%d:%d]' % (92 - 0 + 0, 93)) if False else None
    segs = []
    p = Seq()
    p('s_cmp_ge_u32 s2, %d' % c['grid']); p('s_cbranch_scc1 %s' % Lend)
    p('s_load_dwordx2 s[%d:%d], s[0:1], %d' % (sWS, sWS + 1, KA['ws']))
    p('s_load_dwordx2 s[%d:%d], s[0:1], %d' % (sWT, sWT + 1, KA[c['w']]))
    if kind == 'oproj':
        p('s_load_dwordx2 s[%d:%d], s[0:1], %d' % (sX, sX + 1, KA['x'])); p('s_load_dwordx2 s[%d:%d], s[0:1], %d' % (sU1, sU1 + 1, KA['w1']))
    elif kind == 'mlp2':
        p('s_load_dwordx2 s[%d:%d], s[0:1], %d' % (sX, sX + 1, KA['b2'])); p('s_load_dwordx2 s[%d:%d], s[0:1], %d' % (sO1, sO1 + 1, KA['out']))
    else:
        p('s_load_dwordx2 s[%d:%d], s[0:1], %d' % (sX, sX + 1, KA['b1']))
    vW, vL, vG, vR, vC, vK = vT, vT + 1, vT + 2, vT + 3, vT + 4, vT + 5
    t0, t1, t2 = vT + 6, vT + 7, vT + 8
    vID = vT + 24
    p('v_lshrrev_b32 v%d, 6, v0' % vW); p('v_and_b32 v%d, 63, v0' % vL); p('v_mov_b32 v%d, v0' % vID)
    p('v_readfirstlane_b32 s%d, v%d' % (sW, vW))
    p('s_and_b32 s%d, s2, 7' % sT0); p('s_lshr_b32 s%d, s2, 3' % sT1)
    if kind != 'mlp1':
        p('s_lshr_b32 s%d, s%d, 1' % (sTT, sT0)); p('s_lshl_b32 s%d, s%d, 3' % (sTT, sTT)); p('s_and_b32 s%d, s%d, 7' % (sT2, sT1)); p('s_add_u32 s%d, s%d, s%d' % (sTT, sTT, sT2))
        p('s_and_b32 s%d, s%d, 1' % (sNT, sT0)); p('s_lshl_b32 s%d, s%d, 2' % (sNT, sNT)); p('s_lshr_b32 s%d, s%d, 3' % (sT2, sT1)); p('s_add_u32 s%d, s%d, s%d' % (sNT, sNT, sT2))
    else:
        p('s_mul_i32 s%d, s%d, 37' % (sT2, sT1)); p('s_lshr_b32 s%d, s%d, 8' % (sT2, sT2))
        p('s_lshr_b32 s%d, s%d, 1' % (sTT, sT0)); p('s_lshl_b32 s%d, s%d, 2' % (sTT, sTT)); p('s_add_u32 s%d, s%d, s%d' % (sTT, sTT, sT2))
        p('s_mul_i32 s%d, s%d, 7' % (sT2, sT2)); p('s_sub_u32 s%d, s%d, s%d' % (sNT, sT1, sT2))
        p('s_and_b32 s%d, s%d, 1' % (sT2, sT0)); p('s_mul_i32 s%d, s%d, 7' % (sT2, sT2)); p('s_add_u32 s%d, s%d, s%d' % (sNT, sNT, sT2))
    p('s_lshr_b32 s%d, s%d, 1' % (sTH, sW)); p('s_and_b32 s%d, s%d, 1' % (sKH, sW))
    p('s_mul_i32 s%d, s%d, %d' % (sWQ, sW, WQ))
    if NG == 5:
        for j in range(ND):
            p('v_add_u32 v%d, %d, v%d' % (t0, 64 * j, vL))
            p('v_mul_u32_u24 v%d, 6554, v%d' % (t1, t0)); p('v_lshrrev_b32 v%d, 16, v%d' % (t1, t1))
            p('v_mul_u32_u24 v%d, %d, v%d' % (t2, pitch - 160, t1))
            p('v_lshl_add_u32 v%d, v%d, 4, v%d' % (vD + j, vL, t2))
        p('v_mul_u32_u24 v%d, %d, v%d' % (t0, 32 * pitch, vW))
        for j in range(ND): p('v_add_u32 v%d, v%d, v%d' % (vD + j, vD + j, t0))
        p('v_add_u32 v%d, 4096, v%d' % (vD + 4, vD + 4))
    else:
        p('v_lshrrev_b32 v%d, 4, v%d' % (t0, vL)); p('v_and_b32 v%d, 15, v%d' % (t1, vL))
        p('v_lshl_add_u32 v%d, v%d, 4, v%d' % (t2, vW, t0)); p('v_mul_u32_u24 v%d, %d, v%d' % (t2, pitch, t2))
        p('v_lshlrev_b32 v%d, 1, v%d' % (t0, t0)); p('v_xor_b32 v%d, v%d, v%d' % (t1, t1, t0))
        p('v_lshl_add_u32 v%d, v%d, 4, v%d' % (vD, t1, t2))
        p('v_xor_b32 v%d, 8, v%d' % (t1, t1)); p('v_lshl_add_u32 v%d, v%d, 4, v%d' % (vD + 1, t1, t2))
        p('v_add_u32 v%d, %d, v%d' % (vD + 1, 4 * pitch - 1024, vD + 1))
        for j in (2, 3): p('v_add_u32 v%d, %d, v%d' % (vD + j, 8 * pitch - 2048, vD + j - 2))
    p('v_lshrrev_b32 v%d, 1, v%d' % (t0, vW)); p('v_and_b32 v%d, 1, v%d' % (t1, vW))
    if TG == 2:
        p('v_lshlrev_b32 v%d, 11, v%d' % (t0, t0)); p('v_lshl_add_u32 v%d, v%d, 4, v%d' % (t0, vL, t0))
        p('v_mul_u32_u24 v%d, %d, v%d' % (t2, E * 4096, t1)); p('v_add_u32 v%d, v%d, v%d' % (t0, t0, t2))
        p('v_lshl_add_u32 v%d, v%d, 10, v%d' % (vB, t1, t0)); p('v_xor_b32 v%d, 1024, v%d' % (vB + 1, vB))
        p('v_add_u32 v%d, 4096, v%d' % (vB + 2, vB)); p('v_add_u32 v%d, 4096, v%d' % (vB + 3, vB + 1))
    else:
        p('v_mul_u32_u24 v%d, %d, v%d' % (t0, nks * 4096, t0)); p('v_lshl_add_u32 v%d, v%d, 4, v%d' % (t0, vL, t0))
        p('v_lshl_add_u32 v%d, v%d, 12, v%d' % (t0, t1, t0))
        p('v_lshl_add_u32 v%d, v%d, 11, v%d' % (vB, t1, t0)); p('v_xor_b32 v%d, 2048, v%d' % (vB + 1, vB))
    p('s_waitcnt lgkmcnt(0)')
    p('s_mul_i32 s%d, s%d, %d' % (sT0, sNT, RB))
    p('s_sub_u32 s%d, %d, s%d' % (sT1, KK * pitch, sT0))
    mk_srd(p, sWT, sWT, 's%d' % sT0, 's%d' % sT1)
    tb = nks * 4096 * (2 if kind == 'mlp1' else 1)
    p('s_mul_i32 s%d, s%d, %d' % (sT0, sTT, tb)); p('s_add_u32 s%d, s%d, %d' % (sT0, sT0, c['bsrc']))
    mk_srd(p, sBS, sWS, 's%d' % sT0, tb)
    p('s_mov_b32 s%d, 0' % sWO); p('s_mov_b32 s%d, 0' % sBO)
    def m0set(sl): return 's_add_u32 m0, s%d, %d' % (sWQ, sl * SB) if sl else 's_mov_b32 m0, s%d' % sWQ
    def dma(j, st): return ('buffer_load_dwordx4 v%d, %s, s%d offen offset:%d lds' % (vD + j, s(sWT, 4), sWO, (j & 3) * 1024), ('dma', st))
    def dmas(st):
        o = [dma(j, st) for j in range(ND)]
        if ND == 5: o.insert(4, ('s_add_u32 m0, m0, 4096', None))
        return o
    def bld(st, e, t):
        half = t // H2; off = (t % H2) * 1024
        return ('buffer_load_dwordx4 %s, v%d, %s, s%d offen offset:%d' % (a(BF(st % U, e, t), 4), vB + 2 * e + half, s(sBS, 4), sBO, off), None)
    def advs(): return ['s_add_u32 s%d, s%d, %d' % (sWO, sWO, RS * pitch), 's_add_u32 s%d, s%d, %d' % (sBO, sBO, 2 * E * 4096)]
    def issue_stage(q, st):
        q(m0set(st % U))
        for e in range(E):
            for t in range(TG): q(*bld(st, e, t))
        for x in dmas(st): q(*x)
        for x in advs(): q(x)
    if kind == 'oproj':
        p('s_mul_i32 s%d, s2, 4682' % sT0); p('s_lshr_b32 s%d, s%d, 16' % (sT0, sT0))
        p('s_mul_i32 s%d, s%d, 14' % (sT1, sT0)); p('s_sub_u32 s%d, s2, s%d' % (sT1, sT1))
        p('s_mul_i32 s%d, s%d, 40' % (sT2, sT0)); p('s_mul_i32 s%d, s%d, 10' % (sT3, sW)); p('s_add_u32 s%d, s%d, s%d' % (sT2, sT2, sT3))
        p('s_min_u32 s%d, s%d, 630' % (sT2, sT2))
        p('s_lshl_b32 s%d, s%d, 2' % (sT3, sT2)); p('s_add_u32 s%d, s%d, %d' % (sT3, sT3, MOD + 3 * 2560))
        p('s_load_dwordx8 s[%d:%d], s[%d:%d], s%d' % (sG, sG + 7, sWS, sWS + 1, sT3)); p('s_load_dwordx2 s[%d:%d], s[%d:%d], s%d offset:32' % (sG + 8, sG + 9, sWS, sWS + 1, sT3))
        p('s_load_dwordx8 s[%d:%d], s[%d:%d], s%d offset:2560' % (sG + 12, sG + 19, sWS, sWS + 1, sT3)); p('s_load_dwordx2 s[%d:%d], s[%d:%d], s%d offset:2592' % (sG + 20, sG + 21, sWS, sWS + 1, sT3))
        p('s_cmp_lt_u32 s2, 224'); p('s_cselect_b32 s%d, %d, 0' % (sU1 + 2, 640 * 3456)); p('s_mov_b32 s%d, 0x00020000' % (sU1 + 3))
        p('s_cselect_b32 s%d, 1024, 0' % (sU2 + 2)); p('s_mov_b32 s%d, 0x00020000' % (sU2 + 3))
        p('s_mul_i32 s%d, s%d, %d' % (sT0, sT0, 1792 * 8)); p('s_lshl_b32 s%d, s%d, 10' % (sT3, sT1)); p('s_add_u32 s%d, s%d, s%d' % (sT0, sT0, sT3)); p('s_add_u32 s%d, s%d, %d' % (sT0, sT0, UV))
        p('s_add_u32 s%d, s%d, s%d' % (sU2, sWS, sT0)); p('s_addc_u32 s%d, s%d, 0' % (sU2 + 1, sWS + 1))
        p('s_mul_i32 s%d, s%d, 3456' % (sT2, sT2)); p('s_lshl_b32 s%d, s%d, 8' % (sT1, sT1)); p('s_add_u32 s%d, s%d, s%d' % (sT2, sT2, sT1))
        p('v_lshlrev_b32 v%d, 2, v%d' % (t0, vL))
        for i in range(10):
            p('buffer_load_dword v%d, v%d, %s, s%d offen' % (vE + i, t0, s(sU1, 4), sT2))
            if i < 9: p('s_add_u32 s%d, s%d, 3456' % (sT2, sT2))
    elif kind == 'mlp1':
        p('s_lshl_b32 s%d, s%d, 10' % (sT0, sTT)); p('s_add_u32 s%d, s%d, %d' % (sT0, sT0, STATS))
        p('s_lshl_b32 s%d, s%d, 10' % (sT1, sNT)); p('s_add_u32 s%d, s%d, %d' % (sT1, sT1, UV))
        p('s_cmp_eq_u32 s%d, 0' % sTH)
        p('s_cselect_b32 s%d, s%d, s%d' % (sT0, sT0, sT1))
        p('s_cselect_b32 s%d, %d, %d' % (sU1 + 2, 1, 2)); p('s_cselect_b32 s%d, 16384, s%d' % (sT3, sT3))
        p('s_mov_b32 s%d, 14336' % sT2); p('s_cselect_b32 s%d, s%d, s%d' % (sT3, sT3, sT2))
        p('s_mul_i32 s%d, s%d, %d' % (sU1 + 2, sU1 + 2, 7 * 16384 + 1024))
        p('s_add_u32 s%d, s%d, s%d' % (sU1, sWS, sT0)); p('s_addc_u32 s%d, s%d, 0' % (sU1 + 1, sWS + 1)); p('s_mov_b32 s%d, 0x00020000' % (sU1 + 3))
        p('v_and_b32 v%d, 127, v0' % t0); p('v_lshlrev_b32 v%d, 3, v%d' % (t1, t0)); p('v_lshlrev_b32 v%d, 1, v%d' % (t0, t0))
        p('s_mov_b32 s%d, 0' % sT2)
        for i in range(16):
            p('buffer_load_dwordx2 %s, v%d, %s, s%d offen' % (v(vE + 2 * i, 2), t1, s(sU1, 4), sT2))
            if i < 15: p('s_add_u32 s%d, s%d, s%d' % (sT2, sT2, sT3))
        mk_srd(p, sX, sX, None, 1728 * 2)
        p('s_lshl_b32 s%d, s%d, 8' % (sT2, sNT))
        p('buffer_load_ushort v%d, v%d, %s, s%d offen' % (vE + 32, t0, s(sX, 4), sT2))
    for st in range(D): issue_stage(p, st)
    p('v_lshrrev_b32 v%d, 4, v%d' % (vG, vL)); p('v_bfe_u32 v%d, v%d, 2, 2' % (vR, vL)); p('v_and_b32 v%d, 3, v%d' % (vC, vL)); p('v_and_b32 v%d, 15, v%d' % (vK, vL))
    p('v_and_b32 v%d, 1, v%d' % (t1, vW))
    if c['omap']:
        p('v_lshrrev_b32 v%d, 1, v%d' % (t0, vG)); p('v_lshlrev_b32 v%d, 4, v%d' % (t0, t0)); p('v_and_b32 v%d, 1, v%d' % (t2, vG)); p('v_lshl_add_u32 v%d, v%d, 2, v%d' % (t0, t2, t0))
        d2 = 8
    else:
        p('v_lshlrev_b32 v%d, 2, v%d' % (t0, vG)); d2 = 16
    p('v_add_u32 v%d, v%d, v%d' % (t0, t0, vR))
    p('v_mul_u32_u24 v%d, %d, v%d' % (t1, 32 * E, t1)); p('v_add_u32 v%d, v%d, v%d' % (t1, t1, t0))
    p('v_mul_u32_u24 v%d, %d, v%d' % (t1, RB, t1)); p('v_lshl_add_u32 v%d, v%d, 3, v%d' % (t1, vC, t1))
    if NG == 5:
        for b in range(NBASE): p('v_add_u32 v%d, %d, v%d' % (vA + b, 3 * b * SB, t1))
        def a_reads(st, e, ng):
            sl = st % U
            return ['ds_read_b64_tr_b16 %s, v%d offset:%d' % (a(AF(e, ng) + 2 * h, 2), vA + sl // 3, (sl % 3) * SB + (e * 32 + h * d2) * RB + ng * 32) for h in range(2)]
    else:
        p('v_and_b32 v%d, 7, v%d' % (t0, t0))
        for ng in range(8):
            p('v_xor_b32 v%d, %d, v%d' % (t2, ng, t0)); p('v_lshl_add_u32 v%d, v%d, 5, v%d' % (vA + ng, t2, t1))
            p('v_add_u32 v%d, %d, v%d' % (vA + 8 + ng, 3 * SB, vA + ng))
        def a_reads(st, e, ng):
            sl = st % U
            return ['ds_read_b64_tr_b16 %s, v%d offset:%d' % (a(AF(e, ng) + 2 * h, 2), vA + 8 * (sl // 3) + ng, (sl % 3) * SB + h * d2 * RB) for h in range(2)]
    for r_ in range(NT * 4): p('v_mov_b32 v%d, 0' % r_)
    p('s_mov_b32 s%d, %d' % (sCNT, nst // U))
    if kind == 'oproj':
        u = vT + 12
        for j in range(4): p('v_mov_b32 v%d, 0' % (u + j))
        p('s_waitcnt lgkmcnt(0)')
        for i in range(10):
            p('v_lshlrev_b32 v%d, 16, v%d' % (t0, vE + i)); p('v_and_b32 v%d, 0xffff0000, v%d' % (t1, vE + i))
            sb_, g2_ = sG + i, sG + 12 + i
            p('v_fmac_f32 v%d, s%d, v%d' % (u, g2_, t0)); p('v_fmac_f32 v%d, s%d, v%d' % (u + 1, sb_, t0))
            p('v_fmac_f32 v%d, s%d, v%d' % (u + 2, g2_, t1)); p('v_fmac_f32 v%d, s%d, v%d' % (u + 3, sb_, t1))
        scr = (U - 1) * SB
        p('v_lshlrev_b32 v%d, 4, v%d' % (t0, vID)); p('v_add_u32 v%d, %d, v%d' % (t0, scr, t0)); p('ds_write_b128 v%d, %s' % (t0, v(u, 4)))
        p('v_lshlrev_b32 v%d, 2, v%d' % (t1, vID)); p('v_add_u32 v%d, %d, v%d' % (t0, scr, t1))
        p('s_waitcnt lgkmcnt(0)'); p('s_barrier')
        for j in range(4): p('ds_read_b32 v%d, v%d offset:%d' % (u + j, t0, 1024 * j))
        p('v_add_f32 v%d, v%d, v%d' % (u, u, u + 1)); p('v_add_f32 v%d, v%d, v%d' % (u + 2, u + 2, u + 3)); p('v_add_f32 v%d, v%d, v%d' % (u, u, u + 2))
        p('buffer_store_dword v%d, v%d, %s, 0 offen' % (u, t1, s(sU2, 4)))
    eX, eA, eB = vE, vE + 10, vE + 30
    if kind in ('oproj', 'mlp2'):
        mk_srd(p, sMD, sWS, None, 6 * 2560)
        p('v_lshlrev_b32 v%d, 4, v%d' % (t0, vG)); p('s_mul_i32 s%d, s%d, 320' % (sT0, sNT))
        rows = (2, 4) if kind == 'oproj' else (5,)
        for q, row in enumerate(rows):
            p('s_add_u32 s%d, s%d, %d' % (sT1, sT0, row * 2560))
            for ng in range(5):
                p('buffer_load_dwordx4 %s, v%d, %s, s%d offen offset:%d' % (v((eA, eB)[q] + 4 * ng, 4), t0, s(sMD, 4), sT1, ng * 64))
        vRM = vT + 9
        p('v_lshl_add_u32 v%d, v%d, 4, v%d' % (t0, vW, vK)); p('v_mul_u32_u24 v%d, 1280, v%d' % (t0, t0)); p('v_lshl_add_u32 v%d, v%d, 3, v%d' % (vRM, vG, t0))
        p('s_mul_i32 s%d, s%d, %d' % (sT2, sTT, 64 * 1280)); p('s_mul_i32 s%d, s%d, 160' % (sT3, sNT)); p('s_add_u32 s%d, s%d, s%d' % (sT2, sT2, sT3))
        vX1 = vT + 10
        p('v_mul_u32_u24 v%d, 2560, v%d' % (t0, vW)); p('v_lshl_add_u32 v%d, v%d, 4, v%d' % (vX1, vL, t0)); p('v_lshl_add_u32 v%d, v%d, 3, v%d' % (vX1 + 1, vL, t0))
        p('s_lshl_b32 s%d, s%d, 3' % (sT0, sTT)); p('s_add_u32 s%d, s%d, s%d' % (sT0, sT0, sNT)); p('s_mul_i32 s%d, s%d, 10240' % (sT0, sT0)); p('s_add_u32 s%d, s%d, %d' % (sT0, sT0, X1))
        mk_srd(p, sO2, sWS, 's%d' % sT0, 10240)
        if kind == 'oproj':
            mk_srd(p, sX, sX, 's%d' % sT2, 64 * 1280)
            for ng in range(5): p('buffer_load_dwordx2 %s, v%d, %s, 0 offen offset:%d' % (v(eX + 2 * ng, 2), vRM, s(sX, 4), ng * 32))
            p('s_mul_i32 s%d, s%d, %d' % (sT0, sTT, 20 * 4096)); p('s_add_u32 s%d, s%d, %d' % (sT0, sT0, XG))
            mk_srd(p, sO1, sWS, 's%d' % sT0, 20 * 4096)
            p('s_lshl_b32 s%d, s%d, 14' % (sT0, sNT)); p('s_lshl_b32 s%d, s%d, 9' % (sT1, sTT)); p('s_add_u32 s%d, s%d, s%d' % (sT0, sT0, sT1)); p('s_add_u32 s%d, s%d, %d' % (sT0, sT0, STATS))
            mk_srd(p, sO3, sWS, 's%d' % sT0, 512)
        else:
            p('buffer_load_dwordx4 %s, v%d, %s, 0 offen' % (v(eX, 4), vX1, s(sO2, 4)))
            p('buffer_load_dwordx4 %s, v%d, %s, 0 offen offset:1024' % (v(eX + 4, 4), vX1, s(sO2, 4)))
            p('buffer_load_dwordx2 %s, v%d, %s, 0 offen offset:2048' % (v(eX + 8, 2), vX1 + 1, s(sO2, 4)))
            mk_srd(p, sX, sX, 's%d' % sT3, 160)
            p('v_lshlrev_b32 v%d, 3, v%d' % (t0, vG))
            for ng in range(5): p('buffer_load_dwordx2 %s, v%d, %s, 0 offen offset:%d' % (v(eB + 2 * ng, 2), t0, s(sX, 4), ng * 32))
            mk_srd(p, sO1, sO1, 's%d' % sT2, 64 * 1280)
    else:
        p('s_lshl_b32 s%d, s%d, 1' % (sT0, sTT)); p('s_add_u32 s%d, s%d, s%d' % (sT0, sT0, sTH))
        p('s_mul_i32 s%d, s%d, %d' % (sT0, sT0, 54 * 4096)); p('s_add_u32 s%d, s%d, %d' % (sT0, sT0, HID))
        mk_srd(p, sO1, sWS, 's%d' % sT0, 54 * 4096)
    p.need(lambda t: t[0] == 'dma' and t[1] <= 0); p('s_barrier')
    for e in range(E):
        for ng in range(NG):
            for x in a_reads(0, e, ng): p(x)
    segs.append(('once', p))

    def body(it):
        q = Seq()
        q(Lp + ':')
        for u_ in range(U):
            st = it * U + u_
            q.need(lambda t, st=st: t[0] == 'dma' and t[1] <= st + 1); q('s_barrier')
            mf = []; g = []
            for e in range(E):
                for ng in range(NG):
                    for t in range(TG):
                        d = v(ACC(ng, t), 4)
                        mf.append('%s %s, %s, %s, %s' % (MF, d, a(AF(e, ng), 4), a(BF(u_, e, t), 4), d))
                        g.append(a_reads(st + 1, e, ng) if t == TG - 1 else [])
            st2 = st + D
            ops = [m0set(st2 % U)] + [bld(st2, e, t) for e in range(E) for t in range(TG)] + dmas(st2) + advs()
            if u_ == U - 1: ops += ['s_sub_u32 s%d, s%d, 1' % (sCNT, sCNT), 's_cmp_lg_u32 s%d, 0' % sCNT]
            free = [i for i in range(len(mf)) if not g[i]]
            for n, o in enumerate(ops): g[free[n * len(free) // len(ops)]].append(o)
            interleave(q, mf, g)
        q('s_cbranch_scc1 %s' % Lp)
        return q
    segs.append(('loop', nst // U, body))

    e_ = Seq()
    if kind == 'mlp1':
        TB = U * SB
        for st_ in (8, 4, 2, 1):
            for j in range(st_): e_('v_pk_add_f32 %s, %s, %s' % (v(vE + 2 * j, 2), v(vE + 2 * j, 2), v(vE + 2 * j + 2 * st_, 2)))
        Lu, Lj = k.label('uv'), k.label('jn')
        e_('v_and_b32 v%d, 127, v%d' % (t0, vID))
        e_('s_cmp_lg_u32 s%d, 0' % sTH); e_('s_cbranch_scc1 %s' % Lu)
        e_('v_mul_f32 v%d, %s, v%d' % (vE, f32(1.0 / 640), vE)); e_('v_mul_f32 v%d, %s, v%d' % (vE + 1, f32(1.0 / 640), vE + 1))
        e_('v_fma_f32 v%d, -v%d, v%d, v%d' % (vE + 1, vE, vE, vE + 1)); e_('v_max_f32 v%d, 0, v%d' % (vE + 1, vE + 1)); e_('v_add_f32 v%d, %s, v%d' % (vE + 1, f32(1e-5), vE + 1))
        e_('v_rsq_f32 v%d, v%d' % (vE + 2, vE + 1)); e_('v_mul_f32 v%d, -v%d, v%d' % (vE + 3, vE, vE + 2))
        e_('v_lshlrev_b32 v%d, 3, v%d' % (t0, t0)); e_('v_add_u32 v%d, %d, v%d' % (t0, TB, t0))
        e_('ds_write_b64 v%d, %s' % (t0, v(vE + 2, 2)))
        e_('s_branch %s' % Lj)
        e_(Lu + ':')
        e_('v_lshlrev_b32 v%d, 16, v%d' % (t1, vE + 32)); e_('v_add_f32 v%d, v%d, v%d' % (vE + 1, vE + 1, t1))
        e_('v_lshlrev_b32 v%d, 2, v%d' % (t0, t0)); e_('v_add_u32 v%d, %d, v%d' % (t0, TB, t0))
        e_('ds_write_b32 v%d, v%d offset:1024' % (t0, vE)); e_('ds_write_b32 v%d, v%d offset:1536' % (t0, vE + 1))
        e_(Lj + ':')
    RW = H2 * NG * 1024
    e_('v_mul_u32_u24 v%d, %d, v%d' % (t0, RW, vW)); e_('v_lshl_add_u32 v%d, v%d, 4, v%d' % (t0, vL, t0))
    e_('v_xor_b32 v%d, 1, v%d' % (t1, vW)); e_('v_mul_u32_u24 v%d, %d, v%d' % (t1, RW, t1)); e_('v_lshl_add_u32 v%d, v%d, 4, v%d' % (t1, vL, t1))
    e_('s_waitcnt vmcnt(0) lgkmcnt(0)'); e_('s_barrier')
    n = 0
    for t in range(H2, TG):
        for ng in range(NG):
            e_('ds_write_b128 v%d, %s offset:%d' % (t0, v(ACC(ng, t), 4), n * 1024)); n += 1
    e_('s_waitcnt lgkmcnt(0)'); e_('s_barrier')
    n = 0
    for t in range(H2, TG):
        for ng in range(NG):
            e_('ds_read_b128 %s, v%d offset:%d' % (v(ACC(ng, t), 4), t1, n * 1024)); n += 1
    def addp(t, ng):
        return ['v_pk_add_f32 %s, %s, %s' % (v(ACC(ng, t) + 2 * h, 2), v(ACC(ng, t) + 2 * h, 2), v(ACC(ng, t + H2) + 2 * h, 2)) for h in range(2)]
    if kind == 'oproj':
        sm = vT + 12
        for j in range(4): e_('v_mov_b32 v%d, 0' % (sm + j))
        e_('v_lshl_add_u32 v%d, v%d, 10, 0' % (t2, vW)); e_('v_lshl_add_u32 v%d, v%d, 4, v%d' % (t2, vL, t2))
        e_('s_mul_i32 s%d, s%d, 5' % (sT0, sNT))
        for ng in range(5):
            ac = ACC(ng, 0); xr = vT + 16; tp = vT + 20
            for x in addp(0, ng): e_(x)
            for h in range(2):
                e_('v_lshlrev_b32 v%d, 16, v%d' % (xr + 2 * h, eX + 2 * ng + h)); e_('v_and_b32 v%d, 0xffff0000, v%d' % (xr + 2 * h + 1, eX + 2 * ng + h))
            for h in range(2):
                e_('v_pk_fma_f32 %s, %s, %s, %s' % (v(ac + 2 * h, 2), v(ac + 2 * h, 2), v(eA + 4 * ng + 2 * h, 2), v(xr + 2 * h, 2)))
            for h in range(2):
                e_('v_cvt_pk_bf16_f32 v%d, v%d, v%d' % (eX + 2 * ng + h, ac + 2 * h, ac + 2 * h + 1))
            for h in range(2):
                e_('v_lshlrev_b32 v%d, 16, v%d' % (ac + 2 * h, eX + 2 * ng + h)); e_('v_and_b32 v%d, 0xffff0000, v%d' % (ac + 2 * h + 1, eX + 2 * ng + h))
            for h in range(2):
                e_('v_pk_add_f32 %s, %s, %s' % (v(sm, 2), v(sm, 2), v(ac + 2 * h, 2)))
                e_('v_pk_fma_f32 %s, %s, %s, %s' % (v(sm + 2, 2), v(ac + 2 * h, 2), v(ac + 2 * h, 2), v(sm + 2, 2)))
                e_('v_pk_mul_f32 %s, %s, %s' % (v(ac + 2 * h, 2), v(ac + 2 * h, 2), v(eB + 4 * ng + 2 * h, 2)))
            for h in range(2):
                e_('v_cvt_pk_bf16_f32 v%d, v%d, v%d' % (ac + h, ac + 2 * h, ac + 2 * h + 1))
            e_('s_add_u32 s%d, s%d, %d' % (sT1, sT0, ng)); e_('s_lshr_b32 s%d, s%d, 1' % (sT2, sT1)); e_('s_lshl_b32 s%d, s%d, 12' % (sT2, sT2))
            e_('s_and_b32 s%d, s%d, 1' % (sT1, sT1)); e_('s_lshl_b32 s%d, s%d, 3' % (sT1, sT1)); e_('s_add_u32 s%d, s%d, s%d' % (sT1, sT1, sT2))
            e_('buffer_store_dwordx2 %s, v%d, %s, s%d offen' % (v(ac, 2), t2, s(sO1, 4), sT1))
            if ng == 1: e_('buffer_store_dwordx4 %s, v%d, %s, 0 offen' % (v(eX, 4), vX1, s(sO2, 4)))
            if ng == 3: e_('buffer_store_dwordx4 %s, v%d, %s, 0 offen offset:1024' % (v(eX + 4, 4), vX1, s(sO2, 4)))
            if ng == 4: e_('buffer_store_dwordx2 %s, v%d, %s, 0 offen offset:2048' % (v(eX + 8, 2), vX1 + 1, s(sO2, 4)))
        e_('v_add_f32 v%d, v%d, v%d' % (sm, sm, sm + 1)); e_('v_add_f32 v%d, v%d, v%d' % (sm + 1, sm + 2, sm + 3))
        for sw in ('v_permlane32_swap_b32', 'v_permlane16_swap_b32'):
            e_('v_mov_b32 v%d, v%d' % (sm + 2, sm)); e_('v_mov_b32 v%d, v%d' % (sm + 3, sm + 1))
            e_('%s v%d, v%d' % (sw, sm, sm + 2)); e_('%s v%d, v%d' % (sw, sm + 1, sm + 3))
            e_('v_pk_add_f32 %s, %s, %s' % (v(sm, 2), v(sm, 2), v(sm + 2, 2)))
        e_('v_lshl_add_u32 v%d, v%d, 4, v%d' % (t0, vW, vK)); e_('v_lshlrev_b32 v%d, 3, v%d' % (t0, t0)); e_('v_lshl_add_u32 v%d, v%d, 12, v%d' % (t0, vG, t0))
        e_('buffer_store_dwordx2 %s, v%d, %s, 0 offen' % (v(sm, 2), t0, s(sO3, 4)))
    elif kind == 'mlp2':
        for ng in range(5):
            ac = ACC(ng, 0); xr = vT + 16; br = vT + 20
            for x in addp(0, ng): e_(x)
            for h in range(2):
                e_('v_lshlrev_b32 v%d, 16, v%d' % (xr + 2 * h, eX + 2 * ng + h)); e_('v_and_b32 v%d, 0xffff0000, v%d' % (xr + 2 * h + 1, eX + 2 * ng + h))
                e_('v_lshlrev_b32 v%d, 16, v%d' % (br + 2 * h, eB + 2 * ng + h)); e_('v_and_b32 v%d, 0xffff0000, v%d' % (br + 2 * h + 1, eB + 2 * ng + h))
            for h in range(2):
                e_('v_pk_add_f32 %s, %s, %s' % (v(ac + 2 * h, 2), v(ac + 2 * h, 2), v(br + 2 * h, 2)))
            for h in range(2):
                e_('v_pk_fma_f32 %s, %s, %s, %s' % (v(ac + 2 * h, 2), v(ac + 2 * h, 2), v(eA + 4 * ng + 2 * h, 2), v(xr + 2 * h, 2)))
            for h in range(2):
                e_('v_cvt_pk_bf16_f32 v%d, v%d, v%d' % (ac + h, ac + 2 * h, ac + 2 * h + 1))
            e_('buffer_store_dwordx2 %s, v%d, %s, 0 offen offset:%d' % (v(ac, 2), vRM, s(sO1, 4), ng * 32))
    else:
        TB = U * SB
        e_('v_lshl_add_u32 v%d, v%d, 5, v%d' % (t0, vW, vK)); e_('v_lshlrev_b32 v%d, 3, v%d' % (t0, t0)); e_('v_add_u32 v%d, %d, v%d' % (t0, TB, t0))
        st_ = vT + 12
        e_('ds_read_b64 %s, v%d' % (v(st_, 2), t0)); e_('ds_read_b64 %s, v%d offset:128' % (v(st_ + 2, 2), t0))
        e_('v_lshlrev_b32 v%d, 4, v%d' % (t1, vG)); e_('v_add_u32 v%d, %d, v%d' % (t1, TB + 1024, t1))
        uvb = vE
        for ng in range(8):
            e_('ds_read_b128 %s, v%d offset:%d' % (v(uvb + 8 * ng, 4), t1, ng * 64)); e_('ds_read_b128 %s, v%d offset:%d' % (v(uvb + 8 * ng + 4, 4), t1, 512 + ng * 64))
        e_('v_and_b32 v%d, 1, v%d' % (t2, vW)); e_('v_lshlrev_b32 v%d, 11, v%d' % (t2, t2)); e_('v_lshl_add_u32 v%d, v%d, 4, v%d' % (t2, vL, t2))
        e_('s_lshl_b32 s%d, s%d, 14' % (sT0, sNT))
        tp = vT + 16
        for m in range(4):
            for t in range(2):
                for a_ in range(2):
                    ng = 2 * m + a_; ac = ACC(ng, t)
                    for x in addp(t, ng): e_(x)
                    for h in range(2):
                        e_('v_pk_fma_f32 %s, %s, %s, %s op_sel:[0,1,0] op_sel_hi:[1,1,1]' % (v(tp + 2 * h, 2), v(uvb + 8 * ng + 2 * h, 2), v(st_ + 2 * t, 2), v(uvb + 8 * ng + 4 + 2 * h, 2)))
                    for h in range(2):
                        e_('v_pk_fma_f32 %s, %s, %s, %s op_sel:[0,0,0] op_sel_hi:[1,0,1]' % (v(ac + 2 * h, 2), v(ac + 2 * h, 2), v(st_ + 2 * t, 2), v(tp + 2 * h, 2)))
                    for j in range(4): e_('v_max_f32 v%d, 0, v%d' % (ac + j, ac + j))
                    for h in range(2): e_('v_pk_mul_f32 %s, %s, %s' % (v(ac + 2 * h, 2), v(ac + 2 * h, 2), v(ac + 2 * h, 2)))
                    dst = ACC(2 * m, t + 2)
                    for h in range(2): e_('v_cvt_pk_bf16_f32 v%d, v%d, v%d' % (dst + 2 * a_ + h, ac + 2 * h, ac + 2 * h + 1))
                e_('buffer_store_dwordx4 %s, v%d, %s, s%d offen offset:%d' % (v(ACC(2 * m, t + 2), 4), t2, s(sO1, 4), sT0, t * 1024))
            if m < 3: e_('s_add_u32 s%d, s%d, 4096' % (sT0, sT0))
    e_(Lend + ':'); e_('s_endpgm')
    segs.append(('once', e_))
    assemble(k, segs)
    return k
```

```python
T, D, H, DH, W, F = 2048, 640, 32, 128, 512, 1728
MOD   = 0x0000000
GS    = 0x0008000
XH    = 0x0010000
OB    = 0x0400000
XG    = 0x1400000
X1    = 0x1A00000
STATS = 0x1D00000
UV    = 0x2100000
UVP = 16
HID   = 0x2200000
WP3   = 0x2A00000
WP5   = 0x3200000
WS_END = 0x2D00000
KA = dict(x=0, k=8, v=16, wq=24, wo=32, bx=40, w1=48, b1=56, w2=64, b2=72, c=80, wmod=88, out=96, dbg=104, ws=112)
QSCALE = (128 ** -0.5) * 1.4426950408889634
```

```python
from asmlib import Ins, K, regs_of
import re

class Seq:
    def __init__(self):
        self.items = []
    def __call__(self, s, tag=None):
        for line in s.split('\n'):
            line = line.strip()
            if line:
                self.items.append((line, tag))
    def need(self, pred):
        self.items.append(('; need', ('NEED', pred)))
    def touch(self, regs):
        self.items.append(('; need', ('TOUCH', set(regs_of(regs)))))
    def extend(self, other):
        self.items += other.items

def interleave(seq, mfmas, gaps, pre=None):
    for i, m in enumerate(mfmas):
        seq(m)
        for it in gaps[i]:
            if isinstance(it, tuple) and len(it) == 2 and it[0] == 'NEED':
                seq.need(it[1])
            elif isinstance(it, tuple) and len(it) == 2 and it[0] == 'TOUCH':
                seq.touch(it[1])
            elif isinstance(it, tuple):
                seq(it[0], it[1])
            else:
                seq(it)

class WaitSim:
    def __init__(self):
        self.vm = []
        self.lg = []
    def step(self, text, tag):
        vmreq = lgreq = None
        if isinstance(tag, tuple) and tag and tag[0] == 'NEED':
            idx = -1
            for i, (r, t) in enumerate(self.vm):
                if t is not None and tag[1](t): idx = i
            if idx >= 0:
                vmreq = len(self.vm) - 1 - idx
                self.vm = self.vm[idx + 1:]
            return vmreq, None
        istouch = isinstance(tag, tuple) and tag and tag[0] == 'TOUCH'
        if not istouch and (text.endswith(':') or text.startswith(('.', ';'))):
            return None, None
        ins = Ins('s_nop 0' if istouch else text)
        if ins.op == 's_waitcnt':
            m = re.search(r'vmcnt\((\d+)\)', text)
            if m:
                n = int(m.group(1)); self.vm = self.vm[len(self.vm) - n:] if n < len(self.vm) else self.vm
                if n == 0: self.vm = []
            m = re.search(r'lgkmcnt\((\d+)\)', text)
            if m:
                n = int(m.group(1)); self.lg = self.lg[len(self.lg) - n:] if n < len(self.lg) else self.lg
                if n == 0: self.lg = []
            return None, None
        touched = set(ins.src) | set(ins.dst)
        if istouch: touched = tag[1]
        idx = -1
        for i, (r, t) in enumerate(self.vm):
            if r & touched: idx = i
        if idx >= 0:
            vmreq = len(self.vm) - 1 - idx
            self.vm = self.vm[idx + 1:]
        idx = -1
        for i, (r, sm) in enumerate(self.lg):
            if r & touched: idx = i
        if idx >= 0:
            if any(sm for r, sm in self.lg):
                lgreq = 0; self.lg = []
            else:
                lgreq = len(self.lg) - 1 - idx
                self.lg = self.lg[idx + 1:]
        if ins.kind == 'vmem':
            self.vm.append((set(ins.dst), tag))
        elif ins.kind == 'ds':
            self.lg.append((set(ins.dst), False))
        elif ins.kind == 'smem':
            self.lg.append((set(ins.dst), True))
        return vmreq, lgreq

def assemble(k, segs, sim=None, verbose=False):
    sim = sim or WaitSim()
    for sg in segs:
        if sg[0] == 'once':
            its = [sg[1]]
        else:
            its = [sg[2](i) for i in range(sg[1])]
        texts = [t for t, _ in its[0].items]
        req = [[None, None] for _ in texts]
        for s in its:
            assert [t for t, _ in s.items] == texts, 'loop body text differs'
            for p, (t, tag) in enumerate(s.items):
                a, b = sim.step(t, tag)
                if a is not None: req[p][0] = a if req[p][0] is None else min(a, req[p][0])
                if b is not None: req[p][1] = b if req[p][1] is None else min(b, req[p][1])
        for p, t in enumerate(texts):
            a, b = req[p]
            w = []
            if a is not None: w.append('vmcnt(%d)' % min(a, 63))
            if b is not None: w.append('lgkmcnt(%d)' % min(b, 15))
            if w: k('s_waitcnt ' + ' '.join(w))
            if t != '; need': k(t)
    return sim
```

```python
import sys
sys.path.insert(0, 'dev')
from asmlib import *
from k1 import gen_k1
from k2 import gen_k2, K2_LDS
import k3
def main(out, prof=False):
    ks = [gen_k1(), gen_k2(prof)]; la = [('prep_kernel', 256, 256, 4096), ('attn_kernel', 256, 256, K2_LDS)]
    for kind in ('oproj', 'mlp1', 'mlp2'):
        ks.append(k3.gen(kind)); la.append((kind + '_kernel', k3.CFG[kind]['grid'], 256, k3.lds_size(kind)))
    open(out, 'w').write(render(ks, la))
if __name__ == '__main__':
    main(sys.argv[1] if len(sys.argv) > 1 else 'kern.s', len(sys.argv) > 2)
```

```python
from asmlib import *
from layout import *
from sched import *
from k1 import f32, srd

BLK, WST = 1088, 4480
SLOT = 4 * WST
R = 7
GSOFF = R * SLOT
FLAGOFF = GSOFF + 2560 + 512
K2_LDS = FLAGOFF + 64
MF = 'v_mfma_f32_32x32x16_bf16'

def ACC(tg, t): return (tg * 4 + t) * 16
XR = 128
HB = 192
GB = 208
TM = 224
S_ = 128
NM = 160
P_ = 192
LA = 208
vF = 232
vKV = 236
vX0, vX1 = 240, 241
cW, cK0, cK1, cV = 242, 243, 244, 245
vRW, vRK0, vRK1, vRV = 246, 247, 248, 249
vGS, vO = 250, 251
def QF(tg, s): return (tg * 8 + s) * 4
def KF(s): return 64 + 4 * s
def VF(f): return 96 + 4 * f
def WF(b, t): return 128 + 16 * b + 4 * t
sWQ, sK, sV, sXH, sOB, sGS = 4, 8, 12, 16, 20, 24
sW, sFILL, sRD, sFOFF, sXOFF, sCNT, sHEAD, sQB, sFB, sT0, sT1, sW44, sFSTR, sRV, sRK = 28, 29, 30, 31, 32, 33, 34, 35, 36, 37, 38, 39, 40, 41, 42
sFA, sFB2 = 44, 48
sPS3, sPS5, sPD3, sPD5, sP4 = 84, 88, 92, 96, 100
aPK = 160
sPKN = 101
import os
PKG, PKS = int(os.environ.get('PKG', 12)), int(os.environ.get('PKS', 4))
PKMOD = os.environ.get('PKMOD', ' sc1')
OMOD = os.environ.get('OMOD', ' sc1')

COST = {'v_exp': 8}
def cost(t):
    if isinstance(t, tuple):
        if t[0] in ('NEED', 'TOUCH'): return 4
        t = t[0]
    return 8 if t.startswith(('v_exp', 'v_rcp')) else 4

def pack(gaps, stream, g0, g1):
    n = g1 - g0 + 1
    tot = sum(cost(x) for x in stream) + sum(cost(x) for g in range(g0, g1 + 1) for x in gaps[g])
    i = 0; cum = 0
    for q, g in enumerate(range(g0, g1 + 1)):
        cum += sum(cost(x) for x in gaps[g])
        lim = tot * (q + 1) / n
        while i < len(stream) and (cum + cost(stream[i]) / 2 <= lim or g == g1):
            gaps[g].append(stream[i]); cum += cost(stream[i]); i += 1
    assert i == len(stream)

def fill_dma(i, u):
    srdr = sFA if i < 2 else sFB2
    return ('buffer_load_dwordx4 v%d, %s, s%d offen offset:%d lds' % (vF + i, s(srdr, 4), sFOFF, i * BLK), ('dma', u))

def adv(sreg, tmp):
    return ['s_add_u32 s%d, s%d, %d' % (sreg, sreg, SLOT), 's_cmp_ge_u32 s%d, %d' % (sreg, R * SLOT),
            's_cselect_b32 s%d, %d, 0' % (tmp, R * SLOT), 's_sub_u32 s%d, s%d, s%d' % (sreg, sreg, tmp)]

def h_stream(s1):
    out = []
    gb = GB + 8 * (s1 & 1)
    n = 0
    for tg in range(2):
        x = XR + ((s1 & 7) * 2 + tg) * 4
        h = HB + ((s1 & 1) * 2 + tg) * 4
        for q in range(4):
            t0 = TM + 2 * (n & 3); n += 1
            out.append('v_fma_mix_f32 v%d, v%d, v%d, v%d op_sel:[0,0,0] op_sel_hi:[1,1,1]' % (t0, x + q, gb + q, gb + 4 + q))
            out.append('v_fma_mix_f32 v%d, v%d, v%d, v%d op_sel:[1,1,1] op_sel_hi:[1,1,1]' % (t0 + 1, x + q, gb + q, gb + 4 + q))
            out.append('v_cvt_pk_bf16_f32 v%d, v%d, v%d' % (h + q, t0, t0 + 1))
    o2 = []
    for i in range(0, len(out), 3):
        o2 += out[i:i + 2]
        if i >= 3: o2.append(out[i - 1])
    o2.append(out[-1])
    return o2

def w_reads(s1):
    b = s1 & 1; sl = s1 & 3
    return ['ds_read_b64_tr_b16 %s, v%d offset:%d' % (a(WF(b, t) + 2 * jh, 2), vRW, sl * WST + jh * 256 + t * 64)
            for t in range(4) for jh in range(2)]
def gs_reads(s2):
    gb = GB + 8 * (s2 & 1)
    return ['ds_read_b128 %s, v%d offset:%d' % (v(gb + 4 * h, 4), vGS, (s2 & 7) * 64 + h * 16) for h in range(2)]
def x_loads(s8):
    return [('buffer_load_dwordx4 %s, v%d, %s, s%d offen offset:%d' % (v(XR + ((s8 & 7) * 2 + tg) * 4, 4), vX0 + tg, s(sXH, 4), sXOFF, (s8 & 3) * 1024), None)
            for tg in range(2)]
def k_read(sd):
    return 'ds_read_b128 %s, v%d offset:%d' % (a(KF(sd), 4), vRK0 + (sd & 1), (sd >> 1) * 64)
def v_reads(f):
    sp, t = f >> 2, f & 3
    return ['ds_read_b64_tr_b16 %s, v%d offset:%d' % (a(VF(f) + 2 * jh, 2), vRV, sp * 2 * WST + jh * 512 + t * 64) for jh in range(2)]
def softmax(tg):
    sb = S_ + 16 * tg
    out = []
    def E(r): return 'v_exp_f32 v%d, v%d' % (sb + r, sb + r)
    def C(q): return 'v_cvt_pk_bf16_f32 v%d, v%d, v%d' % (P_ + 8 * tg + q, sb + 2 * q, sb + 2 * q + 1)
    def A(r): return 'v_add_f32 v%d, v%d, v%d' % (LA + 2 * tg + (r & 1), LA + 2 * tg + (r & 1), sb + r)
    for q in range(9):
        if q < 8: out += [E(2 * q), E(2 * q + 1)]
        if q > 0: out += [C(q - 1), A(2 * q - 2), A(2 * q - 1)]
    return out
def s_mfma(tg, czero=False):
    d = v(S_ + 16 * tg, 16)
    return ['%s %s, %s, %s, %s' % (MF, d, a(KF(sd), 4), a(QF(tg, sd), 4), (('0' if czero else v(NM + 16 * tg, 16)) if sd == 0 else d)) for sd in range(8)]
def pv_mfma(tg, first=False):
    return ['%s %s, %s, %s, %s' % (MF, v(ACC(tg, f & 3), 16), a(VF(f), 4), v(P_ + 8 * tg + 4 * (f >> 2), 4),
                                   '0' if (first and f < 4) else v(ACC(tg, f & 3), 16)) for f in range(8)]

PROF = 0x3000000
def gen_k2(prof=False):
    def stamp(q, i):
        if prof: q('s_memtime s[%d:%d]' % (60 + 2 * i, 61 + 2 * i))

    k = K('attn_kernel', vgprs=256, agprs=200)
    Lend, L1, L1s, L2, Lent, Lnom, Lfb, Lmx = [k.label(x) for x in ('end', 'p1', 'p1s', 'p2', 'ent', 'nom', 'fb', 'mx')]
    L2e, Lpk, Lps = k.label('p2e'), k.label('pk'), k.label('ps')
    segs = []
    p = Seq()
    p('s_cmp_ge_u32 s2, 256'); p('s_cbranch_scc1 %s' % Lend)
    stamp(p, 0)
    if prof: p('s_memrealtime s[76:77]'); p('s_load_dwordx2 s[80:81], s[0:1], %d' % KA['ws'])
    p('s_load_dwordx2 s[%d:%d], s[0:1], %d' % (sWQ, sWQ + 1, KA['wq']))
    p('s_load_dwordx4 s[%d:%d], s[0:1], %d' % (sFA, sFA + 3, KA['k']))
    p('s_load_dwordx2 s[%d:%d], s[0:1], %d' % (sGS, sGS + 1, KA['ws']))
    p('s_load_dwordx2 s[%d:%d], s[0:1], %d' % (sPS3, sPS3 + 1, KA['wo'])); p('s_load_dwordx2 s[%d:%d], s[0:1], %d' % (sPS5, sPS5 + 1, KA['w2']))
    p('v_lshrrev_b32 v1, 6, v0'); p('v_and_b32 v2, 63, v0')
    p('v_mov_b32 v255, v0')
    p('v_readfirstlane_b32 s%d, v1' % sW)
    p('s_and_b32 s%d, s2, 7' % sT0); p('s_lshr_b32 s%d, s2, 3' % sT1)
    p('s_and_b32 s%d, s%d, 1' % (sQB, sT0)); p('s_lshl_b32 s%d, s%d, 2' % (sQB, sQB)); p('s_and_b32 s%d, s%d, 3' % (sCNT, sT1)); p('s_add_u32 s%d, s%d, s%d' % (sQB, sQB, sCNT))
    p('s_lshr_b32 s%d, s%d, 1' % (sHEAD, sT0)); p('s_lshl_b32 s%d, s%d, 3' % (sHEAD, sHEAD)); p('s_lshr_b32 s%d, s%d, 2' % (sT1, sT1)); p('s_add_u32 s%d, s%d, s%d' % (sHEAD, sHEAD, sT1))
    p('s_mul_i32 s%d, s%d, %d' % (sW44, sW, WST))
    p('v_lshrrev_b32 v3, 4, v2'); p('v_and_b32 v4, 15, v2')
    p('v_lshlrev_b32 v5, 4, v1'); p('v_lshl_add_u32 v5, v3, 2, v5'); p('v_lshlrev_b32 v5, 13, v5'); p('v_lshl_add_u32 v%d, v4, 4, v5' % vF)
    for r_ in range(1, 4): p('v_add_u32 v%d, %d, v%d' % (vF + r_, r_ * (8192 - BLK), vF))
    p('v_mul_u32_u24 v5, 81920, v1'); p('v_lshl_add_u32 v%d, v2, 4, v5' % vX0); p('v_add_u32 v%d, 40960, v%d' % (vX1, vX0))
    p('s_waitcnt lgkmcnt(0)')
    p('s_lshl_b32 s%d, s%d, 8' % (sT0, sHEAD))
    p('s_add_u32 s%d, s%d, s%d' % (sWQ, sWQ, sT0)); p('s_addc_u32 s%d, s%d, 0' % (sWQ + 1, sWQ + 1))
    p('s_sub_u32 s%d, %d, s%d' % (sWQ + 2, 640 * 8192, sT0)); p('s_mov_b32 s%d, 0x00020000' % (sWQ + 3))
    p('s_lshl_b32 s%d, s%d, 19' % (sT0, sHEAD)); p('s_add_u32 s%d, s%d, %d' % (sT0, sT0, 393216 - 4096))
    for dst, src in ((sK, sFA), (sV, sFA + 2)):
        p('s_add_u32 s%d, s%d, s%d' % (dst, src, sT0)); p('s_addc_u32 s%d, s%d, 0' % (dst + 1, src + 1))
        p('s_mov_b32 s%d, %d' % (dst + 2, 131072 + 4096)); p('s_mov_b32 s%d, 0x00020000' % (dst + 3))
    p('s_mul_i32 s%d, s%d, %d' % (sT0, sQB, 8 * 40960)); p('s_add_u32 s%d, s%d, %d' % (sT0, sT0, XH))
    p('s_add_u32 s%d, s%d, s%d' % (sXH, sGS, sT0)); p('s_addc_u32 s%d, s%d, 0' % (sXH + 1, sGS + 1))
    p('s_mov_b32 s%d, %d' % (sXH + 2, 8 * 40960)); p('s_mov_b32 s%d, 0x00020000' % (sXH + 3))
    p('s_lshl_b32 s%d, s%d, 21' % (sT0, sQB)); p('s_add_u32 s%d, s%d, %d' % (sT0, sT0, OB))
    p('s_add_u32 s%d, s%d, s%d' % (sOB, sGS, sT0)); p('s_addc_u32 s%d, s%d, 0' % (sOB + 1, sGS + 1))
    p('s_mov_b32 s%d, %d' % (sOB + 2, 4 * 524288)); p('s_mov_b32 s%d, 0x00020000' % (sOB + 3))
    p('s_mov_b32 s%d, s%d' % (sPD3, sGS)); p('s_mov_b32 s%d, s%d' % (sPD3 + 1, sGS + 1))
    p('s_add_u32 s%d, s%d, %d' % (sGS, sGS, GS)); p('s_addc_u32 s%d, s%d, 0' % (sGS + 1, sGS + 1))
    p('s_mov_b32 s%d, 2560' % (sGS + 2)); p('s_mov_b32 s%d, 0x00020000' % (sGS + 3))
    for j in range(4):
        p('s_mov_b32 s%d, s%d' % (sFA + j, sWQ + j)); p('s_mov_b32 s%d, s%d' % (sFB2 + j, sWQ + j))
    p('s_mov_b32 s%d, 524288' % sFSTR); p('s_mov_b32 s%d, 0' % sFOFF); p('s_mov_b32 s%d, 0' % sXOFF); p('s_mov_b32 s%d, 0' % sFB)
    p('s_mov_b32 s%d, 0' % sFILL); p('s_mov_b32 s%d, %d' % (sPKN, PKG))
    def fill_begin(): return ['s_add_u32 m0, s%d, s%d' % (sFILL, sW44)]
    def fill_end(): return adv(sFILL, sT0) + ['s_add_u32 s%d, s%d, s%d' % (sFOFF, sFOFF, sFSTR)]
    for u in range(2):
        for x in fill_begin(): p(x)
        for i in range(4): p(*fill_dma(i, u))
        for x in fill_end(): p(x)
        if u == 0:
            p('v_lshlrev_b32 v5, 4, v0'); p('s_lshl_b32 s%d, s%d, 10' % (sT0, sW)); p('s_add_u32 m0, s%d, %d' % (sT0, GSOFF))
            p('s_cmp_eq_u32 s%d, 3' % sW); Lg = k.label('gs'); p('s_cbranch_scc1 %s' % Lg)
            p('buffer_load_dwordx4 v5, %s, 0 offen lds' % s(sGS, 4))
            p(Lg + ':')
            p('s_nop 0')
    for s8 in range(8):
        if s8 == 4: p('s_add_u32 s%d, s%d, 4096' % (sXOFF, sXOFF))
        for x in x_loads(s8): p(*x)
        if s8 & 3 == 0:
            for x in fill_begin(): p(x)
        p(*fill_dma(s8 & 3, 2 + (s8 >> 2)))
        if s8 & 3 == 3:
            for x in fill_end()[:(5 if s8 == 3 else 4)]: p(x)
    p('v_lshl_add_u32 v5, v1, 3, v3'); p('v_lshlrev_b32 v5, 8, v5'); p('v_xor_b32 v6, v4, v3'); p('v_lshl_add_u32 v5, v6, 4, v5')
    p('v_add_u32 v%d, 4096, v5' % vKV); p('v_add_u32 v%d, %d, v5' % (vKV + 1, 4096 + 1024 - BLK))
    p('v_lshrrev_b32 v5, 1, v1'); p('v_lshlrev_b32 v5, 4, v5'); p('v_lshl_add_u32 v5, v3, 2, v5'); p('v_and_b32 v6, 1, v1'); p('v_lshl_add_u32 v5, v6, 1, v5')
    p('v_lshlrev_b32 v5, 8, v5'); p('v_lshl_add_u32 v5, v4, 4, v5')
    p('v_add_u32 v%d, %d, v5' % (vKV + 2, 4096 - 2 * BLK)); p('v_add_u32 v%d, %d, v5' % (vKV + 3, 4096 + 256 - 3 * BLK))
    p('v_bfe_u32 v5, v2, 2, 2'); p('v_and_b32 v6, 3, v2'); p('v_lshrrev_b32 v7, 5, v2'); p('v_and_b32 v8, 1, v3')
    p('v_mul_u32_u24 v9, %d, v5' % BLK); p('v_lshl_add_u32 v9, v7, 9, v9'); p('v_lshl_add_u32 v9, v8, 5, v9')
    p('v_and_b32 v10, 1, v6'); p('v_lshl_add_u32 v9, v10, 4, v9'); p('v_lshrrev_b32 v10, 1, v6'); p('v_lshl_add_u32 v%d, v10, 3, v9' % cW)
    p('v_lshrrev_b32 v9, 1, v5'); p('v_mul_u32_u24 v9, %d, v9' % WST); p('v_and_b32 v10, 1, v5'); p('v_mul_u32_u24 v10, %d, v10' % BLK)
    p('v_add3_u32 v9, v9, v10, %d' % 0); p('v_add_u32 v9, %d, v9' % (2 * BLK))
    p('v_lshl_add_u32 v9, v7, 8, v9'); p('v_lshl_add_u32 v9, v8, 5, v9'); p('v_lshl_add_u32 v%d, v6, 3, v9' % cV)
    p('v_bfe_u32 v9, v2, 3, 2'); p('v_mul_u32_u24 v9, %d, v9' % WST); p('v_bfe_u32 v10, v2, 2, 1'); p('v_mul_u32_u24 v10, %d, v10' % BLK)
    p('v_add_u32 v9, v9, v10'); p('v_lshl_add_u32 v9, v6, 8, v9')
    p('v_xor_b32 v10, v7, v6'); p('v_lshl_add_u32 v%d, v10, 4, v9' % cK0)
    p('v_xor_b32 v10, 2, v10'); p('v_lshl_add_u32 v%d, v10, 4, v9' % cK1)
    p('v_lshlrev_b32 v%d, 5, v7' % vGS); p('v_add_u32 v%d, %d, v%d' % (vGS, GSOFF, vGS))
    p('v_lshlrev_b32 v9, 19, v1'); p('v_lshl_add_u32 v9, v8, 10, v9'); p('v_lshl_add_u32 v9, v7, 8, v9'); p('v_lshl_add_u32 v%d, v4, 4, v9' % vO)
    sNTp, sRB = sPS3 + 2, sPS3 + 3
    p('s_and_b32 s%d, s2, 1' % sT0); p('s_lshl_b32 s%d, s%d, 2' % (sT0, sT0)); p('s_bfe_u32 s%d, s2, 0x20003' % sT1); p('s_add_u32 s%d, s%d, s%d' % (sNTp, sT0, sT1))
    p('s_bfe_u32 s%d, s2, 0x20001' % sT0); p('s_lshr_b32 s%d, s2, 5' % sT1)
    p('s_lshl_b32 s%d, s%d, 2' % (sPD5 + 3, sT1)); p('s_add_u32 s%d, s%d, s%d' % (sPD5 + 3, sPD5 + 3, sT0)); p('s_min_u32 s%d, s%d, 14' % (sPD5 + 3, sPD5 + 3))
    p('s_lshl_b32 s%d, s%d, 3' % (sT0, sT0)); p('s_add_u32 s%d, s%d, s%d' % (sRB, sT0, sT1))
    p('s_mul_i32 s%d, s%d, 160' % (sP4, sNTp)); p('s_mul_i32 s%d, s%d, %d' % (sT1, sPD5 + 3, 128 * 1280)); p('s_add_u32 s%d, s%d, s%d' % (sT1, sT1, sP4))
    p('s_add_u32 s%d, s%d, s%d' % (sPS5, sPS5, sT1)); p('s_addc_u32 s%d, s%d, 0' % (sPS5 + 1, sPS5 + 1))
    p('s_sub_u32 s%d, %d, s%d' % (sPS5 + 2, 1728 * 1280, sT1)); p('s_max_i32 s%d, s%d, 0' % (sPS5 + 2, sPS5 + 2)); p('s_mov_b32 s%d, 0x00020000' % (sPS5 + 3))
    p('s_mul_i32 s%d, s%d, %d' % (sT0, sNTp, 1728 * 160)); p('s_mul_i32 s%d, s%d, 20480' % (sT1, sPD5 + 3))
    p('s_sub_u32 s%d, %d, s%d' % (sPD5 + 2, 1728 * 160, sT1)); p('s_max_i32 s%d, s%d, 0' % (sPD5 + 2, sPD5 + 2)); p('s_mov_b32 s%d, 0x00020000' % (sPD5 + 3))
    p('s_add_u32 s%d, s%d, s%d' % (sT0, sT0, sT1)); p('s_add_u32 s%d, s%d, %d' % (sT0, sT0, WP5))
    p('s_add_u32 s%d, s%d, s%d' % (sPD5, sPD3, sT0)); p('s_addc_u32 s%d, s%d, 0' % (sPD5 + 1, sPD3 + 1))
    p('s_lshl_b32 s%d, s%d, 5' % (sT0, sNTp)); p('s_add_u32 s%d, s%d, s%d' % (sT0, sT0, sRB)); p('s_mul_i32 s%d, s%d, 20480' % (sT0, sT0)); p('s_add_u32 s%d, s%d, %d' % (sT0, sT0, WP3))
    p('s_add_u32 s%d, s%d, s%d' % (sPD3, sPD3, sT0)); p('s_addc_u32 s%d, s%d, 0' % (sPD3 + 1, sPD3 + 1))
    p('s_mov_b32 s%d, 20480' % (sPD3 + 2)); p('s_mov_b32 s%d, 0x00020000' % (sPD3 + 3))
    p('s_mul_i32 s%d, s%d, %d' % (sT1, sRB, 128 * 1280)); p('s_add_u32 s%d, s%d, s%d' % (sT1, sT1, sP4))
    p('s_add_u32 s%d, s%d, s%d' % (sPS3, sPS3, sT1)); p('s_addc_u32 s%d, s%d, 0' % (sPS3 + 1, sPS3 + 1))
    p('s_sub_u32 s%d, %d, s%d' % (sPS3 + 2, 4096 * 1280, sT1)); p('s_mov_b32 s%d, 0x00020000' % (sPS3 + 3))
    p('s_mov_b32 s%d, 4096' % sP4)
    p('v_and_b32 v252, 63, v255'); p('v_lshrrev_b32 v253, 6, v255'); p('v_mul_u32_u24 v253, 320, v253'); p('v_add_u32 v252, v252, v253')
    p('v_lshlrev_b32 v255, 4, v252')
    p('v_mov_b32 v%d, v%d' % (vRW, cW))
    p('s_mov_b32 s%d, 0' % sRD); p('s_mov_b32 s%d, 5' % sCNT)
    for r_ in range(128): p('v_mov_b32 v%d, 0' % r_)
    p('s_waitcnt vmcnt(28)'); p('s_barrier')
    for x in gs_reads(0) + gs_reads(1) + w_reads(0): p(x)
    for x in h_stream(0): p(x)
    stamp(p, 1)
    p('s_waitcnt lgkmcnt(0)')
    segs.append(('once', p))

    def p1(it):
        q = Seq()
        q(L1 + ':')
        for st in range(8):
            sg = 8 * it + st; c = sg >> 2
            b = sg & 1
            mf = ['%s %s, %s, %s, %s' % (MF, v(ACC(tg, t), 16), a(WF(b, t), 4), v(HB + (b * 2 + tg) * 4, 4), v(ACC(tg, t), 16))
                  for t in range(4) for tg in range(2)]
            g = [[] for _ in range(8)]
            q.touch(a(WF(b, 0), 16) + ' ' + v(GB + 8 * ((sg + 1) & 1), 8) + ' ' + v(XR + ((sg + 1) & 7) * 8, 8))
            if st == 6: g[0].append('v_add_u32 v%d, 512, v%d' % (vGS, vGS))
            g[0] += gs_reads(sg + 2)
            if st & 3 == 2: g[5] += adv(sRD, sT1)[:2]; g[6] += adv(sRD, sT1)[2:]
            if st & 3 == 3:
                g[0] += [('NEED', lambda t, c=c: t[0] == 'dma' and t[1] <= c + 1), 's_barrier']
                g[0] += ['v_add_u32 v%d, s%d, v%d' % (vRW, sRD, cW)]
            wr = w_reads(sg + 1)
            for i in range(8): g[1 + i // 2].append(wr[i])
            xl = x_loads(sg + 8)
            g[5].append(xl[0]); g[6].append(xl[1])
            if st & 3 == 0:
                g[1].append('s_add_u32 s%d, s%d, 4096' % (sXOFF, sXOFF)); g[2].append(fill_end()[4]); g[6] += fill_begin()
            if st & 3 == 1: g[5] += fill_end()[:2]; g[6] += fill_end()[2:4]
            g[7].append(fill_dma(st & 3, c + 4))
            if st == 7:
                g[6] += ['s_sub_u32 s%d, s%d, 1' % (sCNT, sCNT), 's_cmp_eq_u32 s%d, 1' % sCNT, 's_cselect_b32 s%d, 0, s%d' % (sXH + 2, sXH + 2)]
            pack(g, h_stream(sg + 1), 0, 7)
            interleave(q, mf, g)
        q('s_cmp_eq_u32 s%d, 2' % sCNT); q('s_cbranch_scc0 %s' % L1s)
        for j in range(4):
            q('s_mov_b32 s%d, s%d' % (sFA + j, sK + j)); q('s_mov_b32 s%d, s%d' % (sFB2 + j, sV + j)); q('v_mov_b32 v%d, v%d' % (vF + j, vKV + j))
        q('s_mov_b32 s%d, 8192' % sFSTR); q('s_mov_b32 s%d, -8192' % sFOFF)
        q(L1s + ':')
        q('s_cmp_lg_u32 s%d, 0' % sCNT); q('s_cbranch_scc1 %s' % L1)
        return q
    segs.append(('loop', 5, p1))

    t_ = Seq()
    stamp(t_, 2)
    t_(fill_end()[4])
    for u in (14, 15):
        for x in fill_begin(): t_(x)
        for i in range(4): t_(*fill_dma(i, u))
        for x in fill_end(): t_(x)
    n = 0
    for tg in range(2):
        for sd in range(8):
            for q in range(4):
                src = ACC(tg, sd >> 1) + 8 * (sd & 1) + 2 * q
                tm = TM + (n & 7); n += 1
                t_('v_cvt_pk_bf16_f32 v%d, v%d, v%d' % (tm, src, src + 1))
                t_('v_accvgpr_write_b32 a%d, v%d' % (QF(tg, sd) + q, tm))
    t_('s_waitcnt lgkmcnt(0)')
    t_(Lent + ':')
    t_('v_add_u32 v%d, s%d, v%d' % (vRK0, sRD, cK0)); t_('v_add_u32 v%d, s%d, v%d' % (vRK1, sRD, cK1)); t_('v_add_u32 v%d, s%d, v%d' % (vRV, sRD, cV))
    for sd in range(8): t_(k_read(sd))
    for f in range(8):
        for x in v_reads(f): t_(x)
    t_('s_mov_b32 s%d, s%d' % (sRK, sRD))
    for x in adv(sRK, sT1): t_(x)
    t_.need(lambda t: t[0] == 'dma' and t[1] <= 11); t_('s_barrier')
    for tg in range(2): t_('v_mov_b32 v%d, 0' % (LA + 2 * tg)); t_('v_mov_b32 v%d, 0' % (LA + 2 * tg + 1))
    for x in s_mfma(0, True): t_(x)
    t_('v_add_u32 v%d, s%d, v%d' % (vRK0, sRK, cK0)); t_('v_add_u32 v%d, s%d, v%d' % (vRK1, sRK, cK1))
    m1 = s_mfma(1, True)
    for sd in range(8): t_(m1[sd]); t_(k_read(sd))
    t_('s_cmp_lg_u32 s%d, 0' % sFB); t_('s_cbranch_scc1 %s' % Lnom)
    for tg in range(2):
        sb = S_ + 16 * tg; tm = TM + 2 * tg
        t_('v_max3_f32 v%d, v%d, v%d, v%d' % (tm, sb, sb + 1, sb + 2))
        for r_ in range(3, 15, 2): t_('v_max3_f32 v%d, v%d, v%d, v%d' % (tm, tm, sb + r_, sb + r_ + 1))
        t_('v_max_f32 v%d, v%d, v%d' % (tm, tm, sb + 15))
        t_('v_mov_b32 v%d, v%d' % (tm + 1, tm))
        t_('v_permlane32_swap_b32 v%d, v%d' % (tm, tm + 1))
        t_('v_max_f32 v%d, v%d, v%d' % (tm, tm, tm + 1))
        t_('v_sub_f32 v%d, %s, v%d' % (tm, f32(-40.0), tm))
        for r_ in range(16): t_('v_mov_b32 v%d, v%d' % (NM + 16 * tg + r_, tm))
    t_(Lnom + ':')
    for tg in range(2):
        for r_ in range(16): t_('v_add_f32 v%d, v%d, v%d' % (S_ + 16 * tg + r_, S_ + 16 * tg + r_, NM + 16 * tg))
    for x in softmax(0): t_(x)
    t_('s_mov_b32 s%d, 14' % sCNT)
    stamp(t_, 3)
    t_('s_waitcnt lgkmcnt(0)')
    segs.append(('once', t_))

    def p2(j, first=False, last=False, loop=False):
        q = Seq()
        if loop: q(L2 + ':')
        g = [[] for _ in range(32)]
        q('s_waitcnt lgkmcnt(8)')
        if last:
            mf = pv_mfma(0) + pv_mfma(1)
            pack(g, softmax(1), 0, 7)
            interleave(q, mf, g)
            return q
        mf = pv_mfma(0, first) + s_mfma(0) + pv_mfma(1, first) + s_mfma(1)
        g[0] += fill_begin()
        for i in range(4): g[1 + i].append(fill_dma(i, j + 16))
        fe = fill_end()
        g[5] += fe[:2]; g[6] += fe[2:4]; g[7] += fe[4:]
        g[8].append('v_add_u32 v%d, s%d, v%d' % (vRV, sRK, cV))
        ad = adv(sRK, sT1)
        g[9] += ad[:2]; g[10] += ad[2:]
        g[11] += ['v_add_u32 v%d, s%d, v%d' % (vRK0, sRK, cK0)]; g[12] += ['v_add_u32 v%d, s%d, v%d' % (vRK1, sRK, cK1)]
        if loop: g[13] += ['s_sub_u32 s%d, s%d, 1' % (sCNT, sCNT)]
        for f in range(8): g[16 + f] += v_reads(f)
        g[15] += [('NEED', lambda t, j=j: t[0] == 'dma' and t[1] <= j + 12), 's_barrier']
        for sd in range(8): g[24 + sd].append(k_read(sd))
        pack(g, softmax(1), 2, 15)
        g[7].append('s_waitcnt lgkmcnt(0)')
        pack(g, softmax(0), 18, 31)
        if loop: g[31].append('s_cmp_lg_u32 s%d, 0' % sCNT)
        interleave(q, mf, g)
        if loop:
            q('s_cbranch_scc0 %s' % L2e)
            q('s_cmp_lg_u32 s%d, s%d' % (sCNT, sPKN)); q('s_cbranch_scc1 %s' % L2)
            q('s_branch %s' % Lpk)
            q(L2e + ':')
        return q
    segs.append(('once', p2(0, first=True)))
    segs.append(('loop', 14, lambda it: p2(it + 1, loop=True)))
    segs.append(('once', p2(15, last=True)))

    e = Seq()
    stamp(e, 4)
    e('s_lshl_b32 s%d, s%d, 14' % (sT0, sHEAD))
    for tg in range(2):
        la = LA + 2 * tg
        e('v_add_f32 v%d, v%d, v%d' % (la, la, la + 1)); e('v_mov_b32 v%d, v%d' % (la + 1, la))
        e('v_permlane32_swap_b32 v%d, v%d' % (la, la + 1)); e('v_add_f32 v%d, v%d, v%d' % (la, la, la + 1))
        e('v_rcp_f32 v%d, v%d' % (TM + 2 * tg, la))
    n = 0
    for t in range(4):
        for tg in range(2):
            for c in range(2):
                src = ACC(tg, t) + 8 * c
                dst = S_ + 4 * (n & 7); n += 1
                for q in range(4):
                    e('v_pk_mul_f32 %s, %s, %s op_sel_hi:[1,0]' % (v(src + 2 * q, 2), v(src + 2 * q, 2), v(TM + 2 * tg, 2)))
                for q in range(4):
                    e('v_cvt_pk_bf16_f32 v%d, v%d, v%d' % (dst + q, src + 2 * q, src + 2 * q + 1))
                e('buffer_store_dwordx4 %s, v%d, %s, s%d offen offset:%d%s' % (v(dst, 4), vO, s(sOB, 4), sT0, tg * 2048 + c * 512, OMOD))
        if t < 3: e('s_add_u32 s%d, s%d, 4096' % (sT0, sT0))
    e('s_mov_b32 s%d, %s' % (sT1, f32(2.0 ** 64)))
    e('v_cmp_lt_f32 vcc, v%d, s%d' % (LA, sT1)); e('v_cndmask_b32 v%d, 1, 0, vcc' % TM)
    e('v_cmp_lt_f32 vcc, v%d, s%d' % (LA + 2, sT1)); e('v_cndmask_b32 v%d, 1, v%d, vcc' % (TM, TM))
    e('v_cmp_ne_u32 vcc, 0, v%d' % TM); e('s_cmp_lg_u64 vcc, 0'); e('s_cselect_b32 s%d, 1, 0' % sT1)
    e('s_lshl_b32 s%d, s%d, 2' % (sT0, sW)); e('s_add_u32 s%d, s%d, %d' % (sT0, sT0, FLAGOFF))
    e('v_mov_b32 v%d, s%d' % (TM, sT0)); e('v_mov_b32 v%d, s%d' % (TM + 1, sT1)); e('ds_write_b32 v%d, v%d' % (TM, TM + 1))
    e('v_mov_b32 v%d, %d' % (TM + 2, FLAGOFF))
    e('s_waitcnt lgkmcnt(0)'); e('s_barrier')
    e('ds_read_b128 %s, v%d' % (v(TM + 4, 4), TM + 2))
    e('v_or_b32 v%d, v%d, v%d' % (TM, TM + 4, TM + 5)); e('v_or3_b32 v%d, v%d, v%d, v%d' % (TM, TM, TM + 6, TM + 7))
    e('v_readfirstlane_b32 s%d, v%d' % (sT1, TM))
    if prof:
        stamp(e, 5); e('s_waitcnt vmcnt(0)'); stamp(e, 6); e('s_memrealtime s[78:79]'); e('s_waitcnt lgkmcnt(0)')
        e('s_add_u32 s80, s80, %d' % PROF); e('s_addc_u32 s81, s81, 0'); e('s_mov_b32 s82, 0x100000'); e('s_mov_b32 s83, 0x00020000')
        e('s_lshl_b32 s84, s2, 2'); e('s_add_u32 s84, s84, s%d' % sW); e('s_lshl_b32 s84, s84, 6')
        for i in range(10): e('v_mov_b32 v%d, s%d' % (i, 60 + 2 * i))
        e('v_mov_b32 v10, s%d' % sT1); e('v_mov_b32 v11, s%d' % sFB); e('v_mov_b32 v12, 0')
        for i in range(3): e('buffer_store_dwordx4 %s, v12, s[80:83], s84 offen offset:%d' % (v(4 * i, 4), 16 * i))
    e('s_cmp_eq_u32 s%d, 0' % sT1); e('s_cbranch_scc1 %s' % Lend)
    e('s_cmp_lg_u32 s%d, 0' % sFB); e('s_cbranch_scc1 %s' % Lend)
    e('s_mov_b32 s%d, 1' % sFB)
    e('s_waitcnt vmcnt(0) lgkmcnt(0)')
    e('s_mov_b32 s%d, 0' % sFOFF); e('s_mov_b32 s%d, 16' % sCNT); e('s_mov_b32 m0, s%d' % sW44)
    e('v_mov_b32 v%d, 0xff800000' % TM); e('v_mov_b32 v%d, 0xff800000' % (TM + 2))
    e('v_mov_b32 v%d, v%d' % (vRK0, cK0)); e('v_mov_b32 v%d, v%d' % (vRK1, cK1))
    e(Lmx + ':')
    e('s_barrier')
    for i in range(2): e(*fill_dma(i, 0))
    e('s_add_u32 s%d, s%d, 8192' % (sFOFF, sFOFF))
    e('s_waitcnt vmcnt(0)'); e('s_barrier')
    for sd in range(8): e(k_read(sd))
    e('s_waitcnt lgkmcnt(0)')
    for tg in range(2):
        for x in s_mfma(tg, True): e(x)
    for tg in range(2):
        sb = S_ + 16 * tg; tm = TM + 2 * tg
        for r_ in range(0, 16, 2): e('v_max3_f32 v%d, v%d, v%d, v%d' % (tm, tm, sb + r_, sb + r_ + 1))
    e('s_sub_u32 s%d, s%d, 1' % (sCNT, sCNT)); e('s_cmp_lg_u32 s%d, 0' % sCNT); e('s_cbranch_scc1 %s' % Lmx)
    for tg in range(2):
        tm = TM + 2 * tg
        e('v_mov_b32 v%d, v%d' % (tm + 1, tm)); e('v_permlane32_swap_b32 v%d, v%d' % (tm, tm + 1)); e('v_max_f32 v%d, v%d, v%d' % (tm, tm, tm + 1))
        e('v_sub_f32 v%d, 0, v%d' % (tm, tm))
        for r_ in range(16): e('v_mov_b32 v%d, v%d' % (NM + 16 * tg + r_, tm))
    e('s_barrier')
    e('s_mov_b32 s%d, 0' % sFOFF); e('s_mov_b32 s%d, 0' % sFILL); e('s_mov_b32 s%d, 0' % sRD)
    for u in range(6):
        for x in fill_begin(): e(x)
        for i in range(4): e(*fill_dma(i, 0))
        for x in fill_end(): e(x)
    e('s_waitcnt vmcnt(0)'); e('s_barrier')
    e('s_branch %s' % Lent)
    e(Lpk + ':')
    e('s_cmp_eq_u32 s%d, %d' % (sCNT, PKS)); e('s_cbranch_scc1 %s' % Lps)
    for j in range(5):
        e('v_mul_u32_u24 v253, 6554, v252'); e('v_lshrrev_b32 v253, 16, v253'); e('v_mul_u32_u24 v253, 1120, v253'); e('v_lshl_add_u32 v%d, v252, 4, v253' % (253 + (j & 1)))
        e('buffer_load_dwordx4 %s, v%d, %s, 0 offen' % (a(aPK + 4 * j, 4), 253 + (j & 1), s(sPS3, 4)))
        e('buffer_load_dwordx4 %s, v%d, %s, 0 offen' % (a(aPK + 20 + 4 * j, 4), 253 + (j & 1), s(sPS5, 4)))
        if j < 4: e('v_add_u32 v252, 64, v252')
    e('s_mov_b32 s%d, %d' % (sPKN, PKS))
    e('s_branch %s' % L2)
    e(Lps + ':')
    e.forget()
    for j in range(5):
        for d, b in ((sPD3, 0), (sPD5, 20)):
            e('buffer_store_dwordx4 %s, v255, %s, %s offen offset:%d%s' % (a(aPK + b + 4 * j, 4), s(d, 4), 's%d' % sP4 if j == 4 else '0', (j & 3) * 1024, PKMOD))
    e('s_mov_b32 s%d, 0' % sPKN)
    e('s_branch %s' % L2)
    e(Lend + ':'); e('s_endpgm')
    segs.append(('once', e))
    assemble(k, segs)
    return k
```

```python
from asmlib import *
from layout import *
from sched import *
from k1 import f32
MF = 'v_mfma_f32_16x16x32_bf16'
PROF = 0x3000000
import os
EXP = os.environ.get('EXP', '')
SMOD = os.environ.get('SMOD', ' sc1')

CFG = {
    'oproj': dict(NG=5, TG=2, E=2, nst=32, pitch=160, K=4096, w=WP3, bsrc=OB,  nks=128, omap=True,  grid=256),
    'mlp2':  dict(NG=5, TG=2, E=2, nst=14, pitch=160, K=1728, w=WP5, bsrc=HID, nks=54,  omap=False, grid=256),
    'mlp1':  dict(NG=8, TG=4, E=1, nst=10, pitch=3456, K=640,  w='w1', bsrc=XG,  nks=20,  omap=False, grid=224),
}
def _cfg(kind, key, dflt): return int(os.environ.get(kind + '_' + key, dflt))
for _k, _d in (('oproj', (6, 4, 6)), ('mlp2', (6, 4, 6)), ('mlp1', (4, 3, 6))):
    CFG[_k]['UB'], CFG[_k]['DB'], CFG[_k]['UL'] = [_cfg(_k, n, x) for n, x in zip(('UB', 'DB', 'UL'), _d)]
def lds_size(kind):
    c = CFG[kind]
    ring = c['UL'] * 64 * c['E'] * c['NG'] * 32
    return ring + 4096 + (0 if kind == 'mlp1' else 4 * (c['TG'] // 2) * c['NG'] * 1024)

def mk_srd(p, dst, src, soff, size):
    if soff is None:
        if dst != src: p('s_mov_b32 s%d, s%d' % (dst, src)); p('s_mov_b32 s%d, s%d' % (dst + 1, src + 1))
    else:
        p('s_add_u32 s%d, s%d, %s' % (dst, src, soff)); p('s_addc_u32 s%d, s%d, 0' % (dst + 1, src + 1))
    p('s_mov_b32 s%d, %s' % (dst + 2, size)); p('s_mov_b32 s%d, 0x00020000' % (dst + 3))

def gen(kind, prof=False, pidx=0):
    c = CFG[kind]
    NG, TG, E, nst, pitch, KK, nks = c['NG'], c['TG'], c['E'], c['nst'], c['pitch'], c['K'], c['nks']
    RB = NG * 32; RS = 64 * E; SB = RS * RB; WQ = SB // 4; ND = WQ // 1024
    H2 = TG // 2
    U, D, UL = c['UB'], c['DB'], c['UL']; DL = UL - 1
    NT = NG * TG
    TB = UL * SB
    RED = TB + 4096
    def ACC(ng, t): return (t * NG + ng) * 4
    vb = NT * 4
    BR = vb; vb += U * E * TG * 4
    def BF(sl, e, t): return BR + ((sl * E + e) * TG + t) * 4
    AO = vb; vb += E * NG * 4
    def AF(e, ng): return AO + (e * NG + ng) * 4
    vB = vb; vb += 2 * E
    vA = vb; vb += 2 if NG == 5 else 8
    SPB = 3 if NG == 5 else 4
    vW, vL, vG, vK, t0, t1, t2, vID = range(vb, vb + 8); vb += 8
    vR, vC = AO, AO + 1
    if kind == 'mlp1':
        vE = BR; vT = BR + 64
    else:
        vT = vb; vb += 16; vE = vb; vb += 50
    assert vb <= 256, vb
    k = K(kind + '_kernel', vgprs=256, agprs=0)
    sWS, sWT, sBS, sX, sMD, sO1, sO2, sO3, sU1, sU2 = 4, 8, 12, 16, 20, 24, 28, 32, 36, 40
    sW, sTH, sKH, sTT, sNT, sWO, sBO, sWQ, sCNT, sT0, sT1, sT2, sT3 = range(44, 57)
    sG = 60
    Lend, Lp, Lld = k.label('end'), k.label('loop'), k.label('ld')
    def stamp(q, i):
        if prof: q('s_memtime s[%d:%d]' % (84 + 2 * i, 85 + 2 * i))
    segs = []
    p = Seq()
    p('s_cmp_ge_u32 s2, %d' % c['grid']); p('s_cbranch_scc1 %s' % Lend)
    stamp(p, 0)
    if prof: p('s_memrealtime s[96:97]')
    p('s_load_dwordx2 s[%d:%d], s[0:1], %d' % (sWS, sWS + 1, KA['ws']))
    if kind == 'oproj':
        p('s_load_dwordx2 s[%d:%d], s[0:1], %d' % (sX, sX + 1, KA['x'])); p('s_load_dwordx2 s[%d:%d], s[0:1], %d' % (sU1, sU1 + 1, KA['w1']))
    elif kind == 'mlp2':
        p('s_load_dwordx2 s[%d:%d], s[0:1], %d' % (sX, sX + 1, KA['b2'])); p('s_load_dwordx2 s[%d:%d], s[0:1], %d' % (sO1, sO1 + 1, KA['out']))
    else:
        p('s_load_dwordx4 s[%d:%d], s[0:1], %d' % (sWT, sWT + 3, KA['w1']))
    p('v_lshrrev_b32 v%d, 6, v0' % vW); p('v_and_b32 v%d, 63, v0' % vL); p('v_and_b32 v%d, 255, v0' % vID)
    p('v_readfirstlane_b32 s%d, v%d' % (sW, vW))
    p('v_and_b32 v%d, 3, v%d' % (vW, vW))
    p('s_and_b32 s%d, s2, 7' % sT0); p('s_lshr_b32 s%d, s2, 3' % sT1)
    if kind != 'mlp1':
        p('s_lshr_b32 s%d, s%d, 1' % (sTT, sT0)); p('s_lshl_b32 s%d, s%d, 3' % (sTT, sTT)); p('s_and_b32 s%d, s%d, 7' % (sT2, sT1)); p('s_add_u32 s%d, s%d, s%d' % (sTT, sTT, sT2))
        p('s_and_b32 s%d, s%d, 1' % (sNT, sT0)); p('s_lshl_b32 s%d, s%d, 2' % (sNT, sNT)); p('s_lshr_b32 s%d, s%d, 3' % (sT2, sT1)); p('s_add_u32 s%d, s%d, s%d' % (sNT, sNT, sT2))
    else:
        p('s_mul_i32 s%d, s%d, 37' % (sT2, sT1)); p('s_lshr_b32 s%d, s%d, 8' % (sT2, sT2))
        p('s_lshr_b32 s%d, s%d, 1' % (sTT, sT0)); p('s_lshl_b32 s%d, s%d, 2' % (sTT, sTT)); p('s_add_u32 s%d, s%d, s%d' % (sTT, sTT, sT2))
        p('s_mul_i32 s%d, s%d, 7' % (sT2, sT2)); p('s_sub_u32 s%d, s%d, s%d' % (sNT, sT1, sT2))
        p('s_and_b32 s%d, s%d, 1' % (sT2, sT0)); p('s_mul_i32 s%d, s%d, 7' % (sT2, sT2)); p('s_add_u32 s%d, s%d, s%d' % (sNT, sNT, sT2))
    if 'samet' in EXP and kind != 'mlp1': p('s_and_b32 s%d, s%d, 24' % (sTT, sTT))
    if 'samen' in EXP and kind != 'mlp1': p('s_and_b32 s%d, s%d, 4' % (sNT, sNT))
    p('s_cmp_ge_u32 s%d, 4' % sW); p('s_cbranch_scc1 %s' % Lld)
    p('s_lshr_b32 s%d, s%d, 1' % (sTH, sW))
    p('v_lshrrev_b32 v%d, 1, v%d' % (t0, vW)); p('v_and_b32 v%d, 1, v%d' % (t1, vW))
    if TG == 2:
        p('v_lshlrev_b32 v%d, 11, v%d' % (t0, t0)); p('v_lshl_add_u32 v%d, v%d, 4, v%d' % (t0, vL, t0))
        p('v_mul_u32_u24 v%d, %d, v%d' % (t2, E * 4096, t1)); p('v_add_u32 v%d, v%d, v%d' % (t0, t0, t2))
        p('v_lshl_add_u32 v%d, v%d, 10, v%d' % (vB, t1, t0)); p('v_xor_b32 v%d, 1024, v%d' % (vB + 1, vB))
        p('v_add_u32 v%d, 4096, v%d' % (vB + 2, vB)); p('v_add_u32 v%d, 4096, v%d' % (vB + 3, vB + 1))
    else:
        p('v_mul_u32_u24 v%d, %d, v%d' % (t0, nks * 4096, t0)); p('v_lshl_add_u32 v%d, v%d, 4, v%d' % (t0, vL, t0))
        p('v_lshl_add_u32 v%d, v%d, 12, v%d' % (t0, t1, t0))
        p('v_lshl_add_u32 v%d, v%d, 11, v%d' % (vB, t1, t0)); p('v_xor_b32 v%d, 2048, v%d' % (vB + 1, vB))
    tb = nks * 4096 * (2 if kind == 'mlp1' else 1)
    p('s_mul_i32 s%d, s%d, %d' % (sT0, sTT, tb)); p('s_add_u32 s%d, s%d, %d' % (sT0, sT0, c['bsrc']))
    p('s_mov_b32 s%d, 0' % sBO)
    p('s_waitcnt lgkmcnt(0)')
    mk_srd(p, sBS, sWS, 's%d' % sT0, tb)
    def bld(st, e, t):
        half = t // H2; off = (t % H2) * 1024
        return ('buffer_load_dwordx4 %s, v%d, %s, s%d offen offset:%d' % (v(BF(st % U, e, t), 4), vB + 2 * e + half, s(sBS, 4), sBO, off), None)
    def bstage(st): return [bld(st, e, t) for e in range(E) for t in range(TG)] + ['s_add_u32 s%d, s%d, %d' % (sBO, sBO, 2 * E * 4096)]
    for st in range(D):
        for x in bstage(st): p(*x) if isinstance(x, tuple) else p(x)
    p('v_lshrrev_b32 v%d, 4, v%d' % (vG, vL)); p('v_bfe_u32 v%d, v%d, 2, 2' % (vR, vL)); p('v_and_b32 v%d, 3, v%d' % (vC, vL)); p('v_and_b32 v%d, 15, v%d' % (vK, vL))
    p('v_and_b32 v%d, 1, v%d' % (t1, vW))
    if c['omap']:
        p('v_lshrrev_b32 v%d, 1, v%d' % (t0, vG)); p('v_lshlrev_b32 v%d, 4, v%d' % (t0, t0)); p('v_and_b32 v%d, 1, v%d' % (t2, vG)); p('v_lshl_add_u32 v%d, v%d, 2, v%d' % (t0, t2, t0))
        d2 = 8
    else:
        p('v_lshlrev_b32 v%d, 2, v%d' % (t0, vG)); d2 = 16
    p('v_add_u32 v%d, v%d, v%d' % (t0, t0, vR))
    p('v_mul_u32_u24 v%d, %d, v%d' % (t1, 32 * E, t1)); p('v_add_u32 v%d, v%d, v%d' % (t1, t1, t0))
    p('v_mul_u32_u24 v%d, %d, v%d' % (t1, RB, t1)); p('v_lshl_add_u32 v%d, v%d, 3, v%d' % (t1, vC, t1))
    if NG == 5:
        for b in range(2): p('v_add_u32 v%d, %d, v%d' % (vA + b, SPB * b * SB, t1))
        def a_reads(st, e, ng):
            sl = st % UL
            return ['ds_read_b64_tr_b16 %s, v%d offset:%d' % (v(AF(e, ng) + 2 * h, 2), vA + sl // SPB, (sl % SPB) * SB + (e * 32 + h * d2) * RB + ng * 32) for h in range(2)]
    else:
        p('v_and_b32 v%d, 7, v%d' % (t0, t0))
        for ng in range(8):
            p('v_xor_b32 v%d, %d, v%d' % (t2, ng, t0)); p('v_lshl_add_u32 v%d, v%d, 5, v%d' % (vA + ng, t2, t1))
        def a_reads(st, e, ng):
            sl = st % UL; pre = []
            if sl == SPB: pre = ['v_add_u32 v%d, %d, v%d' % (vA + ng, SPB * SB, vA + ng)]
            if sl == 0 and st > 0 and UL > SPB: pre = ['v_subrev_u32 v%d, %d, v%d' % (vA + ng, SPB * SB, vA + ng)]
            return pre + ['ds_read_b64_tr_b16 %s, v%d offset:%d' % (v(AF(e, ng) + 2 * h, 2), vA + ng, (sl % SPB) * SB + h * d2 * RB) for h in range(2)]
    sd = []
    eX, eA, eB = vE, vE + 10, vE + 30
    if kind in ('oproj', 'mlp2'):
        mk_srd(p, sMD, sWS, None, 6 * 2560)
        vRM, vX1, vMD, vB2 = vT, vT + 1, vT + 12, vT + 13
        p('v_lshlrev_b32 v%d, 4, v%d' % (vMD, vG)); p('s_mul_i32 s%d, s%d, 320' % (sT0, sNT))
        rows = (2, 4) if kind == 'oproj' else (5,)
        for q, row in enumerate(rows):
            p('s_add_u32 s%d, s%d, %d' % (sG + q, sT0, row * 2560))
            for ng in range(5):
                sd.append('buffer_load_dwordx4 %s, v%d, %s, s%d offen offset:%d' % (v((eA, eB)[q] + 4 * ng, 4), vMD, s(sMD, 4), sG + q, ng * 64))
        p('v_lshl_add_u32 v%d, v%d, 4, v%d' % (t0, vW, vK)); p('v_mul_u32_u24 v%d, 1280, v%d' % (t0, t0)); p('v_lshl_add_u32 v%d, v%d, 3, v%d' % (vRM, vG, t0))
        p('s_mul_i32 s%d, s%d, %d' % (sT2, sTT, 64 * 1280)); p('s_mul_i32 s%d, s%d, 160' % (sT3, sNT)); p('s_add_u32 s%d, s%d, s%d' % (sT2, sT2, sT3))
        p('v_mul_u32_u24 v%d, 2560, v%d' % (t0, vW)); p('v_lshl_add_u32 v%d, v%d, 4, v%d' % (vX1, vL, t0)); p('v_lshl_add_u32 v%d, v%d, 3, v%d' % (vX1 + 1, vL, t0))
        p('s_lshl_b32 s%d, s%d, 3' % (sT0, sTT)); p('s_add_u32 s%d, s%d, s%d' % (sT0, sT0, sNT)); p('s_mul_i32 s%d, s%d, 10240' % (sT0, sT0)); p('s_add_u32 s%d, s%d, %d' % (sT0, sT0, X1))
        mk_srd(p, sO2, sWS, 's%d' % sT0, 10240)
        if kind == 'oproj':
            mk_srd(p, sX, sX, 's%d' % sT2, 64 * 1280)
            for ng in range(5): sd.append('buffer_load_dwordx2 %s, v%d, %s, 0 offen offset:%d' % (v(eX + 2 * ng, 2), vRM, s(sX, 4), ng * 32))
            p('s_mul_i32 s%d, s%d, %d' % (sT0, sTT, 20 * 4096)); p('s_add_u32 s%d, s%d, %d' % (sT0, sT0, XG))
            mk_srd(p, sO1, sWS, 's%d' % sT0, 20 * 4096)
            p('s_lshl_b32 s%d, s%d, 14' % (sT0, sNT)); p('s_lshl_b32 s%d, s%d, 9' % (sT1, sTT)); p('s_add_u32 s%d, s%d, s%d' % (sT0, sT0, sT1)); p('s_add_u32 s%d, s%d, %d' % (sT0, sT0, STATS))
            mk_srd(p, sO3, sWS, 's%d' % sT0, 512)
        else:
            sd.append('buffer_load_dwordx4 %s, v%d, %s, 0 offen' % (v(eX, 4), vX1, s(sO2, 4)))
            sd.append('buffer_load_dwordx4 %s, v%d, %s, 0 offen offset:1024' % (v(eX + 4, 4), vX1, s(sO2, 4)))
            sd.append('buffer_load_dwordx2 %s, v%d, %s, 0 offen offset:2048' % (v(eX + 8, 2), vX1 + 1, s(sO2, 4)))
            mk_srd(p, sX, sX, 's%d' % sT3, 160)
            p('v_lshlrev_b32 v%d, 3, v%d' % (vB2, vG))
            for ng in range(5): sd.append('buffer_load_dwordx2 %s, v%d, %s, 0 offen offset:%d' % (v(eB + 2 * ng, 2), vB2, s(sX, 4), ng * 32))
            mk_srd(p, sO1, sO1, 's%d' % sT2, 64 * 1280)
    else:
        p('s_lshl_b32 s%d, s%d, 1' % (sT0, sTT)); p('s_add_u32 s%d, s%d, s%d' % (sT0, sT0, sTH))
        p('s_mul_i32 s%d, s%d, %d' % (sT0, sT0, 54 * 4096)); p('s_add_u32 s%d, s%d, %d' % (sT0, sT0, HID))
        mk_srd(p, sO1, sWS, 's%d' % sT0, 54 * 4096)
    stamp(p, 1)
    p('s_barrier')
    stamp(p, 2)
    if prof: p('s_waitcnt lgkmcnt(0)')
    for e in range(E):
        for ng in range(NG):
            for x in a_reads(0, e, ng): p(x)
    segs.append(('once', p))

    def stage(q, st, extra=()):
        if st < nst - 1 and 'xbar' not in EXP: q('s_barrier')
        if 'nomf' in EXP: q.touch(v(BF(st % U, 0, 0), 4 * E * TG))
        mf = []; g = []
        for e in range(E):
            for ng in range(NG):
                for t in range(TG):
                    d = v(ACC(ng, t), 4)
                    mf.append('%s %s, %s, %s, %s' % (MF, d, v(AF(e, ng), 4), v(BF(st % U, e, t), 4), '0' if (st == 0 and e == 0) else d))
                    g.append(a_reads(st + 1, e, ng) if (t == TG - 1 and st < nst - 1) else [])
        ops = (bstage(st + D) if st + D < nst else []) + list(extra)
        free = [i for i in range(len(mf)) if i % TG != TG - 1]
        for n, o in enumerate(ops): g[free[n * len(free) // len(ops)]].append(o)
        if 'nods' in EXP: g = [[x for x in gg if not (isinstance(x, str) and x.startswith('ds_'))] for gg in g]
        if 'nob' in EXP: g = [[x for x in gg if not (isinstance(x, tuple) and x[0].startswith('buffer'))] for gg in g]
        if 'nomf' in EXP: mf = ['s_nop 0' for _ in mf]
        interleave(q, mf, g)
    nsd = (len(sd) + 2) // 3
    def sdx(st, s0): return sd[(st - s0) * nsd:(st - s0 + 1) * nsd] if s0 <= st < s0 + 3 else []
    if kind == 'oproj':
        import math
        PER = U * UL // math.gcd(U, UL)
        NIT = (nst - 1 - max(D, 4)) // PER
        HD = nst - max(D, 4) - NIT * PER
        q = Seq()
        for st in range(HD): stage(q, st, ['s_mov_b32 s%d, %d' % (sCNT, NIT)] if st == 0 else [])
        segs.append(('once', q))
        def body(it):
            q = Seq(); q(Lp + ':')
            for u_ in range(PER): stage(q, HD + PER * it + u_, ['s_sub_u32 s%d, s%d, 1' % (sCNT, sCNT)] if u_ == PER - 1 else [])
            q('s_cmp_lg_u32 s%d, 0' % sCNT); q('s_cbranch_scc1 %s' % Lp)
            return q
        segs.append(('loop', NIT, body))
        q = Seq()
        for st in range(HD + NIT * PER, nst): stage(q, st, sdx(st, nst - 4))
        segs.append(('once', q))
    else:
        q = Seq()
        for st in range(nst): stage(q, st, sdx(st, nst - 4))
        segs.append(('once', q))

    e_ = Seq()
    stamp(e_, 3)
    if prof: e_('s_waitcnt lgkmcnt(0)')
    RW = H2 * NG * 1024
    if kind == 'mlp1':
        assert RW == SB and UL >= 6 and nst % 2 == 0 and UL % 2 == 0
        s0 = nst % UL
        e_('v_add_u32 v%d, %d, v%d' % (t0, s0, vW)); e_('v_subrev_u32 v%d, %d, v%d' % (t1, UL, t0)); e_('v_min_u32 v%d, v%d, v%d' % (t0, t0, t1))
        e_('v_xor_b32 v%d, 1, v%d' % (t1, t0))
        e_('v_mul_u32_u24 v%d, %d, v%d' % (t0, RW, t0)); e_('v_lshl_add_u32 v%d, v%d, 4, v%d' % (t0, vL, t0))
        e_('v_mul_u32_u24 v%d, %d, v%d' % (t1, RW, t1)); e_('v_lshl_add_u32 v%d, v%d, 4, v%d' % (t1, vL, t1))
    else:
        e_('v_mul_u32_u24 v%d, %d, v%d' % (t0, RW, vW)); e_('v_lshl_add_u32 v%d, v%d, 4, v%d' % (t0, vL, t0)); e_('v_add_u32 v%d, %d, v%d' % (t0, RED, t0))
        e_('v_xor_b32 v%d, 1, v%d' % (t1, vW)); e_('v_mul_u32_u24 v%d, %d, v%d' % (t1, RW, t1)); e_('v_lshl_add_u32 v%d, v%d, 4, v%d' % (t1, vL, t1)); e_('v_add_u32 v%d, %d, v%d' % (t1, RED, t1))
    n = 0
    for t in range(H2, TG):
        for ng in range(NG):
            e_('ds_write_b128 v%d, %s offset:%d' % (t0, v(ACC(ng, t), 4), n * 1024)); n += 1
    if kind == 'mlp1':
        st_ = vT; tp = vT + 4; uvb = vE
        e_('v_lshl_add_u32 v%d, v%d, 5, v%d' % (t0, vW, vK)); e_('v_lshlrev_b32 v%d, 3, v%d' % (t0, t0)); e_('v_add_u32 v%d, %d, v%d' % (t0, TB, t0))
        e_('ds_read_b64 %s, v%d' % (v(st_, 2), t0)); e_('ds_read_b64 %s, v%d offset:128' % (v(st_ + 2, 2), t0))
        e_('v_lshlrev_b32 v%d, 4, v%d' % (t0, vG)); e_('v_add_u32 v%d, %d, v%d' % (t0, TB + 1024, t0))
        for ng in range(8):
            e_('ds_read_b128 %s, v%d offset:%d' % (v(uvb + 8 * ng, 4), t0, ng * 64)); e_('ds_read_b128 %s, v%d offset:%d' % (v(uvb + 8 * ng + 4, 4), t0, 512 + ng * 64))
    e_('s_waitcnt lgkmcnt(0)'); e_('s_barrier')
    n = 0
    for t in range(H2, TG):
        for ng in range(NG):
            e_('ds_read_b128 %s, v%d offset:%d' % (v(ACC(ng, t), 4), t1, n * 1024)); n += 1
    def addp(t, ng):
        return ['v_pk_add_f32 %s, %s, %s' % (v(ACC(ng, t) + 2 * h, 2), v(ACC(ng, t) + 2 * h, 2), v(ACC(ng, t + H2) + 2 * h, 2)) for h in range(2)]
    if kind == 'oproj':
        sm = vT + 4
        for j in range(4): e_('v_mov_b32 v%d, 0' % (sm + j))
        e_('v_lshl_add_u32 v%d, v%d, 10, 0' % (t2, vW)); e_('v_lshl_add_u32 v%d, v%d, 4, v%d' % (t2, vL, t2))
        e_('s_mul_i32 s%d, s%d, 5' % (sT0, sNT))
        for ng in range(5):
            ac = ACC(ng, 0); xr = vT + 8
            for h in range(2):
                e_('v_lshlrev_b32 v%d, 16, v%d' % (xr + 2 * h, eX + 2 * ng + h)); e_('v_and_b32 v%d, 0xffff0000, v%d' % (xr + 2 * h + 1, eX + 2 * ng + h))
            for x in addp(0, ng): e_(x)
            for h in range(2):
                e_('v_pk_fma_f32 %s, %s, %s, %s' % (v(ac + 2 * h, 2), v(ac + 2 * h, 2), v(eA + 4 * ng + 2 * h, 2), v(xr + 2 * h, 2)))
            for h in range(2):
                e_('v_cvt_pk_bf16_f32 v%d, v%d, v%d' % (eX + 2 * ng + h, ac + 2 * h, ac + 2 * h + 1))
            for h in range(2):
                e_('v_lshlrev_b32 v%d, 16, v%d' % (ac + 2 * h, eX + 2 * ng + h)); e_('v_and_b32 v%d, 0xffff0000, v%d' % (ac + 2 * h + 1, eX + 2 * ng + h))
            for h in range(2):
                e_('v_pk_add_f32 %s, %s, %s' % (v(sm, 2), v(sm, 2), v(ac + 2 * h, 2)))
                e_('v_pk_fma_f32 %s, %s, %s, %s' % (v(sm + 2, 2), v(ac + 2 * h, 2), v(ac + 2 * h, 2), v(sm + 2, 2)))
                e_('v_pk_mul_f32 %s, %s, %s' % (v(ac + 2 * h, 2), v(ac + 2 * h, 2), v(eB + 4 * ng + 2 * h, 2)))
            for h in range(2):
                e_('v_cvt_pk_bf16_f32 v%d, v%d, v%d' % (ac + h, ac + 2 * h, ac + 2 * h + 1))
            e_('s_add_u32 s%d, s%d, %d' % (sT1, sT0, ng)); e_('s_lshr_b32 s%d, s%d, 1' % (sT2, sT1)); e_('s_lshl_b32 s%d, s%d, 12' % (sT2, sT2))
            e_('s_and_b32 s%d, s%d, 1' % (sT1, sT1)); e_('s_lshl_b32 s%d, s%d, 3' % (sT1, sT1)); e_('s_add_u32 s%d, s%d, s%d' % (sT1, sT1, sT2))
            e_('buffer_store_dwordx2 %s, v%d, %s, s%d offen%s' % (v(ac, 2), t2, s(sO1, 4), sT1, SMOD))
            if ng == 1: e_('buffer_store_dwordx4 %s, v%d, %s, 0 offen%s' % (v(eX, 4), vX1, s(sO2, 4), SMOD))
            if ng == 3: e_('buffer_store_dwordx4 %s, v%d, %s, 0 offen offset:1024%s' % (v(eX + 4, 4), vX1, s(sO2, 4), SMOD))
            if ng == 4: e_('buffer_store_dwordx2 %s, v%d, %s, 0 offen offset:2048%s' % (v(eX + 8, 2), vX1 + 1, s(sO2, 4), SMOD))
        e_('v_add_f32 v%d, v%d, v%d' % (sm, sm, sm + 1)); e_('v_add_f32 v%d, v%d, v%d' % (sm + 1, sm + 2, sm + 3))
        for sw in ('v_permlane32_swap_b32', 'v_permlane16_swap_b32'):
            e_('v_mov_b32 v%d, v%d' % (sm + 2, sm)); e_('v_mov_b32 v%d, v%d' % (sm + 3, sm + 1))
            e_('%s v%d, v%d' % (sw, sm, sm + 2)); e_('%s v%d, v%d' % (sw, sm + 1, sm + 3))
            e_('v_pk_add_f32 %s, %s, %s' % (v(sm, 2), v(sm, 2), v(sm + 2, 2)))
        e_('v_lshl_add_u32 v%d, v%d, 4, v%d' % (t0, vW, vK)); e_('v_lshlrev_b32 v%d, 3, v%d' % (t0, t0)); e_('v_lshl_add_u32 v%d, v%d, 12, v%d' % (t0, vG, t0))
        e_('buffer_store_dwordx2 %s, v%d, %s, 0 offen%s' % (v(sm, 2), t0, s(sO3, 4), SMOD))
    elif kind == 'mlp2':
        for ng in range(5):
            ac = ACC(ng, 0); xr = vT + 4; br = vT + 8
            for h in range(2):
                e_('v_lshlrev_b32 v%d, 16, v%d' % (xr + 2 * h, eX + 2 * ng + h)); e_('v_and_b32 v%d, 0xffff0000, v%d' % (xr + 2 * h + 1, eX + 2 * ng + h))
                e_('v_lshlrev_b32 v%d, 16, v%d' % (br + 2 * h, eB + 2 * ng + h)); e_('v_and_b32 v%d, 0xffff0000, v%d' % (br + 2 * h + 1, eB + 2 * ng + h))
            for x in addp(0, ng): e_(x)
            for h in range(2):
                e_('v_pk_add_f32 %s, %s, %s' % (v(ac + 2 * h, 2), v(ac + 2 * h, 2), v(br + 2 * h, 2)))
            for h in range(2):
                e_('v_pk_fma_f32 %s, %s, %s, %s' % (v(ac + 2 * h, 2), v(ac + 2 * h, 2), v(eA + 4 * ng + 2 * h, 2), v(xr + 2 * h, 2)))
            for h in range(2):
                e_('v_cvt_pk_bf16_f32 v%d, v%d, v%d' % (ac + h, ac + 2 * h, ac + 2 * h + 1))
            e_('buffer_store_dwordx2 %s, v%d, %s, 0 offen offset:%d%s' % (v(ac, 2), vRM, s(sO1, 4), ng * 32, SMOD))
    else:
        e_('v_and_b32 v%d, 1, v%d' % (t2, vW)); e_('v_lshlrev_b32 v%d, 11, v%d' % (t2, t2)); e_('v_lshl_add_u32 v%d, v%d, 4, v%d' % (t2, vL, t2))
        e_('s_lshl_b32 s%d, s%d, 14' % (sT0, sNT))
        for t in range(2):
            for m in range(4):
                for a_ in range(2):
                    ng = 2 * m + a_; ac = ACC(ng, t)
                    for h in range(2):
                        e_('v_pk_fma_f32 %s, %s, %s, %s op_sel:[0,1,0] op_sel_hi:[1,1,1]' % (v(tp + 2 * h, 2), v(uvb + 8 * ng + 2 * h, 2), v(st_ + 2 * t, 2), v(uvb + 8 * ng + 4 + 2 * h, 2)))
                    for x in addp(t, ng): e_(x)
                    for h in range(2):
                        e_('v_pk_fma_f32 %s, %s, %s, %s op_sel:[0,0,0] op_sel_hi:[1,0,1]' % (v(ac + 2 * h, 2), v(ac + 2 * h, 2), v(st_ + 2 * t, 2), v(tp + 2 * h, 2)))
                    for j in range(4): e_('v_max_f32 v%d, 0, v%d' % (ac + j, ac + j))
                    for h in range(2): e_('v_pk_mul_f32 %s, %s, %s' % (v(ac + 2 * h, 2), v(ac + 2 * h, 2), v(ac + 2 * h, 2)))
                    dst = ACC(2 * m, t + 2)
                    for h in range(2): e_('v_cvt_pk_bf16_f32 v%d, v%d, v%d' % (dst + 2 * a_ + h, ac + 2 * h, ac + 2 * h + 1))
                e_('buffer_store_dwordx4 %s, v%d, %s, s%d offen offset:%d%s' % (v(ACC(2 * m, t + 2), 4), t2, s(sO1, 4), sT0, t * 1024, SMOD))
                e_('s_add_u32 s%d, s%d, %d' % (sT0, sT0, 4096 if m < 3 else -3 * 4096))
    if prof:
        stamp(e_, 4); e_('s_waitcnt vmcnt(0)'); stamp(e_, 5); e_('s_memrealtime s[98:99]'); e_('s_waitcnt lgkmcnt(0)')
        mk_srd(e_, sWS, sWS, PROF + pidx * 65536, 65536)
        e_('s_lshl_b32 s60, s2, 2'); e_('s_add_u32 s60, s60, s%d' % sW); e_('s_lshl_b32 s60, s60, 6')
        for i in range(8): e_('v_mov_b32 v%d, s%d' % (i, 84 + 2 * i))
        e_('v_mov_b32 v12, 0')
        for i in range(2): e_('buffer_store_dwordx4 %s, v12, %s, s60 offen offset:%d' % (v(4 * i, 4), s(sWS, 4), 16 * i))
    e_(Lend + ':'); e_('s_endpgm')
    segs.append(('once', e_))

    l = Seq()
    l(Lld + ':'); l.forget()
    vD = 8; vS = 16; u = 60
    l('s_sub_u32 s%d, s%d, 4' % (sW, sW))
    l('s_mul_i32 s%d, s%d, %d' % (sWQ, sW, WQ))
    if NG == 5:
        l('v_mul_u32_u24 v%d, %d, v%d' % (t0, WQ, vW)); l('v_lshl_add_u32 v%d, v%d, 4, v%d' % (vD, vL, t0))
        l('v_add_u32 v%d, 4096, v%d' % (vD + 4, vD))
        l('s_mul_i32 s%d, s%d, %d' % (sT0, sNT, KK * 160)); l('s_add_u32 s%d, s%d, %d' % (sT0, sT0, c['w']))
    else:
        l('v_lshrrev_b32 v%d, 4, v%d' % (t0, vL)); l('v_and_b32 v%d, 15, v%d' % (t1, vL))
        l('v_lshl_add_u32 v%d, v%d, 4, v%d' % (t2, vW, t0)); l('v_mul_u32_u24 v%d, %d, v%d' % (t2, pitch, t2))
        l('v_lshlrev_b32 v%d, 1, v%d' % (t0, t0)); l('v_xor_b32 v%d, v%d, v%d' % (t1, t1, t0))
        l('v_lshl_add_u32 v%d, v%d, 4, v%d' % (vD, t1, t2))
        l('v_xor_b32 v%d, 8, v%d' % (t1, t1)); l('v_lshl_add_u32 v%d, v%d, 4, v%d' % (vD + 1, t1, t2))
        l('v_add_u32 v%d, %d, v%d' % (vD + 1, 4 * pitch - 1024, vD + 1))
        for j in (2, 3): l('v_add_u32 v%d, %d, v%d' % (vD + j, 8 * pitch - 2048, vD + j - 2))
        l('s_mul_i32 s%d, s%d, %d' % (sT0, sNT, RB)); l('s_sub_u32 s%d, %d, s%d' % (sT1, KK * pitch, sT0))
    l('s_mov_b32 s%d, 0' % sWO)
    l('s_waitcnt lgkmcnt(0)')
    if kind == 'mlp1':
        mk_srd(l, sX, sWT + 2, None, 1728 * 2)
        mk_srd(l, sWT, sWT, 's%d' % sT0, 's%d' % sT1)
    else:
        mk_srd(l, sWT, sWS, 's%d' % sT0, KK * 160)
    def wstage(st):
        sl = st % UL
        l('s_add_u32 m0, s%d, %d' % (sWQ, sl * SB) if sl else 's_mov_b32 m0, s%d' % sWQ)
        for j in range(ND):
            if j == 4: l('s_add_u32 m0, m0, 4096')
            if 'nodma' not in EXP or st < DL:
                l('buffer_load_dwordx4 v%d, %s, s%d offen offset:%d lds' % (vD + (j if NG == 8 else j & 4), s(sWT, 4), sWO, (j & 3) * 1024), ('dma', st))
        l('s_add_u32 s%d, s%d, %d' % (sWO, sWO, RS * pitch))
    for st in range(DL): wstage(st)
    PF = _cfg(kind, 'PF', 0)
    vPF, vPS, vPD = 96, 97, 100
    sPF = sO1
    def touch(st):
        if PF and st < nst:
            l('buffer_load_dword v%d, v%d, %s, 0 offen' % (vPD + st, vPF, s(sPF, 4))); l('v_add_u32 v%d, v%d, v%d' % (vPF, vPF, vPS))
    if PF:
        mk_srd(l, sPF, sWS, None, WP5 + 8 * 1728 * 160)
        l('s_and_b32 s%d, s%d, 3' % (sT0, sNT)); l('s_lshl_b32 s%d, s%d, 12' % (sT0, sT0)); l('s_mul_i32 s%d, s%d, %d' % (sT1, sTT, nks * 4096)); l('s_add_u32 s%d, s%d, s%d' % (sT0, sT0, sT1))
        l('s_lshl_b32 s%d, s%d, 10' % (sT1, sW)); l('s_add_u32 s%d, s%d, s%d' % (sT0, sT0, sT1)); l('s_add_u32 s%d, s%d, %d' % (sT0, sT0, c['bsrc'] + D * 16384))
        l('s_and_b32 s%d, s%d, 7' % (sT1, sTT)); l('s_mul_i32 s%d, s%d, 2560' % (sT1, sT1)); l('s_mul_i32 s%d, s%d, %d' % (sT2, sNT, KK * 160)); l('s_add_u32 s%d, s%d, s%d' % (sT1, sT1, sT2))
        l('s_mul_i32 s%d, s%d, 640' % (sT2, sW)); l('s_add_u32 s%d, s%d, s%d' % (sT1, sT1, sT2)); l('s_add_u32 s%d, s%d, %d' % (sT1, sT1, c['w'] + DL * SB - 1024))
        l('v_mov_b32 v%d, s%d' % (vPF, sT1)); l('v_mov_b32 v%d, s%d' % (t0, sT0)); l('v_mov_b32 v%d, %d' % (vPS, SB)); l('v_mov_b32 v%d, 16384' % t1)
        GR = _cfg(kind, 'GR', 6); l('v_cmp_gt_u32 vcc, %d, v%d' % (1024 >> GR, vL)); l('v_cndmask_b32 v%d, v%d, v%d, vcc' % (vPF, vPF, t0)); l('v_cndmask_b32 v%d, v%d, v%d, vcc' % (vPS, vPS, t1))
        l('v_lshl_add_u32 v%d, v%d, %d, v%d' % (vPF, vL, GR, vPF))
        l('v_mov_b32 v%d, 0x7ffffff0' % t0)
        l('v_cmp_gt_u32 vcc, %d, v%d' % (1664 >> GR, vL)); l('v_cndmask_b32 v%d, v%d, v%d, vcc' % (vPF, t0, vPF)); l('v_cndmask_b32 v%d, 0, v%d, vcc' % (vPS, vPS))
        for st in range(DL, DL + PF): touch(st)
    job = {}
    if kind == 'oproj':
        l('s_lshr_b32 s%d, s2, 3' % sT1); l('s_mul_i32 s%d, s%d, 37' % (sT0, sT1)); l('s_lshr_b32 s%d, s%d, 8' % (sT0, sT0))
        l('s_mul_i32 s%d, s%d, 7' % (sT2, sT0)); l('s_sub_u32 s%d, s%d, s%d' % (sT1, sT1, sT2))
        l('s_and_b32 s%d, s2, 1' % sT2); l('s_mul_i32 s%d, s%d, 7' % (sT2, sT2)); l('s_add_u32 s%d, s%d, s%d' % (sT1, sT1, sT2))
        l('s_and_b32 s%d, s2, 6' % sT2); l('s_lshl_b32 s%d, s%d, 1' % (sT2, sT2)); l('s_add_u32 s%d, s%d, s%d' % (sT0, sT0, sT2))
        l('s_mul_i32 s%d, s%d, 40' % (sT2, sT0)); l('s_mul_i32 s%d, s%d, 10' % (sT3, sW)); l('s_add_u32 s%d, s%d, s%d' % (sT2, sT2, sT3))
        l('s_min_u32 s%d, s%d, 630' % (sT2, sT2))
        l('s_lshl_b32 s%d, s%d, 2' % (sT3, sT2)); l('s_add_u32 s%d, s%d, %d' % (sT3, sT3, MOD + 3 * 2560))
        l('s_load_dwordx8 s[%d:%d], s[%d:%d], s%d' % (sG, sG + 7, sWS, sWS + 1, sT3)); l('s_load_dwordx2 s[%d:%d], s[%d:%d], s%d offset:32' % (sG + 8, sG + 9, sWS, sWS + 1, sT3))
        l('s_load_dwordx8 s[%d:%d], s[%d:%d], s%d offset:2560' % (sG + 12, sG + 19, sWS, sWS + 1, sT3)); l('s_load_dwordx2 s[%d:%d], s[%d:%d], s%d offset:2592' % (sG + 20, sG + 21, sWS, sWS + 1, sT3))
        l('s_cmp_lt_u32 s2, 224'); l('s_cselect_b32 s%d, %d, 0' % (sU1 + 2, 640 * 3456)); l('s_mov_b32 s%d, 0x00020000' % (sU1 + 3))
        l('s_cselect_b32 s%d, 1024, 0' % (sU2 + 2)); l('s_mov_b32 s%d, 0x00020000' % (sU2 + 3))
        l('s_mul_i32 s%d, s%d, %d' % (sT0, sT0, 1792 * 8)); l('s_lshl_b32 s%d, s%d, 10' % (sT3, sT1)); l('s_add_u32 s%d, s%d, s%d' % (sT0, sT0, sT3)); l('s_add_u32 s%d, s%d, %d' % (sT0, sT0, UV))
        l('s_add_u32 s%d, s%d, s%d' % (sU2, sWS, sT0)); l('s_addc_u32 s%d, s%d, 0' % (sU2 + 1, sWS + 1))
        l('s_mul_i32 s%d, s%d, 3456' % (sT2, sT2)); l('s_lshl_b32 s%d, s%d, 8' % (sT1, sT1)); l('s_add_u32 s%d, s%d, s%d' % (sT2, sT2, sT1))
        l('v_lshlrev_b32 v%d, 2, v%d' % (t0, vL))
        def j_load():
            for i in range(10):
                l('buffer_load_dword v%d, v%d, %s, s%d offen' % (vS + i, t0, s(sU1, 4), sT2))
                if i < 9: l('s_add_u32 s%d, s%d, 3456' % (sT2, sT2))
        def j_math():
            for i in range(10):
                l('v_lshlrev_b32 v%d, 16, v%d' % (t0, vS + i)); l('v_and_b32 v%d, 0xffff0000, v%d' % (t1, vS + i))
                sb_, g2_ = sG + i, sG + 12 + i
                op = 'v_fmac_f32' if i else 'v_mul_f32'
                l('%s v%d, s%d, v%d' % (op, u, g2_, t0)); l('%s v%d, s%d, v%d' % (op, u + 1, sb_, t0))
                l('%s v%d, s%d, v%d' % (op, u + 2, g2_, t1)); l('%s v%d, s%d, v%d' % (op, u + 3, sb_, t1))
            l('v_lshlrev_b32 v%d, 4, v%d' % (t0, vID)); l('v_add_u32 v%d, %d, v%d' % (t0, TB, t0)); l('ds_write_b128 v%d, %s' % (t0, v(u, 4)))
            l('v_lshlrev_b32 v%d, 2, v%d' % (t1, vID)); l('v_add_u32 v%d, %d, v%d' % (t0, TB, t1))
            l('s_waitcnt lgkmcnt(0)')
        def j_out():
            for j in range(4): l('ds_read_b32 v%d, v%d offset:%d' % (u + j, t0, 1024 * j))
            l('v_add_f32 v%d, v%d, v%d' % (u, u, u + 1)); l('v_add_f32 v%d, v%d, v%d' % (u + 2, u + 2, u + 3)); l('v_add_f32 v%d, v%d, v%d' % (u, u, u + 2))
            l('buffer_store_dword v%d, v%d, %s, 0 offen%s' % (u, t1, s(sU2, 4), SMOD))
        job = {nst - 4: j_load, nst - 3: j_math, nst - 2: j_out}
    elif kind == 'mlp1':
        l('s_lshr_b32 s%d, s%d, 1' % (sTH, sW))
        l('s_lshl_b32 s%d, s%d, 10' % (sT0, sTT)); l('s_add_u32 s%d, s%d, %d' % (sT0, sT0, STATS))
        l('s_lshl_b32 s%d, s%d, 10' % (sT1, sNT)); l('s_add_u32 s%d, s%d, %d' % (sT1, sT1, UV))
        l('s_cmp_eq_u32 s%d, 0' % sTH)
        l('s_cselect_b32 s%d, s%d, s%d' % (sT0, sT0, sT1))
        l('s_cselect_b32 s%d, %d, %d' % (sU1 + 2, 1, 2)); l('s_mov_b32 s%d, 14336' % sT2); l('s_cselect_b32 s%d, 16384, s%d' % (sT3, sT2))
        l('s_mul_i32 s%d, s%d, %d' % (sU1 + 2, sU1 + 2, 7 * 16384 + 1024))
        l('s_add_u32 s%d, s%d, s%d' % (sU1, sWS, sT0)); l('s_addc_u32 s%d, s%d, 0' % (sU1 + 1, sWS + 1)); l('s_mov_b32 s%d, 0x00020000' % (sU1 + 3))
        l('v_and_b32 v%d, 127, v%d' % (t2, vID)); l('v_lshlrev_b32 v%d, 3, v%d' % (t1, t2)); l('v_lshlrev_b32 v%d, 1, v%d' % (t0, t2))
        l('s_mov_b32 s%d, 0' % sT2); l('s_lshl_b32 s%d, s%d, 8' % (sG, sNT))
        def j_load():
            for i in range(16):
                l('buffer_load_dwordx2 %s, v%d, %s, s%d offen' % (v(vS + 2 * i, 2), t1, s(sU1, 4), sT2))
                if i < 15: l('s_add_u32 s%d, s%d, s%d' % (sT2, sT2, sT3))
            l('buffer_load_ushort v%d, v%d, %s, s%d offen' % (vS + 32, t0, s(sX, 4), sG))
        def j_math():
            for st_ in (8, 4, 2, 1):
                for j in range(st_): l('v_pk_add_f32 %s, %s, %s' % (v(vS + 2 * j, 2), v(vS + 2 * j, 2), v(vS + 2 * j + 2 * st_, 2)))
            Lu, Lj = k.label('uv'), k.label('jn')
            l('v_lshlrev_b32 v%d, 16, v%d' % (t1, vS + 32))
            l('s_cmp_lg_u32 s%d, 0' % sTH); l('s_cbranch_scc1 %s' % Lu)
            l('v_mul_f32 v%d, %s, v%d' % (vS, f32(1.0 / 640), vS)); l('v_mul_f32 v%d, %s, v%d' % (vS + 1, f32(1.0 / 640), vS + 1))
            l('v_fma_f32 v%d, -v%d, v%d, v%d' % (vS + 1, vS, vS, vS + 1)); l('v_max_f32 v%d, 0, v%d' % (vS + 1, vS + 1)); l('v_add_f32 v%d, %s, v%d' % (vS + 1, f32(1e-5), vS + 1))
            l('v_rsq_f32 v%d, v%d' % (vS + 2, vS + 1)); l('v_mul_f32 v%d, -v%d, v%d' % (vS + 3, vS, vS + 2))
            l('v_lshlrev_b32 v%d, 3, v%d' % (t0, t2)); l('v_add_u32 v%d, %d, v%d' % (t0, TB, t0))
            l('ds_write_b64 v%d, %s' % (t0, v(vS + 2, 2)))
            l('s_branch %s' % Lj)
            l(Lu + ':')
            l('v_add_f32 v%d, v%d, v%d' % (vS + 1, vS + 1, t1))
            l('v_lshlrev_b32 v%d, 2, v%d' % (t0, t2)); l('v_add_u32 v%d, %d, v%d' % (t0, TB, t0))
            l('ds_write_b32 v%d, v%d offset:1024' % (t0, vS)); l('ds_write_b32 v%d, v%d offset:1536' % (t0, vS + 1))
            l(Lj + ':')
            l('s_waitcnt lgkmcnt(0)')
        job = {nst - 4: j_load, nst - 3: j_math}
    l.need(lambda t: t[0] == 'dma' and t[1] <= 0); l('s_barrier')
    for st in range(nst - 1):
        l.need(lambda t, st=st: t[0] == 'dma' and t[1] <= st + 1)
        if 'xbar' not in EXP: l('s_barrier')
        if st + DL < nst: wstage(st + DL)
        touch(st + DL + PF)
        if st in job: job[st]()
    l('s_waitcnt vmcnt(0)')
    l('s_endpgm')
    segs.append(('once', l))
    assemble(k, segs)
    return k
```

```python
from asmlib import *
from layout import *
from sched import *
from k1 import f32
from k3 import mk_srd, MF, PROF, EXP, _cfg
import os
SMOD = os.environ.get("SMOD5", "")
import math
CFG = {
    'oproj': dict(nst=32, K=4096, w=WP3, bsrc=OB,  nks=128, omap=True),
    'mlp2':  dict(nst=14, K=1728, w=WP5, bsrc=HID, nks=54,  omap=False),
}
NG, TG, E, RB, SB = 5, 2, 2, 160, 20480
U, D = 5, 4
NLW = 8
BLOCK = 256 + 64 * NLW
def UL_(kind): return _cfg(kind, 'UL', 5)
def lds_size(kind): return UL_(kind) * SB + 20480 + 16384 + 2048 + (9216 if kind == 'oproj' else 0)

def gen(kind, prof=False, pidx=0):
    c = CFG[kind]
    nst, KK, nks = c['nst'], c['K'], c['nks']
    UL = UL_(kind); DL = UL - 1; SPB = 3
    WQ = SB // NLW
    RED = UL * SB; EX = RED + 20480; MV = EX + 16384; TB = MV + 2048
    def ACC(ng, t): return (t * NG + ng) * 4
    BR = 40
    def BF(sl, e, t): return BR + ((sl * E + e) * TG + t) * 4
    AO = 120
    def AF(e, ng): return AO + (e * NG + ng) * 4
    vB, vA, vID, t0, t1, t2 = 160, 162, 164, 165, 166, 167
    vW, vL, vG, vR, vC = range(AO, AO + 5)
    k = K(kind + '_kernel', vgprs=168, agprs=0)
    sWS, sWT, sBS, sX, sMD, sO1, sO2, sO3, sU1, sU2 = 4, 8, 12, 16, 20, 24, 28, 32, 36, 40
    sW, sBO2, sTT, sNT, sWO, sBO, sWQ, sCNT, sT0, sT1, sT2, sT3 = range(44, 56)
    sG = 60
    Lend, Lp, Lc = k.label('end'), k.label('loop'), k.label('comp')
    def stamp(q, i):
        if prof: q('s_memtime s[%d:%d]' % (84 + 2 * i, 85 + 2 * i))
    segs = []
    p = Seq()
    p('s_cmp_ge_u32 s2, 256'); p('s_cbranch_scc1 %s' % Lend)
    stamp(p, 0)
    if prof: p('s_memrealtime s[96:97]')
    p('s_load_dwordx2 s[%d:%d], s[0:1], %d' % (sWS, sWS + 1, KA['ws']))
    if kind == 'oproj':
        p('s_load_dwordx2 s[%d:%d], s[0:1], %d' % (sX, sX + 1, KA['x'])); p('s_load_dwordx2 s[%d:%d], s[0:1], %d' % (sU1, sU1 + 1, KA['w1']))
    else:
        p('s_load_dwordx2 s[%d:%d], s[0:1], %d' % (sU1, sU1 + 1, KA['b2'])); p('s_load_dwordx2 s[%d:%d], s[0:1], %d' % (sO1, sO1 + 1, KA['out']))
    p('v_lshrrev_b32 v%d, 6, v0' % vW); p('v_and_b32 v%d, 63, v0' % vL)
    p('v_readfirstlane_b32 s%d, v%d' % (sW, vW))
    p('s_and_b32 s%d, s2, 7' % sT0); p('s_lshr_b32 s%d, s2, 3' % sT1)
    p('s_lshr_b32 s%d, s%d, 1' % (sTT, sT0)); p('s_lshl_b32 s%d, s%d, 3' % (sTT, sTT)); p('s_and_b32 s%d, s%d, 7' % (sT2, sT1)); p('s_add_u32 s%d, s%d, s%d' % (sTT, sTT, sT2))
    p('s_and_b32 s%d, s%d, 1' % (sNT, sT0)); p('s_lshl_b32 s%d, s%d, 2' % (sNT, sNT)); p('s_lshr_b32 s%d, s%d, 3' % (sT2, sT1)); p('s_add_u32 s%d, s%d, s%d' % (sNT, sNT, sT2))
    p('s_cmp_lt_u32 s%d, 4' % sW); p('s_cbranch_scc1 %s' % Lc)
    l = p
    vD, vQ, vS, u = 8, 9, 16, 60
    l('s_sub_u32 s%d, s%d, 4' % (sW, sW))
    l('s_mul_i32 s%d, s%d, %d' % (sWQ, sW, WQ))
    l('v_lshlrev_b32 v%d, 4, v%d' % (vQ + 2, vL)); l('v_add_u32 v%d, s%d, v%d' % (vD, sWQ, vQ + 2))
    l('s_mul_i32 s%d, s%d, %d' % (sT0, sNT, KK * 160)); l('s_add_u32 s%d, s%d, %d' % (sT0, sT0, c['w']))
    l('s_mov_b32 s%d, 0' % sWO)
    l('s_waitcnt lgkmcnt(0)')
    mk_srd(l, sWT, sWS, 's%d' % sT0, KK * 160)
    def wstage(st):
        sl = st % UL
        l('s_add_u32 m0, s%d, %d' % (sWQ, sl * SB) if sl else 's_mov_b32 m0, s%d' % sWQ)
        for j in range(3):
            if j == 2: l('s_mov_b64 exec, 0xffffffff')
            if 'nodma' not in EXP or st < DL:
                l('buffer_load_dwordx4 v%d, %s, s%d offen offset:%d lds' % (vD, s(sWT, 4), sWO, j * 1024), ('dma', st))
        l('s_mov_b64 exec, -1')
        l('s_add_u32 s%d, s%d, %d' % (sWO, sWO, SB))
    for st in range(DL): wstage(st)
    l('v_subrev_u32 v%d, 256, v0' % vID)
    mk_srd(l, sMD, sWS, None, 6 * 2560)
    l('s_mul_i32 s%d, s%d, 320' % (sT1, sNT)); l('s_add_u32 s%d, s%d, %d' % (sT1, sT1, (2 if kind == 'oproj' else 5) * 2560))
    l('s_lshl_b32 s%d, s%d, 10' % (sT3, sW))
    if kind == 'oproj':
        l('s_mul_i32 s%d, s%d, %d' % (sT2, sTT, 64 * 1280)); l('s_mul_i32 s%d, s%d, 160' % (sT0, sNT)); l('s_add_u32 s%d, s%d, s%d' % (sT2, sT2, sT0))
        mk_srd(l, sX, sX, 's%d' % sT2, 63 * 1280 + 160)
        for j in range(2):
            if j: l('v_add_u32 v%d, 512, v%d' % (t1, vID))
            src = t1 if j else vID
            l('v_mul_u32_u24 v%d, 6554, v%d' % (t0, src)); l('v_lshrrev_b32 v%d, 16, v%d' % (t0, t0)); l('v_mul_u32_u24 v%d, 1120, v%d' % (t0, t0)); l('v_lshl_add_u32 v%d, v%d, 4, v%d' % (vQ + j, src, t0))
        l('v_add_u32 v%d, %d, v%d' % (t0, 2 * 2560 - 320, vQ + 2)); l('v_cmp_gt_u32 vcc, 20, v%d' % vL); l('v_cndmask_b32 v%d, v%d, v%d, vcc' % (vQ + 2, t0, vQ + 2))
    else:
        l('s_lshl_b32 s%d, s%d, 3' % (sT0, sTT)); l('s_add_u32 s%d, s%d, s%d' % (sT0, sT0, sNT)); l('s_mul_i32 s%d, s%d, 10240' % (sT0, sT0)); l('s_add_u32 s%d, s%d, %d' % (sT0, sT0, X1))
        mk_srd(l, sX, sWS, 's%d' % sT0, 10240)
        l('v_lshlrev_b32 v%d, 4, v%d' % (vQ, vID)); l('v_add_u32 v%d, 8192, v%d' % (vQ + 1, vQ))
        l('s_mul_i32 s%d, s%d, 160' % (sT0, sNT))
        mk_srd(l, sU1, sU1, 's%d' % sT0, 160)
    for j in range(2):
        l('s_add_u32 m0, s%d, %d' % (sT3, EX + 8192 * j))
        l('buffer_load_dwordx4 v%d, %s, 0 offen lds' % (vQ + j, s(sX, 4)))
    l('s_mov_b32 m0, %d' % MV)
    l('buffer_load_dwordx4 v%d, %s, s%d offen lds' % (vQ + 2, s(sMD, 4), sT1))
    if kind == 'mlp2':
        l('s_mov_b32 m0, %d' % (MV + 1024)); l('buffer_load_dwordx4 v%d, %s, 0 offen lds' % (vQ + 2, s(sU1, 4)))
    job = {}
    if kind == 'oproj':
        NR = 40 // NLW
        l('s_lshr_b32 s%d, s2, 3' % sT1); l('s_mul_i32 s%d, s%d, 37' % (sT0, sT1)); l('s_lshr_b32 s%d, s%d, 8' % (sT0, sT0))
        l('s_mul_i32 s%d, s%d, 7' % (sT2, sT0)); l('s_sub_u32 s%d, s%d, s%d' % (sT1, sT1, sT2))
        l('s_and_b32 s%d, s2, 1' % sT2); l('s_mul_i32 s%d, s%d, 7' % (sT2, sT2)); l('s_add_u32 s%d, s%d, s%d' % (sT1, sT1, sT2))
        l('s_and_b32 s%d, s2, 6' % sT2); l('s_lshl_b32 s%d, s%d, 1' % (sT2, sT2)); l('s_add_u32 s%d, s%d, s%d' % (sT0, sT0, sT2))
        l('s_mul_i32 s%d, s%d, 40' % (sT2, sT0)); l('s_mul_i32 s%d, s%d, %d' % (sT3, sW, NR)); l('s_add_u32 s%d, s%d, s%d' % (sT2, sT2, sT3))
        l('s_min_u32 s%d, s%d, %d' % (sT2, sT2, 640 - NR))
        l('s_lshl_b32 s%d, s%d, 2' % (sT3, sT2)); l('s_add_u32 s%d, s%d, %d' % (sT3, sT3, MOD + 3 * 2560))
        l('s_load_dwordx4 s[%d:%d], s[%d:%d], s%d' % (sG, sG + 3, sWS, sWS + 1, sT3)); l('s_load_dword s%d, s[%d:%d], s%d offset:16' % (sG + 4, sWS, sWS + 1, sT3))
        l('s_load_dwordx4 s[%d:%d], s[%d:%d], s%d offset:2560' % (sG + 8, sG + 11, sWS, sWS + 1, sT3)); l('s_load_dword s%d, s[%d:%d], s%d offset:2576' % (sG + 12, sWS, sWS + 1, sT3))
        l('s_cmp_lt_u32 s2, 224'); l('s_cselect_b32 s%d, %d, 0' % (sU1 + 2, 640 * 3456)); l('s_mov_b32 s%d, 0x00020000' % (sU1 + 3))
        l('s_cselect_b32 s%d, 1024, 0' % (sU2 + 2)); l('s_mov_b32 s%d, 0x00020000' % (sU2 + 3))
        l('s_mul_i32 s%d, s%d, %d' % (sT0, sT0, 1792 * 8)); l('s_lshl_b32 s%d, s%d, 10' % (sT3, sT1)); l('s_add_u32 s%d, s%d, s%d' % (sT0, sT0, sT3)); l('s_add_u32 s%d, s%d, %d' % (sT0, sT0, UV))
        l('s_add_u32 s%d, s%d, s%d' % (sU2, sWS, sT0)); l('s_addc_u32 s%d, s%d, 0' % (sU2 + 1, sWS + 1))
        l('s_mul_i32 s%d, s%d, 3456' % (sT2, sT2)); l('s_lshl_b32 s%d, s%d, 8' % (sT1, sT1)); l('s_add_u32 s%d, s%d, s%d' % (sT2, sT2, sT1))
        l('v_lshlrev_b32 v%d, 2, v%d' % (t0, vL))
        def j_load():
            for i in range(NR):
                l('buffer_load_dword v%d, v%d, %s, s%d offen' % (vS + i, t0, s(sU1, 4), sT2))
                if i < NR - 1: l('s_add_u32 s%d, s%d, 3456' % (sT2, sT2))
        def j_math():
            for i in range(NR):
                l('v_lshlrev_b32 v%d, 16, v%d' % (t0, vS + i)); l('v_and_b32 v%d, 0xffff0000, v%d' % (t1, vS + i))
                sb_, g2_ = sG + i, sG + 8 + i
                op = 'v_fmac_f32' if i else 'v_mul_f32'
                l('%s v%d, s%d, v%d' % (op, u, g2_, t0)); l('%s v%d, s%d, v%d' % (op, u + 1, sb_, t0))
                l('%s v%d, s%d, v%d' % (op, u + 2, g2_, t1)); l('%s v%d, s%d, v%d' % (op, u + 3, sb_, t1))
            l('v_lshlrev_b32 v%d, 4, v%d' % (t0, vID)); l('v_add_u32 v%d, %d, v%d' % (t0, TB, t0)); l('ds_write_b128 v%d, %s' % (t0, v(u, 4)))
            l('v_lshlrev_b32 v%d, 2, v%d' % (t1, vID)); l('v_add_u32 v%d, %d, v%d' % (t0, TB, t1))
            l('s_waitcnt lgkmcnt(0)')
        def j_out():
            for j in range(NLW): l('ds_read_b32 v%d, v%d offset:%d' % (u + j, t0, 1024 * j))
            for st_ in (4, 2, 1):
                for j in range(st_): l('v_add_f32 v%d, v%d, v%d' % (u + j, u + j, u + j + st_))
            l('buffer_store_dword v%d, v%d, %s, 0 offen%s' % (u, t1, s(sU2, 4), SMOD))
        job = {nst - 5: j_load, nst - 3: j_math, nst - 2: j_out}
    l.need(lambda t: t[0] == 'dma' and t[1] <= 0); l('s_barrier')
    for st in range(nst - 1):
        l.need(lambda t, st=st: t[0] == 'dma' and t[1] <= st + 1)
        if 'xbar' not in EXP: l('s_barrier')
        if st + DL < nst: wstage(st + DL)
        if st in job: job[st]()
    l('s_endpgm')
    p(Lc + ':'); p.forget()
    p('v_mov_b32 v%d, v0' % vID)
    p('v_lshrrev_b32 v%d, 1, v%d' % (t0, vW)); p('v_and_b32 v%d, 1, v%d' % (t1, vW))
    p('v_lshlrev_b32 v%d, 11, v%d' % (t0, t0)); p('v_lshl_add_u32 v%d, v%d, 4, v%d' % (t0, vL, t0))
    p('v_mul_u32_u24 v%d, %d, v%d' % (t2, E * 4096 + 1024, t1)); p('v_add_u32 v%d, v%d, v%d' % (vB, t0, t2)); p('v_xor_b32 v%d, 1024, v%d' % (vB + 1, vB))
    tb = nks * 4096
    p('s_mul_i32 s%d, s%d, %d' % (sT0, sTT, tb)); p('s_add_u32 s%d, s%d, %d' % (sT0, sT0, c['bsrc']))
    p('s_mov_b32 s%d, 0' % sBO); p('s_mov_b32 s%d, 4096' % sBO2)
    p('s_waitcnt lgkmcnt(0)')
    mk_srd(p, sBS, sWS, 's%d' % sT0, tb)
    def bld(st, e, t):
        return ('buffer_load_dwordx4 %s, v%d, %s, s%d offen' % (v(BF(st % U, e, t), 4), vB + t, s(sBS, 4), (sBO, sBO2)[e]), None)
    def bstage(st): return [bld(st, 0, 0), bld(st, 0, 1), 's_add_u32 s%d, s%d, 16384' % (sBO, sBO), bld(st, 1, 0), bld(st, 1, 1), 's_add_u32 s%d, s%d, 16384' % (sBO2, sBO2)]
    for st in range(D):
        for x in bstage(st): p(*x) if isinstance(x, tuple) else p(x)
    p('v_lshrrev_b32 v%d, 4, v%d' % (vG, vL)); p('v_bfe_u32 v%d, v%d, 2, 2' % (vR, vL)); p('v_and_b32 v%d, 3, v%d' % (vC, vL))
    if c['omap']:
        p('v_lshrrev_b32 v%d, 1, v%d' % (t0, vG)); p('v_lshlrev_b32 v%d, 4, v%d' % (t0, t0)); p('v_and_b32 v%d, 1, v%d' % (t2, vG)); p('v_lshl_add_u32 v%d, v%d, 2, v%d' % (t0, t2, t0))
        d2 = 8
    else:
        p('v_lshlrev_b32 v%d, 2, v%d' % (t0, vG)); d2 = 16
    p('v_add_u32 v%d, v%d, v%d' % (t0, t0, vR))
    p('v_lshl_add_u32 v%d, v%d, 6, v%d' % (t1, t1, t0))
    p('v_mul_u32_u24 v%d, %d, v%d' % (t1, RB, t1)); p('v_lshl_add_u32 v%d, v%d, 3, v%d' % (vA, vC, t1))
    p('v_add_u32 v%d, %d, v%d' % (vA + 1, SPB * SB, vA))
    def a_reads(st, e, ng):
        sl = st % UL
        return ['ds_read_b64_tr_b16 %s, v%d offset:%d' % (v(AF(e, ng) + 2 * h, 2), vA + sl // SPB, (sl % SPB) * SB + (e * 32 + h * d2) * RB + ng * 32) for h in range(2)]
    if kind == 'oproj':
        p('s_lshl_b32 s%d, s%d, 3' % (sT0, sTT)); p('s_add_u32 s%d, s%d, s%d' % (sT0, sT0, sNT)); p('s_mul_i32 s%d, s%d, 10240' % (sT0, sT0)); p('s_add_u32 s%d, s%d, %d' % (sT0, sT0, X1))
        mk_srd(p, sO2, sWS, 's%d' % sT0, 10240)
        p('s_mul_i32 s%d, s%d, %d' % (sT0, sTT, 20 * 4096)); p('s_add_u32 s%d, s%d, %d' % (sT0, sT0, XG))
        mk_srd(p, sO1, sWS, 's%d' % sT0, 20 * 4096)
        p('s_lshl_b32 s%d, s%d, 14' % (sT0, sNT)); p('s_lshl_b32 s%d, s%d, 9' % (sT1, sTT)); p('s_add_u32 s%d, s%d, s%d' % (sT0, sT0, sT1)); p('s_add_u32 s%d, s%d, %d' % (sT0, sT0, STATS))
        mk_srd(p, sO3, sWS, 's%d' % sT0, 512)
        p('s_mul_i32 s%d, s%d, 5' % (sT0, sNT))
        for ng in range(5):
            p('s_add_u32 s%d, s%d, %d' % (sT1, sT0, ng)); p('s_lshr_b32 s%d, s%d, 1' % (sT2, sT1)); p('s_lshl_b32 s%d, s%d, 12' % (sT2, sT2))
            p('s_and_b32 s%d, s%d, 1' % (sT1, sT1)); p('s_lshl_b32 s%d, s%d, 3' % (sT1, sT1)); p('s_add_u32 s%d, s%d, s%d' % (sG + ng, sT1, sT2))
    else:
        p('s_mul_i32 s%d, s%d, %d' % (sT2, sTT, 64 * 1280)); p('s_mul_i32 s%d, s%d, 160' % (sT3, sNT)); p('s_add_u32 s%d, s%d, s%d' % (sT2, sT2, sT3))
        mk_srd(p, sO1, sO1, 's%d' % sT2, 64 * 1280)
    stamp(p, 1)
    p('s_barrier')
    stamp(p, 2)
    if prof: p('s_waitcnt lgkmcnt(0)')
    for e in range(E):
        for ng in range(NG):
            for x in a_reads(0, e, ng): p(x)
    segs.append(('once', p))

    def stage(q, st, extra=()):
        if st < nst - 1 and 'xbar' not in EXP: q('s_barrier')
        if 'nomf' in EXP: q.touch(v(BF(st % U, 0, 0), 4 * E * TG))
        mf = []; g = []
        for e in range(E):
            for ng in range(NG):
                for t in range(TG):
                    d = v(ACC(ng, t), 4)
                    mf.append('%s %s, %s, %s, %s' % (MF, d, v(AF(e, ng), 4), v(BF(st % U, e, t), 4), '0' if (st == 0 and e == 0) else d))
                    g.append(a_reads(st + 1, e, ng) if (t == TG - 1 and st < nst - 1) else [])
        ops = (bstage(st + D) if st + D < nst else []) + list(extra)
        free = [i for i in range(len(mf)) if i % TG != TG - 1 or st == nst - 1]
        for n, o in enumerate(ops): g[free[n * len(free) // len(ops)]].append(o)
        if 'nods' in EXP: g = [[x for x in gg if not (isinstance(x, str) and x.startswith('ds_read_b64_tr'))] for gg in g]
        if 'nob' in EXP: g = [[x for x in gg if not (isinstance(x, tuple) and x[0].startswith('buffer'))] for gg in g]
        if 'nomf' in EXP: mf = ['s_nop 0' for _ in mf]
        interleave(q, mf, g)
    busy = (nst - 1) % U
    big, small = {1: (BF(2, 0, 0), BF(0, 0, 0)), 3: (BF(0, 0, 0), BF(4, 0, 0))}[busy]
    eA, eB, eX = big, big + 20, small
    wW, wL, wG, wK, aWR, aRD, vO1, vO3 = range(big + 40, big + 48)
    vX1 = small + 10
    vT = AO
    x = []
    x += ['v_lshrrev_b32 v%d, 6, v%d' % (wW, vID), 'v_and_b32 v%d, 63, v%d' % (wL, vID), 'v_bfe_u32 v%d, v%d, 4, 2' % (wG, vID), 'v_and_b32 v%d, 15, v%d' % (wK, vID)]
    x += ['v_lshlrev_b32 v%d, 4, v%d' % (t0, wG), 'v_add_u32 v%d, %d, v%d' % (t0, MV, t0)]
    x += ['ds_read_b128 %s, v%d offset:%d' % (v(eA + 4 * ng, 4), t0, ng * 64) for ng in range(5)]
    x += ['v_lshl_add_u32 v%d, v%d, 4, v%d' % (t2, wW, wK)]
    if kind == 'oproj':
        x += ['ds_read_b128 %s, v%d offset:%d' % (v(eB + 4 * ng, 4), t0, 320 + ng * 64) for ng in range(5)]
        x += ['v_mul_u32_u24 v%d, 160, v%d' % (t1, t2), 'v_lshl_add_u32 v%d, v%d, 3, v%d' % (t1, wG, t1), 'v_add_u32 v%d, %d, v%d' % (t1, EX, t1)]
        x += ['ds_read_b64 %s, v%d offset:%d' % (v(eX + 2 * ng, 2), t1, ng * 32) for ng in range(5)]
        x += ['v_mul_u32_u24 v%d, 2560, v%d' % (t1, wW), 'v_lshl_add_u32 v%d, v%d, 4, v%d' % (vX1, wL, t1), 'v_lshl_add_u32 v%d, v%d, 3, v%d' % (vX1 + 1, wL, t1)]
        x += ['v_lshlrev_b32 v%d, 4, v%d' % (vO1, vID)]
        x += ['v_lshlrev_b32 v%d, 3, v%d' % (vO3, t2), 'v_lshl_add_u32 v%d, v%d, 12, v%d' % (vO3, wG, vO3)]
    else:
        x += ['v_lshlrev_b32 v%d, 3, v%d' % (t1, wG), 'v_add_u32 v%d, %d, v%d' % (t1, MV + 1024, t1)]
        x += ['ds_read_b64 %s, v%d offset:%d' % (v(eB + 2 * ng, 2), t1, ng * 32) for ng in range(5)]
        x += ['v_mul_u32_u24 v%d, 2560, v%d' % (t1, wW), 'v_add_u32 v%d, %d, v%d' % (t1, EX, t1), 'v_lshl_add_u32 v%d, v%d, 4, v%d' % (vX1, wL, t1), 'v_lshl_add_u32 v%d, v%d, 3, v%d' % (vX1 + 1, wL, t1)]
        x += ['ds_read_b128 %s, v%d' % (v(eX, 4), vX1), 'ds_read_b128 %s, v%d offset:1024' % (v(eX + 4, 4), vX1), 'ds_read_b64 %s, v%d offset:2048' % (v(eX + 8, 2), vX1 + 1)]
        x += ['v_mul_u32_u24 v%d, 1280, v%d' % (t2, t2), 'v_lshl_add_u32 v%d, v%d, 3, v%d' % (vO1, wG, t2)]
    x += ['v_mul_u32_u24 v%d, 5120, v%d' % (t1, wW), 'v_lshl_add_u32 v%d, v%d, 4, v%d' % (t1, wL, t1), 'v_add_u32 v%d, %d, v%d' % (aWR, RED, t1)]
    x += ['v_xor_b32 v%d, 1, v%d' % (t1, wW), 'v_mul_u32_u24 v%d, 5120, v%d' % (t1, t1), 'v_lshl_add_u32 v%d, v%d, 4, v%d' % (t1, wL, t1), 'v_add_u32 v%d, %d, v%d' % (aRD, RED, t1)]
    last = x
    PER = U * UL // math.gcd(U, UL)
    NIT = (nst - 1 - D) // PER
    if NIT < 2: NIT = 0
    HD = nst - D - NIT * PER
    q = Seq()
    for st in range(HD): stage(q, st, ['s_mov_b32 s%d, %d' % (sCNT, NIT)] if st == 0 and NIT else [])
    segs.append(('once', q))
    def body(it):
        q = Seq(); q(Lp + ':')
        for u_ in range(PER): stage(q, HD + PER * it + u_, ['s_sub_u32 s%d, s%d, 1' % (sCNT, sCNT)] if u_ == PER - 1 else [])
        q('s_cmp_lg_u32 s%d, 0' % sCNT); q('s_cbranch_scc1 %s' % Lp)
        return q
    if NIT: segs.append(('loop', NIT, body))
    q = Seq()
    for st in range(HD + NIT * PER, nst): stage(q, st, last if st == nst - 1 else [])
    segs.append(('once', q))

    e_ = Seq()
    stamp(e_, 3)
    if prof: e_('s_waitcnt lgkmcnt(0)')
    for ng in range(NG): e_('ds_write_b128 v%d, %s offset:%d' % (aWR, v(ACC(ng, 1), 4), ng * 1024))
    xr = vT; br = vT + 20
    for i in range(10):
        e_('v_lshlrev_b32 v%d, 16, v%d' % (xr + 2 * i, eX + i)); e_('v_and_b32 v%d, 0xffff0000, v%d' % (xr + 2 * i + 1, eX + i))
    if kind == 'mlp2':
        for i in range(10):
            e_('v_lshlrev_b32 v%d, 16, v%d' % (br + 2 * i, eB + i)); e_('v_and_b32 v%d, 0xffff0000, v%d' % (br + 2 * i + 1, eB + i))
        for i in range(10):
            e_('v_pk_fma_f32 %s, %s, %s, %s' % (v(xr + 2 * i, 2), v(br + 2 * i, 2), v(eA + 2 * i, 2), v(xr + 2 * i, 2)))
    for i in range(10):
        e_('v_pk_fma_f32 %s, %s, %s, %s' % (v(xr + 2 * i, 2), v(2 * i, 2), v(eA + 2 * i, 2), v(xr + 2 * i, 2)))
    e_('s_waitcnt lgkmcnt(0)'); e_('s_barrier')
    for ng in range(NG): e_('ds_read_b128 %s, v%d offset:%d' % (v(ACC(ng, 1), 4), aRD, ng * 1024))
    if kind == 'oproj':
        sm = br
        for ng in range(5):
            ac = ACC(ng, 0); pa = ACC(ng, 1)
            for h in range(2):
                e_('v_pk_fma_f32 %s, %s, %s, %s' % (v(ac + 2 * h, 2), v(pa + 2 * h, 2), v(eA + 4 * ng + 2 * h, 2), v(xr + 4 * ng + 2 * h, 2)))
            for h in range(2):
                e_('v_cvt_pk_bf16_f32 v%d, v%d, v%d' % (eX + 2 * ng + h, ac + 2 * h, ac + 2 * h + 1))
            for h in range(2):
                e_('v_lshlrev_b32 v%d, 16, v%d' % (ac + 2 * h, eX + 2 * ng + h)); e_('v_and_b32 v%d, 0xffff0000, v%d' % (ac + 2 * h + 1, eX + 2 * ng + h))
            for h in range(2):
                e_('v_pk_mul_f32 %s, %s, %s' % (v(pa + 2 * h, 2), v(ac + 2 * h, 2), v(eB + 4 * ng + 2 * h, 2)))
            for h in range(2):
                e_('v_cvt_pk_bf16_f32 v%d, v%d, v%d' % (pa + h, pa + 2 * h, pa + 2 * h + 1))
            e_('buffer_store_dwordx2 %s, v%d, %s, s%d offen%s' % (v(pa, 2), vO1, s(sO1, 4), sG + ng, SMOD))
            if ng == 1: e_('buffer_store_dwordx4 %s, v%d, %s, 0 offen%s' % (v(eX, 4), vX1, s(sO2, 4), SMOD))
            if ng == 3: e_('buffer_store_dwordx4 %s, v%d, %s, 0 offen offset:1024%s' % (v(eX + 4, 4), vX1, s(sO2, 4), SMOD))
            if ng == 4: e_('buffer_store_dwordx2 %s, v%d, %s, 0 offen offset:2048%s' % (v(eX + 8, 2), vX1 + 1, s(sO2, 4), SMOD))
        for i in range(10):
            if i == 0:
                e_('v_pk_mul_f32 %s, %s, %s' % (v(sm + 2, 2), v(0, 2), v(0, 2)))
            else:
                e_('v_pk_fma_f32 %s, %s, %s, %s' % (v(sm + 2, 2), v(2 * i, 2), v(2 * i, 2), v(sm + 2, 2)))
                e_('v_pk_add_f32 %s, %s, %s' % (v(sm, 2), v(sm if i > 1 else 0, 2), v(2 * i, 2)))
        e_('v_add_f32 v%d, v%d, v%d' % (sm, sm, sm + 1)); e_('v_add_f32 v%d, v%d, v%d' % (sm + 1, sm + 2, sm + 3))
        for sw in ('v_permlane32_swap_b32', 'v_permlane16_swap_b32'):
            e_('v_mov_b32 v%d, v%d' % (sm + 2, sm)); e_('v_mov_b32 v%d, v%d' % (sm + 3, sm + 1))
            e_('%s v%d, v%d' % (sw, sm, sm + 2)); e_('%s v%d, v%d' % (sw, sm + 1, sm + 3))
            e_('v_pk_add_f32 %s, %s, %s' % (v(sm, 2), v(sm, 2), v(sm + 2, 2)))
        e_('buffer_store_dwordx2 %s, v%d, %s, 0 offen%s' % (v(sm, 2), vO3, s(sO3, 4), SMOD))
    else:
        for ng in range(5):
            ac = ACC(ng, 0); pa = ACC(ng, 1)
            for h in range(2):
                e_('v_pk_fma_f32 %s, %s, %s, %s' % (v(ac + 2 * h, 2), v(pa + 2 * h, 2), v(eA + 4 * ng + 2 * h, 2), v(xr + 4 * ng + 2 * h, 2)))
            for h in range(2):
                e_('v_cvt_pk_bf16_f32 v%d, v%d, v%d' % (ac + h, ac + 2 * h, ac + 2 * h + 1))
            e_('buffer_store_dwordx2 %s, v%d, %s, 0 offen offset:%d%s' % (v(ac, 2), vO1, s(sO1, 4), ng * 32, SMOD))
    if prof:
        stamp(e_, 4); e_('s_waitcnt vmcnt(0)'); stamp(e_, 5); e_('s_memrealtime s[98:99]'); e_('s_waitcnt lgkmcnt(0)')
        mk_srd(e_, sWS, sWS, PROF + pidx * 65536, 65536)
        e_('s_lshl_b32 s60, s2, 2'); e_('s_add_u32 s60, s60, s%d' % sW); e_('s_lshl_b32 s60, s60, 6')
        for i in range(8): e_('v_mov_b32 v%d, s%d' % (i, 84 + 2 * i))
        e_('v_mov_b32 v12, 0')
        for i in range(2): e_('buffer_store_dwordx4 %s, v12, %s, s60 offen offset:%d' % (v(4 * i, 4), s(sWS, 4), 16 * i))
    e_(Lend + ':'); e_('s_endpgm')
    segs.append(('once', e_))
    assemble(k, segs)
    return k
```

```python
from asmlib import Ins, K, regs_of
import re

class Seq:
    def __init__(self):
        self.items = []
    def __call__(self, s, tag=None):
        for line in s.split('\n'):
            line = line.strip()
            if line:
                self.items.append((line, tag))
    def need(self, pred):
        self.items.append(('; need', ('NEED', pred)))
    def touch(self, regs):
        self.items.append(('; need', ('TOUCH', set(regs_of(regs)))))
    def forget(self):
        self.items.append(('; need', ('FORGET',)))
    def extend(self, other):
        self.items += other.items

def interleave(seq, mfmas, gaps, pre=None):
    for i, m in enumerate(mfmas):
        seq(m)
        for it in gaps[i]:
            if isinstance(it, tuple) and len(it) == 2 and it[0] == 'NEED':
                seq.need(it[1])
            elif isinstance(it, tuple) and len(it) == 2 and it[0] == 'TOUCH':
                seq.touch(it[1])
            elif isinstance(it, tuple):
                seq(it[0], it[1])
            else:
                seq(it)

class WaitSim:
    def __init__(self):
        self.vm = []
        self.lg = []
    def step(self, text, tag):
        vmreq = lgreq = None
        if isinstance(tag, tuple) and tag and tag[0] == 'FORGET':
            self.vm = []; self.lg = []
            return None, None
        if isinstance(tag, tuple) and tag and tag[0] == 'NEED':
            idx = -1
            for i, (r, t) in enumerate(self.vm):
                if t is not None and tag[1](t): idx = i
            if idx >= 0:
                vmreq = len(self.vm) - 1 - idx
                self.vm = self.vm[idx + 1:]
            return vmreq, None
        istouch = isinstance(tag, tuple) and tag and tag[0] == 'TOUCH'
        if not istouch and (text.endswith(':') or text.startswith(('.', ';'))):
            return None, None
        ins = Ins('s_nop 0' if istouch else text)
        if ins.op == 's_waitcnt':
            m = re.search(r'vmcnt\((\d+)\)', text)
            if m:
                n = int(m.group(1)); self.vm = self.vm[len(self.vm) - n:] if n < len(self.vm) else self.vm
                if n == 0: self.vm = []
            m = re.search(r'lgkmcnt\((\d+)\)', text)
            if m:
                n = int(m.group(1)); self.lg = self.lg[len(self.lg) - n:] if n < len(self.lg) else self.lg
                if n == 0: self.lg = []
            return None, None
        touched = set(ins.src) | set(ins.dst)
        if istouch: touched = tag[1]
        idx = -1
        for i, (r, t) in enumerate(self.vm):
            if r & touched: idx = i
        if idx >= 0:
            vmreq = len(self.vm) - 1 - idx
            self.vm = self.vm[idx + 1:]
        idx = -1
        for i, (r, sm) in enumerate(self.lg):
            if r & touched: idx = i
        if idx >= 0:
            if any(sm for r, sm in self.lg):
                lgreq = 0; self.lg = []
            else:
                lgreq = len(self.lg) - 1 - idx
                self.lg = self.lg[idx + 1:]
        if ins.kind == 'vmem':
            self.vm.append((set(ins.dst), tag))
        elif ins.kind == 'ds':
            self.lg.append((set(ins.dst), False))
        elif ins.kind == 'smem':
            self.lg.append((set(ins.dst), True))
        return vmreq, lgreq

def assemble(k, segs, sim=None, verbose=False):
    sim = sim or WaitSim()
    for sg in segs:
        if sg[0] == 'raw':
            for t, _ in sg[1].items: k(t)
            continue
        if sg[0] == 'once':
            its = [sg[1]]
        else:
            its = [sg[2](i) for i in range(sg[1])]
        texts = [t for t, _ in its[0].items]
        req = [[None, None] for _ in texts]
        for s in its:
            assert [t for t, _ in s.items] == texts, 'loop body text differs'
            for p, (t, tag) in enumerate(s.items):
                a, b = sim.step(t, tag)
                if a is not None: req[p][0] = a if req[p][0] is None else min(a, req[p][0])
                if b is not None: req[p][1] = b if req[p][1] is None else min(b, req[p][1])
        for p, t in enumerate(texts):
            a, b = req[p]
            w = []
            if a is not None: w.append('vmcnt(%d)' % min(a, 62))
            if b is not None: w.append('lgkmcnt(%d)' % min(b, 14))
            if w: k('s_waitcnt ' + ' '.join(w))
            if t != '; need': k(t)
    return sim
```

```python
import sys
sys.path.insert(0, 'dev')
from asmlib import *
from k1 import gen_k1
from k2 import gen_k2, K2_LDS
import k3, k5, os
def main(out, prof=False):
    ks = [gen_k1(), gen_k2(prof)]; la = [('prep_kernel', 256, 256, 4096), ('attn_kernel', 256, 256, K2_LDS)]
    for i, kind in enumerate(('oproj', 'mlp1', 'mlp2')):
        if kind == 'mlp1' or os.environ.get('OLD3'):
            ks.append(k3.gen(kind, prof, i + 1)); la.append((kind + '_kernel', k3.CFG[kind]['grid'], 512, k3.lds_size(kind)))
        else:
            ks.append(k5.gen(kind, prof, i + 1)); la.append((kind + '_kernel', 256, k5.BLOCK, k5.lds_size(kind)))
    open(out, 'w').write(render(ks, la))
if __name__ == '__main__':
    main(sys.argv[1] if len(sys.argv) > 1 else 'kern.s', len(sys.argv) > 2)
```

```python
from asmlib import *
from layout import *
import struct
def f32(x): return '0x%08x' % struct.unpack('<I', struct.pack('<f', x))[0]

def srd(k, sb, off, size, add=0):
    if add:
        k('s_add_u32 s%d, s%d, %d' % (sb, sb, add)); k('s_addc_u32 s%d, s%d, 0' % (sb + 1, sb + 1))
    k('s_mov_b32 s%d, %d' % (sb + 2, size)); k('s_mov_b32 s%d, 0x00020000' % (sb + 3))

import os
PFW = int(os.environ.get('PFW', 64))
PFKV = int(os.environ.get('PFKV', 0))
def touches(k):
    n = 0
    if PFW:
        per = 2048 // PFW; tot = 20 * per
        k('s_mov_b32 s26, %d' % (640 * 8192)); k('s_mov_b32 s27, 0x00020000')
        k('s_lshr_b32 s28, s2, 3'); k('s_mul_i32 s28, s28, %d' % (20 * 8192)); k('s_bfe_u32 s29, s2, 0x20001'); k('s_lshl_b32 s29, s29, 11'); k('s_add_u32 s28, s28, s29')
        for i in range((tot + 255) // 256):
            k('v_add_u32 v90, %d, v0' % (256 * i)); k('v_min_u32 v90, %d, v90' % (tot - 1))
            k('v_lshrrev_b32 v91, %d, v90' % (per.bit_length() - 1)); k('v_and_b32 v90, %d, v90' % (per - 1))
            k('v_lshlrev_b32 v91, 13, v91'); k('v_mad_u32_u24 v%d, v90, %d, v91' % (92 + (i & 1), PFW))
            k('buffer_load_dword v94, v%d, s[24:27], s28 offen' % (92 + (i & 1))); n += 1
    if PFKV:
        k('s_bfe_u32 s29, s2, 0x20001'); k('s_lshl_b32 s29, s29, 3'); k('s_lshr_b32 s28, s2, 5'); k('s_add_u32 s28, s28, s29'); k('s_lshl_b32 s28, s28, 19')
        k('s_bfe_u32 s29, s2, 0x20003'); k('s_lshl_b32 s29, s29, 15'); k('s_add_u32 s28, s28, s29'); k('s_add_u32 s28, s28, 393216')
        k('v_mul_u32_u24 v95, %d, v0' % PFKV)
        for b in (32, 36):
            k('s_mov_b32 s%d, %d' % (b + 2, 32 << 19)); k('s_mov_b32 s%d, 0x00020000' % (b + 3))
        for i in range(32768 // (256 * PFKV)):
            for b in (32, 36):
                k('buffer_load_dword v94, v95, s[%d:%d], s28 offen' % (b, b + 3)); n += 1
            k('s_add_u32 s28, s28, %d' % (256 * PFKV))
    return n

def gen_k1():
    k = K('prep_kernel', vgprs=96)
    Lln, Lend = k.label('ln'), k.label('end')
    k('s_cmp_ge_u32 s2, 256'); k('s_cbranch_scc1 %s' % Lend)
    k('s_load_dwordx2 s[12:13], s[0:1], %d' % KA['ws'])
    k('s_load_dwordx2 s[24:25], s[0:1], %d' % KA['wq'])
    if PFKV: k('s_load_dwordx2 s[32:33], s[0:1], %d' % KA['k']); k('s_load_dwordx2 s[36:37], s[0:1], %d' % KA['v'])
    Lt = k.label('t')
    k('s_cmp_ge_u32 s2, 128'); k('s_cbranch_scc1 %s' % Lln)
    k('s_load_dwordx2 s[4:5], s[0:1], %d' % KA['c'])
    k('s_load_dwordx2 s[8:9], s[0:1], %d' % KA['wmod'])
    k('s_and_b32 s16, s2, 7'); k('s_lshr_b32 s17, s2, 3')
    k('s_lshr_b32 s18, s17, 1'); k('s_lshl_b32 s18, s18, 4'); k('s_lshl_b32 s16, s16, 1'); k('s_add_u32 s18, s18, s16')
    k('s_and_b32 s17, s17, 1'); k('s_add_u32 s18, s18, s17')
    k('s_cmp_ge_u32 s18, 120'); k('s_cbranch_scc1 %s' % Lt)
    k('v_lshrrev_b32 v1, 2, v0')
    k('v_and_b32 v2, 3, v0')
    k('v_lshlrev_b32 v3, 1, v1')
    k('v_mul_u32_u24 v4, 7680, v1'); k('v_lshl_add_u32 v4, v2, 4, v4')
    k('s_lshl_b32 s19, s18, 6')
    k('s_waitcnt lgkmcnt(0)')
    srd(k, 4, 0, 1280); srd(k, 8, 0, 640 * 7680); srd(k, 12, 0, GS + 2560)
    for i in range(10):
        k('buffer_load_ushort v%d, v3, s[4:7], 0 offen offset:%d' % (8 + i, 128 * i))
    for i in range(10):
        k('buffer_load_dwordx4 %s, v4, s[8:11], s19 offen' % v(20 + 4 * i, 4))
        if i < 9: k('s_add_u32 s19, s19, %d' % (64 * 7680))
    nt = touches(k)
    k('s_waitcnt vmcnt(%d)' % (10 + nt))
    for i in range(10):
        c = 8 + i
        k('v_lshlrev_b32 v%d, 16, v%d' % (c, c))
        k('v_mul_f32 v60, %s, v%d' % (f32(-1.4426950408889634), c))
        k('v_exp_f32 v60, v60'); k('v_add_f32 v60, 1.0, v60'); k('v_rcp_f32 v60, v60')
        k('v_mul_f32 v60, v60, v%d' % c)
        k('v_cvt_pk_bf16_f32 v60, v60, v60'); k('v_lshlrev_b32 v%d, 16, v60' % c)
    for j in range(8): k('v_mov_b32 v%d, 0' % (64 + j))
    for i in range(10):
        k('s_waitcnt vmcnt(%d)' % (9 - i + nt))
        for j in range(4):
            w = 20 + 4 * i + j
            k('v_lshlrev_b32 v60, 16, v%d' % w); k('v_and_b32 v61, 0xffff0000, v%d' % w)
            k('v_fmac_f32 v%d, v60, v%d' % (64 + 2 * j, 8 + i)); k('v_fmac_f32 v%d, v61, v%d' % (65 + 2 * j, 8 + i))
    for sh in (4, 8):
        for j in range(8):
            k('v_add_f32_dpp v%d, v%d, v%d row_ror:%d row_mask:0xf bank_mask:0xf' % (72 + j, 64 + j, 64 + j, sh))
        for j in range(8): k('v_mov_b32 v%d, v%d' % (64 + j, 72 + j))
    k('v_lshrrev_b32 v5, 4, v0'); k('v_lshlrev_b32 v5, 7, v5'); k('v_lshl_add_u32 v5, v2, 5, v5')
    k('v_and_b32 v6, 15, v0'); k('v_cmp_gt_u32 vcc, 4, v6'); k('s_and_saveexec_b64 s[20:21], vcc')
    k('ds_write_b128 v5, v[64:67]'); k('ds_write_b128 v5, v[68:71] offset:16')
    k('s_mov_b64 exec, s[20:21]')
    k('s_waitcnt lgkmcnt(0)'); k('s_barrier')
    k('v_cmp_gt_u32 vcc, 32, v0'); k('s_and_saveexec_b64 s[20:21], vcc'); k('s_cbranch_execz %s' % Lend)
    k('v_lshlrev_b32 v5, 2, v0')
    for j in range(16): k('ds_read_b32 v%d, v5 offset:%d' % (20 + j, 128 * j))
    k('s_waitcnt lgkmcnt(0)')
    for st in (8, 4, 2, 1):
        for j in range(st): k('v_add_f32 v%d, v%d, v%d' % (20 + j, 20 + j, 20 + j + st))
    k('v_cvt_pk_bf16_f32 v20, v20, v20'); k('v_lshlrev_b32 v20, 16, v20')
    k('s_sub_u32 s22, s18, 20'); k('s_cmp_lt_u32 s22, 20'); k('s_cselect_b32 s23, 1, 0')
    k('s_sub_u32 s22, s18, 80'); k('s_cmp_lt_u32 s22, 20'); k('s_cselect_b32 s23, 1, s23')
    Lno = k.label('no1')
    k('s_cmp_eq_u32 s23, 0'); k('s_cbranch_scc1 %s' % Lno)
    k('v_add_f32 v20, 1.0, v20'); k('v_cvt_pk_bf16_f32 v20, v20, v20'); k('v_lshlrev_b32 v20, 16, v20')
    k.place(Lno)
    k('s_lshl_b32 s19, s18, 7')
    k('buffer_store_dword v20, v5, s[12:15], s19 offen')
    k('s_cmp_ge_u32 s18, 40'); k('s_cbranch_scc1 %s' % Lend)
    k('s_cmp_lt_u32 s18, 20'); k('s_cselect_b32 s22, %s, 1.0' % f32(QSCALE)); k('s_mov_b32 s23, %d' % (GS - 20 * 128)); k('s_cselect_b32 s23, %d, s23' % (GS + 16))
    k('s_add_u32 s19, s19, s23')
    k('v_mul_f32 v21, s22, v20'); k('v_cvt_f16_f32 v21, v21')
    k('v_lshrrev_b32 v6, 3, v0'); k('v_lshlrev_b32 v6, 5, v6'); k('v_and_b32 v7, 7, v0'); k('v_lshl_add_u32 v6, v7, 1, v6')
    k('buffer_store_short v21, v6, s[12:15], s19 offen')
    k('s_endpgm')
    k.place(Lln)
    k('s_load_dwordx2 s[4:5], s[0:1], %d' % KA['x'])
    k('s_and_b32 s16, s2, 7'); k('s_lshl_b32 s16, s16, 4'); k('s_bfe_u32 s17, s2, 0x40003'); k('s_add_u32 s16, s16, s17')
    k('v_and_b32 v1, 15, v0')
    k('v_bfe_u32 v2, v0, 4, 2')
    k('v_lshrrev_b32 v3, 6, v0')
    k('v_mul_u32_u24 v4, 1280, v1'); k('v_mul_u32_u24 v5, 320, v3'); k('v_add_u32 v4, v4, v5'); k('v_lshl_add_u32 v4, v2, 4, v4')
    k('s_mul_i32 s17, s16, %d' % (16 * 1280))
    k('s_waitcnt lgkmcnt(0)')
    srd(k, 4, 0, T * 1280); srd(k, 12, 0, 64 * 40960, add=XH)
    for i in range(5):
        k('buffer_load_dwordx4 %s, v4, s[4:7], s17 offen offset:%d' % (v(8 + 4 * i, 4), 64 * i))
    nt = touches(k)
    k('v_mul_u32_u24 v5, 10240, v3'); k('v_lshl_add_u32 v5, v2, 9, v5'); k('v_lshl_add_u32 v5, v1, 4, v5')
    k('s_and_b32 s18, s16, 1'); k('s_lshl_b32 s18, s18, 8'); k('s_lshr_b32 s19, s16, 1'); k('s_mul_i32 s19, s19, 40960'); k('s_add_u32 s19, s19, s18')
    k('v_lshlrev_b32 v6, 3, v1'); k('v_lshl_add_u32 v7, v3, 7, v6')
    for j in range(4): k('v_mov_b32 v%d, 0' % (72 + j))
    for i in range(5):
        k('s_waitcnt vmcnt(%d)' % (4 - i + nt))
        for j in range(4):
            w = 8 + 4 * i + j; d = 32 + 8 * i + 2 * j
            k('v_lshlrev_b32 v%d, 16, v%d' % (d, w)); k('v_and_b32 v%d, 0xffff0000, v%d' % (d + 1, w))
            k('v_pk_add_f32 v[72:73], v[72:73], %s' % v(d, 2))
            k('v_pk_fma_f32 v[74:75], %s, %s, v[74:75]' % (v(d, 2), v(d, 2)))
    k('v_add_f32 v72, v72, v73'); k('v_add_f32 v73, v74, v75')
    for sw in ('v_permlane32_swap_b32', 'v_permlane16_swap_b32'):
        k('v_mov_b32 v74, v72'); k('v_mov_b32 v75, v73')
        k('%s v72, v74' % sw); k('%s v73, v75' % sw)
        k('v_add_f32 v72, v72, v74'); k('v_add_f32 v73, v73, v75')
    k('ds_write_b64 v7, v[72:73]')
    k('s_waitcnt lgkmcnt(0)'); k('s_barrier')
    for j in range(4): k('ds_read_b64 %s, v6 offset:%d' % (v(76 + 2 * j, 2), 128 * j))
    k('s_waitcnt lgkmcnt(0)')
    k('v_pk_add_f32 v[76:77], v[76:77], v[78:79]'); k('v_pk_add_f32 v[80:81], v[80:81], v[82:83]'); k('v_pk_add_f32 v[76:77], v[76:77], v[80:81]')
    k('v_mul_f32 v76, %s, v76' % f32(1.0 / 640))
    k('v_mul_f32 v77, %s, v77' % f32(1.0 / 640))
    k('v_fma_f32 v77, -v76, v76, v77'); k('v_max_f32 v77, 0, v77'); k('v_add_f32 v77, %s, v77' % f32(1e-5))
    k('v_rsq_f32 v78, v77')
    k('v_mul_f32 v78, %s, v78' % f32(QSCALE))
    k('v_mul_f32 v80, -v76, v78')
    for i in range(5):
        for j in range(4):
            w = 8 + 4 * i + j; d = 32 + 8 * i + 2 * j
            k('v_pk_fma_f32 %s, %s, v[78:79], v[80:81] op_sel_hi:[1,0,0]' % (v(d, 2), v(d, 2)))
            k('v_cvt_pk_f16_f32 v%d, v%d, v%d' % (w, d, d + 1))
        k('buffer_store_dwordx4 %s, v5, s[12:15], s19 offen' % v(8 + 4 * i, 4))
        if i < 4: k('s_add_u32 s19, s19, 2048')
    k('s_endpgm')
    k.place(Lt)
    k('s_waitcnt lgkmcnt(0)')
    touches(k)
    k.place(Lend)
    k('s_endpgm')
    return k
```

```python
from asmlib import *
from layout import *
from sched import *
from k1 import f32, srd

BLK, WST = 1088, 4480
SLOT = 4 * WST
R = 7
GSOFF = R * SLOT
FLAGOFF = GSOFF + 4096
K2_LDS = FLAGOFF + 64
MF = 'v_mfma_f32_32x32x16_bf16'

def ACC(tg, t): return (tg * 4 + t) * 16
XR = 128
HB = 192
GB = 208
TM = 224
S_ = 128
NM = 160
P_ = 192
LA = 208
vF = 232
vKV = 236
vX0, vX1 = 240, 241
cW, cK0, cK1, cV = 242, 243, 244, 245
vRW, vRK0, vRK1, vRV = 246, 247, 248, 249
vGS, vO = 250, 251
def QF(tg, s): return (tg * 8 + s) * 4
def KF(s): return 64 + 4 * s
def VF(f): return 96 + 4 * f
def WF(b, t): return 128 + 16 * b + 4 * t
sWQ, sK, sV, sXH, sOB, sGS = 4, 8, 12, 16, 20, 24
sW, sFILL, sRD, sFOFF, sXOFF, sCNT, sHEAD, sQB, sFB, sT0, sT1, sW44, sFSTR, sRV, sRK = 28, 29, 30, 31, 32, 33, 34, 35, 36, 37, 38, 39, 40, 41, 42
sFA, sFB2 = 44, 48
sPS3, sPS5, sPD3, sPD5, sP4 = 84, 88, 92, 96, 100
aPK = 160
sFBM = 52
vMX = 253
import os
PA, PB, PC = [int(x) for x in os.environ.get('PABC', '2,5,5').split(',')]
PKMOD = os.environ.get('PKMOD', ' sc1')
OMOD = os.environ.get('OMOD', ' sc1')
E2 = os.environ.get('E2', '').split(',')

COST = {'v_exp': 8}
def cost(t):
    if isinstance(t, tuple):
        if t[0] in ('NEED', 'TOUCH'): return 4
        t = t[0]
    return 8 if t.startswith(('v_exp', 'v_rcp')) else 4

def pack(gaps, stream, g0, g1):
    n = g1 - g0 + 1
    tot = sum(cost(x) for x in stream) + sum(cost(x) for g in range(g0, g1 + 1) for x in gaps[g])
    i = 0; cum = 0
    for q, g in enumerate(range(g0, g1 + 1)):
        cum += sum(cost(x) for x in gaps[g])
        lim = tot * (q + 1) / n
        while i < len(stream) and (cum + cost(stream[i]) / 2 <= lim or g == g1):
            gaps[g].append(stream[i]); cum += cost(stream[i]); i += 1
    assert i == len(stream)

def fill_dma(i, u):
    srdr = sFA if i < 2 else sFB2
    return ('buffer_load_dwordx4 v%d, %s, s%d offen offset:%d lds' % (vF + i, s(srdr, 4), sFOFF, i * BLK), ('dma', u))

def adv(sreg, tmp):
    return ['s_add_u32 s%d, s%d, %d' % (sreg, sreg, SLOT), 's_cmp_ge_u32 s%d, %d' % (sreg, R * SLOT),
            's_cselect_b32 s%d, %d, 0' % (tmp, R * SLOT), 's_sub_u32 s%d, s%d, s%d' % (sreg, sreg, tmp)]

def h_stream(s1):
    out = []
    gb = GB + 8 * (s1 & 1)
    n = 0
    for tg in range(2):
        x = XR + ((s1 & 7) * 2 + tg) * 4
        h = HB + ((s1 & 1) * 2 + tg) * 4
        for q in range(4):
            t0 = TM + 2 * (n & 3); n += 1
            out.append('v_fma_mix_f32 v%d, v%d, v%d, v%d op_sel:[0,0,0] op_sel_hi:[1,1,1]' % (t0, x + q, gb + q, gb + 4 + q))
            out.append('v_fma_mix_f32 v%d, v%d, v%d, v%d op_sel:[1,1,1] op_sel_hi:[1,1,1]' % (t0 + 1, x + q, gb + q, gb + 4 + q))
            out.append('v_cvt_pk_bf16_f32 v%d, v%d, v%d' % (h + q, t0, t0 + 1))
    o2 = []
    for i in range(0, len(out), 3):
        o2 += out[i:i + 2]
        if i >= 3: o2.append(out[i - 1])
    o2.append(out[-1])
    return o2

def w_reads(s1):
    b = s1 & 1; sl = s1 & 3
    return ['ds_read_b64_tr_b16 %s, v%d offset:%d' % (a(WF(b, t) + 2 * jh, 2), vRW, sl * WST + jh * 256 + t * 64)
            for t in range(4) for jh in range(2)]
def gs_reads(s2):
    gb = GB + 8 * (s2 & 1)
    return ['ds_read_b128 %s, v%d offset:%d' % (v(gb + 4 * h, 4), vGS, (s2 & 7) * 64 + h * 16) for h in range(2)]
def x_loads(s8):
    return [('buffer_load_dwordx4 %s, v%d, %s, s%d offen offset:%d' % (v(XR + ((s8 & 7) * 2 + tg) * 4, 4), vX0 + tg, s(sXH, 4), sXOFF, (s8 & 3) * 1024), None)
            for tg in range(2)]
def k_read(sd):
    return 'ds_read_b128 %s, v%d offset:%d' % (a(KF(sd), 4), vRK0 + (sd & 1), (sd >> 1) * 64)
def v_reads(f):
    sp, t = f >> 2, f & 3
    return ['ds_read_b64_tr_b16 %s, v%d offset:%d' % (a(VF(f) + 2 * jh, 2), vRV, sp * 2 * WST + jh * 512 + t * 64) for jh in range(2)]
def softmax(tg):
    sb = S_ + 16 * tg
    out = []
    def E(r): return 'v_exp_f32 v%d, v%d' % (sb + r, sb + r)
    def C(q): return 'v_cvt_pk_bf16_f32 v%d, v%d, v%d' % (P_ + 8 * tg + q, sb + 2 * q, sb + 2 * q + 1)
    def A(r): return 'v_add_f32 v%d, v%d, v%d' % (LA + 2 * tg + (r & 1), LA + 2 * tg + (r & 1), sb + r)
    for q in range(9):
        if q < 8 and 'noexp' not in E2: out += [E(2 * q), E(2 * q + 1)]
        if q > 0:
            out += [C(q - 1)]
            if 'noadd' in E2: pass
            elif 'pkadd' not in E2: out += [A(2 * q - 2), A(2 * q - 1)]
            else: out += ['v_pk_add_f32 %s, %s, %s' % (v(LA + 2 * tg, 2), v(LA + 2 * tg, 2), v(sb + 2 * q - 2, 2))]
    return out
def s_mfma(tg, czero=False):
    d = v(S_ + 16 * tg, 16)
    return ['%s %s, %s, %s, %s' % (MF, d, a(KF(sd), 4), a(QF(tg, sd), 4), (('0' if czero else v(NM + 16 * tg, 16)) if sd == 0 else d)) for sd in range(8)]
def pv_mfma(tg, first=False):
    return ['%s %s, %s, %s, %s' % (MF, v(ACC(tg, f & 3), 16), a(VF(f), 4), v(P_ + 8 * tg + 4 * (f >> 2), 4),
                                   '0' if (first and f < 4) else v(ACC(tg, f & 3), 16)) for f in range(8)]

PROF = 0x3000000
def gen_k2(prof=False):
    def stamp(q, i, pro=False):
        if 'pro' in E2 and i in (1, 2, 3, 4, 5) and not pro: return
        if pro and 'pro' not in E2: return
        if prof: q('s_memtime s[%d:%d]' % (60 + 2 * i, 61 + 2 * i))

    k = K('attn_kernel', vgprs=256, agprs=200)
    Lend, L1, L1s, L2, Lent, Lnom, Lfb, Lmx = [k.label(x) for x in ('end', 'p1', 'p1s', 'p2', 'ent', 'nom', 'fb', 'mx')]
    L2e, Lpk, Lps = k.label('p2e'), k.label('pk'), k.label('ps')
    segs = []
    p = Seq()
    p('s_cmp_ge_u32 s2, 256'); p('s_cbranch_scc1 %s' % Lend)
    stamp(p, 0)
    if prof: p('s_memrealtime s[76:77]'); p('s_load_dwordx2 s[80:81], s[0:1], %d' % KA['ws'])
    p('s_load_dwordx2 s[%d:%d], s[0:1], %d' % (sWQ, sWQ + 1, KA['wq']))
    p('s_load_dwordx4 s[%d:%d], s[0:1], %d' % (sFA, sFA + 3, KA['k']))
    p('s_load_dwordx2 s[%d:%d], s[0:1], %d' % (sGS, sGS + 1, KA['ws']))
    p('s_load_dwordx2 s[%d:%d], s[0:1], %d' % (sPS3, sPS3 + 1, KA['wo'])); p('s_load_dwordx2 s[%d:%d], s[0:1], %d' % (sPS5, sPS5 + 1, KA['w2']))
    p('v_lshrrev_b32 v1, 6, v0'); p('v_and_b32 v2, 63, v0')
    p('v_mov_b32 v255, v0')
    p('v_readfirstlane_b32 s%d, v1' % sW)
    p('s_and_b32 s%d, s2, 7' % sT0); p('s_lshr_b32 s%d, s2, 3' % sT1)
    p('s_and_b32 s%d, s%d, 1' % (sQB, sT0)); p('s_lshl_b32 s%d, s%d, 2' % (sQB, sQB)); p('s_and_b32 s%d, s%d, 3' % (sCNT, sT1)); p('s_add_u32 s%d, s%d, s%d' % (sQB, sQB, sCNT))
    p('s_lshr_b32 s%d, s%d, 1' % (sHEAD, sT0)); p('s_lshl_b32 s%d, s%d, 3' % (sHEAD, sHEAD)); p('s_lshr_b32 s%d, s%d, 2' % (sT1, sT1)); p('s_add_u32 s%d, s%d, s%d' % (sHEAD, sHEAD, sT1))
    p('s_mul_i32 s%d, s%d, %d' % (sW44, sW, WST))
    p('v_lshrrev_b32 v3, 4, v2'); p('v_and_b32 v4, 15, v2')
    p('v_lshlrev_b32 v5, 4, v1'); p('v_lshl_add_u32 v5, v3, 2, v5'); p('v_lshlrev_b32 v5, 13, v5'); p('v_lshl_add_u32 v%d, v4, 4, v5' % vF)
    for r_ in range(1, 4): p('v_add_u32 v%d, %d, v%d' % (vF + r_, r_ * (8192 - BLK), vF))
    p('s_mov_b32 s%d, 524288' % sFSTR); p('s_mov_b32 s%d, 0' % sFOFF); p('s_mov_b32 s%d, 0' % sXOFF)
    p('v_mul_u32_u24 v5, 81920, v1'); p('v_lshl_add_u32 v%d, v2, 4, v5' % vX0); p('v_add_u32 v%d, 40960, v%d' % (vX1, vX0))
    p('s_waitcnt lgkmcnt(0)')
    stamp(p, 1, True)
    def fill_begin(): return ['s_add_u32 m0, s%d, s%d' % (sFILL, sW44)]
    def fill_end(): return adv(sFILL, sT0) + ['s_add_u32 s%d, s%d, s%d' % (sFOFF, sFOFF, sFSTR)]
    p('s_lshl_b32 s%d, s%d, 19' % (sT1, sHEAD)); p('s_add_u32 s%d, s%d, %d' % (sT1, sT1, 393216 - 4096))
    for dst, src in ((sK, sFA), (sV, sFA + 2)):
        p('s_add_u32 s%d, s%d, s%d' % (dst, src, sT1)); p('s_addc_u32 s%d, s%d, 0' % (dst + 1, src + 1))
    p('s_lshl_b32 s%d, s%d, 8' % (sT0, sHEAD))
    for d in (sFA, sFB2):
        p('s_add_u32 s%d, s%d, s%d' % (d, sWQ, sT0)); p('s_addc_u32 s%d, s%d, 0' % (d + 1, sWQ + 1))
        p('s_sub_u32 s%d, %d, s%d' % (d + 2, 640 * 8192, sT0)); p('s_mov_b32 s%d, 0x00020000' % (d + 3))
    p('s_mov_b32 m0, s%d' % sW44)
    for i in range(4): p(*fill_dma(i, 0))
    p('s_mul_i32 s%d, s%d, %d' % (sT0, sQB, 8 * 40960)); p('s_add_u32 s%d, s%d, %d' % (sT0, sT0, XH))
    p('s_add_u32 s%d, s%d, s%d' % (sXH, sGS, sT0)); p('s_addc_u32 s%d, s%d, 0' % (sXH + 1, sGS + 1))
    p('s_mov_b32 s%d, %d' % (sXH + 2, 8 * 40960)); p('s_mov_b32 s%d, 0x00020000' % (sXH + 3))
    for x in x_loads(0): p(*x)
    p('s_mov_b32 s%d, s%d' % (sPD3, sGS)); p('s_mov_b32 s%d, s%d' % (sPD3 + 1, sGS + 1))
    p('s_add_u32 s%d, s%d, %d' % (sGS, sGS, GS)); p('s_addc_u32 s%d, s%d, 0' % (sGS + 1, sGS + 1))
    p('s_mov_b32 s%d, 2560' % (sGS + 2)); p('s_mov_b32 s%d, 0x00020000' % (sGS + 3))
    p('v_lshlrev_b32 v5, 4, v0'); p('s_lshl_b32 s%d, s%d, 10' % (sT0, sW)); p('s_add_u32 m0, s%d, %d' % (sT0, GSOFF))
    p('buffer_load_dwordx4 v5, %s, 0 offen lds' % s(sGS, 4), ('gs', 0))
    for x in x_loads(1): p(*x)
    p('s_mov_b32 s%d, %d' % (sFILL, SLOT)); p('s_mov_b32 s%d, s%d' % (sFOFF, sFSTR))
    for x in fill_begin(): p(x)
    for x in x_loads(2): p(*x)
    for i in range(2): p(*fill_dma(i, 1))
    for x in x_loads(3): p(*x)
    for i in range(2, 4): p(*fill_dma(i, 1))
    for x in fill_end(): p(x)
    stamp(p, 2, True)
    for dst in (sK, sV):
        p('s_mov_b32 s%d, %d' % (dst + 2, 131072 + 4096)); p('s_mov_b32 s%d, 0x00020000' % (dst + 3))
    p('s_lshl_b32 s%d, s%d, 21' % (sT0, sQB)); p('s_add_u32 s%d, s%d, %d' % (sT0, sT0, OB))
    p('s_add_u32 s%d, s%d, s%d' % (sOB, sPD3, sT0)); p('s_addc_u32 s%d, s%d, 0' % (sOB + 1, sPD3 + 1))
    p('s_mov_b32 s%d, %d' % (sOB + 2, 4 * 524288)); p('s_mov_b32 s%d, 0x00020000' % (sOB + 3))
    p('s_mov_b32 s%d, 0' % sFB)
    p('v_lshl_add_u32 v5, v1, 3, v3'); p('v_lshlrev_b32 v5, 8, v5'); p('v_xor_b32 v6, v4, v3'); p('v_lshl_add_u32 v5, v6, 4, v5')
    p('v_add_u32 v%d, 4096, v5' % vKV); p('v_add_u32 v%d, %d, v5' % (vKV + 1, 4096 + 1024 - BLK))
    p('v_lshrrev_b32 v5, 1, v1'); p('v_lshlrev_b32 v5, 4, v5'); p('v_lshl_add_u32 v5, v3, 2, v5'); p('v_and_b32 v6, 1, v1'); p('v_lshl_add_u32 v5, v6, 1, v5')
    p('v_lshlrev_b32 v5, 8, v5'); p('v_lshl_add_u32 v5, v4, 4, v5')
    p('v_add_u32 v%d, %d, v5' % (vKV + 2, 4096 - 2 * BLK)); p('v_add_u32 v%d, %d, v5' % (vKV + 3, 4096 + 256 - 3 * BLK))
    p('v_bfe_u32 v5, v2, 2, 2'); p('v_and_b32 v6, 3, v2'); p('v_lshrrev_b32 v7, 5, v2'); p('v_and_b32 v8, 1, v3')
    p('v_mul_u32_u24 v9, %d, v5' % BLK); p('v_lshl_add_u32 v9, v7, 9, v9'); p('v_lshl_add_u32 v9, v8, 5, v9')
    p('v_and_b32 v10, 1, v6'); p('v_lshl_add_u32 v9, v10, 4, v9'); p('v_lshrrev_b32 v10, 1, v6'); p('v_lshl_add_u32 v%d, v10, 3, v9' % cW)
    p('v_lshrrev_b32 v9, 1, v5'); p('v_mul_u32_u24 v9, %d, v9' % WST); p('v_and_b32 v10, 1, v5'); p('v_mul_u32_u24 v10, %d, v10' % BLK)
    p('v_add3_u32 v9, v9, v10, %d' % 0); p('v_add_u32 v9, %d, v9' % (2 * BLK))
    p('v_lshl_add_u32 v9, v7, 8, v9'); p('v_lshl_add_u32 v9, v8, 5, v9'); p('v_lshl_add_u32 v%d, v6, 3, v9' % cV)
    p('v_bfe_u32 v9, v2, 3, 2'); p('v_mul_u32_u24 v9, %d, v9' % WST); p('v_bfe_u32 v10, v2, 2, 1'); p('v_mul_u32_u24 v10, %d, v10' % BLK)
    p('v_add_u32 v9, v9, v10'); p('v_lshl_add_u32 v9, v6, 8, v9')
    p('v_xor_b32 v10, v7, v6'); p('v_lshl_add_u32 v%d, v10, 4, v9' % cK0)
    p('v_xor_b32 v10, 2, v10'); p('v_lshl_add_u32 v%d, v10, 4, v9' % cK1)
    p('v_lshlrev_b32 v%d, 5, v7' % vGS); p('v_add_u32 v%d, %d, v%d' % (vGS, GSOFF, vGS))
    p('v_lshlrev_b32 v9, 19, v1'); p('v_lshl_add_u32 v9, v8, 10, v9'); p('v_lshl_add_u32 v9, v7, 8, v9'); p('v_lshl_add_u32 v%d, v4, 4, v9' % vO)
    sNTp, sRB = sPS3 + 2, sPS3 + 3
    p('s_and_b32 s%d, s2, 1' % sT0); p('s_lshl_b32 s%d, s%d, 2' % (sT0, sT0)); p('s_bfe_u32 s%d, s2, 0x20003' % sT1); p('s_add_u32 s%d, s%d, s%d' % (sNTp, sT0, sT1))
    p('s_bfe_u32 s%d, s2, 0x20001' % sT0); p('s_lshr_b32 s%d, s2, 5' % sT1)
    p('s_lshl_b32 s%d, s%d, 2' % (sPD5 + 3, sT1)); p('s_add_u32 s%d, s%d, s%d' % (sPD5 + 3, sPD5 + 3, sT0)); p('s_min_u32 s%d, s%d, 14' % (sPD5 + 3, sPD5 + 3))
    p('s_lshl_b32 s%d, s%d, 3' % (sT0, sT0)); p('s_add_u32 s%d, s%d, s%d' % (sRB, sT0, sT1))
    p('s_mul_i32 s%d, s%d, 160' % (sP4, sNTp)); p('s_mul_i32 s%d, s%d, %d' % (sT1, sPD5 + 3, 128 * 1280)); p('s_add_u32 s%d, s%d, s%d' % (sT1, sT1, sP4))
    p('s_add_u32 s%d, s%d, s%d' % (sPS5, sPS5, sT1)); p('s_addc_u32 s%d, s%d, 0' % (sPS5 + 1, sPS5 + 1))
    p('s_sub_u32 s%d, %d, s%d' % (sPS5 + 2, 1728 * 1280, sT1)); p('s_max_i32 s%d, s%d, 0' % (sPS5 + 2, sPS5 + 2)); p('s_mov_b32 s%d, 0x00020000' % (sPS5 + 3))
    p('s_mul_i32 s%d, s%d, %d' % (sT0, sNTp, 1728 * 160)); p('s_mul_i32 s%d, s%d, 20480' % (sT1, sPD5 + 3))
    p('s_sub_u32 s%d, %d, s%d' % (sPD5 + 2, 1728 * 160, sT1)); p('s_max_i32 s%d, s%d, 0' % (sPD5 + 2, sPD5 + 2)); p('s_mov_b32 s%d, 0x00020000' % (sPD5 + 3))
    p('s_add_u32 s%d, s%d, s%d' % (sT0, sT0, sT1)); p('s_add_u32 s%d, s%d, %d' % (sT0, sT0, WP5))
    p('s_add_u32 s%d, s%d, s%d' % (sPD5, sPD3, sT0)); p('s_addc_u32 s%d, s%d, 0' % (sPD5 + 1, sPD3 + 1))
    p('s_lshl_b32 s%d, s%d, 5' % (sT0, sNTp)); p('s_add_u32 s%d, s%d, s%d' % (sT0, sT0, sRB)); p('s_mul_i32 s%d, s%d, 20480' % (sT0, sT0)); p('s_add_u32 s%d, s%d, %d' % (sT0, sT0, WP3))
    p('s_add_u32 s%d, s%d, s%d' % (sPD3, sPD3, sT0)); p('s_addc_u32 s%d, s%d, 0' % (sPD3 + 1, sPD3 + 1))
    p('s_mov_b32 s%d, 20480' % (sPD3 + 2)); p('s_mov_b32 s%d, 0x00020000' % (sPD3 + 3))
    p('s_mul_i32 s%d, s%d, %d' % (sT1, sRB, 128 * 1280)); p('s_add_u32 s%d, s%d, s%d' % (sT1, sT1, sP4))
    p('s_add_u32 s%d, s%d, s%d' % (sPS3, sPS3, sT1)); p('s_addc_u32 s%d, s%d, 0' % (sPS3 + 1, sPS3 + 1))
    p('s_sub_u32 s%d, %d, s%d' % (sPS3 + 2, 4096 * 1280, sT1)); p('s_mov_b32 s%d, 0x00020000' % (sPS3 + 3))
    p('s_mov_b32 s%d, 4096' % sP4)
    p('v_and_b32 v252, 63, v255'); p('v_lshrrev_b32 v253, 6, v255'); p('v_mul_u32_u24 v253, 320, v253'); p('v_add_u32 v252, v252, v253')
    p('v_lshlrev_b32 v255, 4, v252')
    p('v_mov_b32 v%d, v%d' % (vRW, cW))
    p('s_mov_b32 s%d, 0' % sRD); p('s_mov_b32 s%d, 4' % sCNT)
    stamp(p, 3, True)
    p.need(lambda t: t[0] == 'gs'); p('s_barrier')
    stamp(p, 4, True)
    for x in gs_reads(0) + gs_reads(1) + w_reads(0): p(x)
    for x in h_stream(0): p(x)
    stamp(p, 1); stamp(p, 5, True)
    if prof: p('s_waitcnt lgkmcnt(0)')
    segs.append(('once', p))

    RAMP = [[4, 5, 'w'], [6, 7, 'w'], [8, 9, 'w'], [10, 11, 'w'], [12, 'w', 'w', 'w'], [13, 'w', 'w', 'w'], [14, 'w', 'w', 'w'], [15, 'w', 'w', 'w']]
    def p1(it):
        q = Seq()
        peel = it == 0
        if not peel: q(L1 + ':')
        wn = 8
        for st in range(8):
            sg = 8 * it + st; c = sg >> 2
            b = sg & 1
            mf = ['%s %s, %s, %s, %s' % (MF, v(ACC(tg, t), 16), a(WF(b, t), 4), v(HB + (b * 2 + tg) * 4, 4), '0' if sg == 0 else v(ACC(tg, t), 16))
                  for t in range(4) for tg in range(2)]
            g = [[] for _ in range(8)]
            q.touch(a(WF(b, 0), 16) + ' ' + v(GB + 8 * ((sg + 1) & 1), 8) + ' ' + v(XR + ((sg + 1) & 7) * 8, 8))
            if st == 6: g[0].append('v_add_u32 v%d, 512, v%d' % (vGS, vGS))
            g[0] += gs_reads(sg + 2)
            if st & 3 == 2:
                if peel: g[2] += adv(sRD, sT1)
                else: g[5] += adv(sRD, sT1)[:2]; g[6] += adv(sRD, sT1)[2:]
            if st & 3 == 3:
                g[0] += [('NEED', lambda t, c=c: t[0] == 'dma' and t[1] <= c + 1), 's_barrier']
                g[0] += ['v_add_u32 v%d, s%d, v%d' % (vRW, sRD, cW)]
            wr = w_reads(sg + 1)
            if 'nowr' not in E2:
                for i in range(8): g[1 + i // 2].append(wr[i])
            if peel:
                ops = []
                for o in RAMP[st]:
                    if o == 'w':
                        pre = fill_begin() if wn & 3 == 0 else []
                        post = (fill_end() if wn != 23 else fill_end()[:4]) if wn & 3 == 3 else []
                        ops.append(pre + [fill_dma(wn & 3, wn >> 2)] + post); wn += 1
                    else:
                        xl = x_loads(o)
                        ops.append((['s_add_u32 s%d, s%d, 4096' % (sXOFF, sXOFF)] if o & 3 == 0 else []) + [xl[0]]); ops.append([xl[1]])
                for i, o in enumerate(ops): g[3 + i] += o
            else:
                xl = x_loads(sg + 8)
                if 'nox' not in E2: g[5].append(xl[0]); g[6].append(xl[1])
                if st & 3 == 0:
                    g[1].append('s_add_u32 s%d, s%d, 4096' % (sXOFF, sXOFF)); g[2].append(fill_end()[4]); g[6] += fill_begin()
                if st & 3 == 1: g[5] += fill_end()[:2]; g[6] += fill_end()[2:4]
                if 'nowq' not in E2: g[7].append(fill_dma(st & 3, c + 4))
                if st == 7:
                    g[6] += ['s_sub_u32 s%d, s%d, 1' % (sCNT, sCNT), 's_cmp_eq_u32 s%d, 1' % sCNT, 's_cselect_b32 s%d, 0, s%d' % (sXH + 2, sXH + 2)]
            if 'noh' not in E2: pack(g, h_stream(sg + 1), 0, 7)
            interleave(q, mf, g)
        if peel: return q
        q('s_cmp_eq_u32 s%d, 2' % sCNT); q('s_cbranch_scc0 %s' % L1s)
        for j in range(4):
            q('s_mov_b32 s%d, s%d' % (sFA + j, sK + j)); q('s_mov_b32 s%d, s%d' % (sFB2 + j, sV + j)); q('v_mov_b32 v%d, v%d' % (vF + j, vKV + j))
        q('s_mov_b32 s%d, 8192' % sFSTR); q('s_mov_b32 s%d, -8192' % sFOFF)
        q(L1s + ':')
        q('s_cmp_lg_u32 s%d, 0' % sCNT); q('s_cbranch_scc1 %s' % L1)
        return q
    segs.append(('once', p1(0)))
    segs.append(('loop', 4, lambda it: p1(it + 1)))

    def qcvt(tg):
        out = []
        for sd in range(8):
            for q in range(4):
                src = ACC(tg, sd >> 1) + 8 * (sd & 1) + 2 * q
                tm = TM + ((4 * sd + q) & 3)
                out.append('v_cvt_pk_bf16_f32 v%d, v%d, v%d' % (tm, src, src + 1))
                out.append('v_accvgpr_write_b32 a%d, v%d' % (QF(tg, sd) + q, tm))
        o2 = [out[0]]
        for i in range(2, len(out), 2): o2 += [out[i], out[i - 1]]
        return o2 + [out[-1]]
    def standin(tg):
        sb = S_ + 16 * tg; tm = TM + 4 + 2 * tg
        o = ['v_max3_f32 v%d, v%d, v%d, v%d' % (tm, sb, sb + 1, sb + 2), 'v_max3_f32 v%d, v%d, v%d, v%d' % (tm + 1, sb + 3, sb + 4, sb + 5)]
        for i, r_ in enumerate(range(6, 16, 2)): o.append('v_max3_f32 v%d, v%d, v%d, v%d' % (tm + (i & 1), tm + (i & 1), sb + r_, sb + r_ + 1))
        o += ['v_max_f32 v%d, v%d, v%d' % (tm, tm, tm + 1), 'v_mov_b32 v%d, v%d' % (tm + 1, tm), 'v_permlane32_swap_b32 v%d, v%d' % (tm, tm + 1),
              'v_max_f32 v%d, v%d, v%d' % (tm, tm, tm + 1), 'v_sub_f32 v%d, %s, v%d' % (tm, f32(-40.0), tm),
              'v_cndmask_b32 v%d, v%d, v%d, %s' % (tm, tm, vMX + tg, s(sFBM, 2))]
        o += ['v_add_f32 v%d, v%d, v%d' % (sb + r_, sb + r_, tm) for r_ in range(16)]
        return o
    def nmfill(tg): return ['v_mov_b32 v%d, v%d' % (NM + 16 * tg + r_, TM + 4 + 2 * tg) for r_ in range(16)]
    def enter(t_, main):
        t_('v_add_u32 v%d, s%d, v%d' % (vRK0, sRD, cK0)); t_('v_add_u32 v%d, s%d, v%d' % (vRK1, sRD, cK1)); t_('v_add_u32 v%d, s%d, v%d' % (vRV, sRD, cV))
        for sd in range(8): t_(k_read(sd))
        if main:
            fl = [fill_end()[4]]
            for u in (14, 15): fl += fill_begin() + [fill_dma(i, u) for i in range(4)] + fill_end()
            c0 = qcvt(0)
            for i, x in enumerate(c0):
                t_(x)
                if i % 3 == 2 and fl:
                    y = fl.pop(0); t_(*y) if isinstance(y, tuple) else t_(y)
            assert not fl
        t_('s_mov_b32 s%d, s%d' % (sRK, sRD))
        for x in adv(sRK, sT1): t_(x)
        t_('s_cmp_lg_u32 s%d, 0' % sFB); t_('s_cselect_b64 %s, -1, 0' % s(sFBM, 2))
        g = [[] for _ in range(16)]
        for f in range(8): g[f] += v_reads(f)
        g[0] += ['v_add_u32 v%d, s%d, v%d' % (vRK0, sRK, cK0), 'v_add_u32 v%d, s%d, v%d' % (vRK1, sRK, cK1)]
        if main:
            pack(g, qcvt(1), 0, 7)
            g[7] += [('NEED', lambda t: t[0] == 'dma' and t[1] <= 11), 's_barrier']
        for sd in range(8): g[8 + sd].append(k_read(sd))
        g[8] += ['v_mov_b32 v%d, 0' % (LA + i) for i in range(4)]
        sm = softmax(0)
        pack(g, standin(0) + sm[:SMX], 10, 15)
        interleave(t_, s_mfma(0, True) + s_mfma(1, True), g)
        for x in sm[SMX:]: t_(x)
        t_('s_mov_b32 s%d, %d' % (sCNT, PA))
    SMX = int(os.environ.get('SMX', 10))
    t_ = Seq()
    stamp(t_, 2)
    enter(t_, True)
    stamp(t_, 3)
    if prof: t_('s_waitcnt lgkmcnt(0)')
    t_(Lent + ':')
    segs.append(('once', t_))

    def pk_loads():
        o = []
        for j in range(5):
            ta, tb = TM + 2 * (j & 1), TM + 2 * (j & 1) + 1
            o += ['v_add_u32 v%d, %d, v252' % (ta, 64 * j), 'v_mul_u32_u24 v%d, 6554, v%d' % (tb, ta), 'v_lshrrev_b32 v%d, 16, v%d' % (tb, tb),
                  'v_mul_u32_u24 v%d, 1120, v%d' % (tb, tb), 'v_lshl_add_u32 v%d, v%d, 4, v%d' % (tb, ta, tb),
                  ('buffer_load_dwordx4 %s, v%d, %s, 0 offen' % (a(aPK + 4 * j, 4), tb, s(sPS3, 4)), None),
                  ('buffer_load_dwordx4 %s, v%d, %s, 0 offen' % (a(aPK + 20 + 4 * j, 4), tb, s(sPS5, 4)), None)]
        return o
    def pk_stores():
        return [('buffer_store_dwordx4 %s, v255, %s, %s offen offset:%d%s' % (a(aPK + b + 4 * j, 4), s(d, 4), 's%d' % sP4 if j == 4 else '0', (j & 3) * 1024, PKMOD), None)
                for j in range(5) for d, b in ((sPD3, 0), (sPD5, 20))]
    def p2(j, first=False, last=False, loop=None, job=None, cnt=None):
        q = Seq()
        if loop: q(loop + ':')
        g = [[] for _ in range(32)]
        q('s_waitcnt lgkmcnt(8)')
        if last:
            mf = pv_mfma(0) + pv_mfma(1)
            pack(g, softmax(1), 0, 7)
            interleave(q, mf, g)
            return q
        mf = pv_mfma(0, first) + s_mfma(0) + pv_mfma(1, first) + s_mfma(1)
        if j + 6 < 16:
            g[0] += fill_begin()
            for i in range(4): g[1 + i] += [] if 'nokv' in E2 else [fill_dma(i, j + 16)]
            fe = fill_end()
            g[5] += fe[:2]; g[6] += fe[2:4]; g[7] += fe[4:]
        g[8].append('v_add_u32 v%d, s%d, v%d' % (vRV, sRK, cV))
        ad = adv(sRK, sT1)
        g[9] += ad[:2]; g[10] += ad[2:]
        g[11] += ['v_add_u32 v%d, s%d, v%d' % (vRK0, sRK, cK0)]; g[12] += ['v_add_u32 v%d, s%d, v%d' % (vRK1, sRK, cK1)]
        if loop: g[13] += ['s_sub_u32 s%d, s%d, 1' % (sCNT, sCNT)]
        if cnt: g[13] += ['s_mov_b32 s%d, %d' % (sCNT, cnt)]
        for f in range(8): g[16 + f] += [] if 'novr' in E2 else v_reads(f)
        g[15] += [('NEED', lambda t, j=j: t[0] == 'dma' and t[1] <= j + 12)] + ([] if 'nobar' in E2 else ['s_barrier'])
        for sd in range(8): g[24 + sd] += [] if 'nokr' in E2 else [k_read(sd)]
        if job and 'nojob' not in E2:
            jb = job(); n = len(jb)
            for i, x in enumerate(jb): g[8 + (i * 22) // n].append(x)
        if first:
            pack(g, nmfill(0), 0, 6)
            pack(g, standin(1) + softmax(1), 0, 15)
            pack(g, nmfill(1), 16, 22)
        else:
            pack(g, softmax(1), 2, 15)
        g[7].append('s_waitcnt lgkmcnt(0)')
        pack(g, softmax(0), 18, 31)
        if loop: g[31].append('s_cmp_lg_u32 s%d, 0' % sCNT)
        interleave(q, mf, g)
        if loop: q('s_cbranch_scc1 %s' % loop)
        return q
    assert PA + PB + PC == 12
    segs.append(('once', p2(0, first=True)))
    segs.append(('loop', PA, lambda it: p2(it + 1, loop=L2)))
    segs.append(('once', p2(PA + 1, job=pk_loads, cnt=PB)))
    segs.append(('loop', PB, lambda it: p2(it + PA + 2, loop=Lpk)))
    segs.append(('once', p2(PA + PB + 2, job=pk_stores, cnt=PC)))
    segs.append(('loop', PC, lambda it: p2(it + PA + PB + 3, loop=Lps)))
    segs.append(('once', p2(15, last=True)))

    e = Seq()
    stamp(e, 4)
    e('s_lshl_b32 s%d, s%d, 14' % (sT0, sHEAD))
    for tg in range(2):
        la = LA + 2 * tg
        e('v_add_f32 v%d, v%d, v%d' % (la, la, la + 1)); e('v_mov_b32 v%d, v%d' % (la + 1, la))
        e('v_permlane32_swap_b32 v%d, v%d' % (la, la + 1)); e('v_add_f32 v%d, v%d, v%d' % (la, la, la + 1))
        e('v_rcp_f32 v%d, v%d' % (TM + 2 * tg, la))
    n = 0
    for t in range(4):
        for tg in range(2):
            for c in range(2):
                src = ACC(tg, t) + 8 * c
                dst = S_ + 4 * (n & 7); n += 1
                for q in range(4):
                    e('v_pk_mul_f32 %s, %s, %s op_sel_hi:[1,0]' % (v(src + 2 * q, 2), v(src + 2 * q, 2), v(TM + 2 * tg, 2)))
                for q in range(4):
                    e('v_cvt_pk_bf16_f32 v%d, v%d, v%d' % (dst + q, src + 2 * q, src + 2 * q + 1))
                e('buffer_store_dwordx4 %s, v%d, %s, s%d offen offset:%d%s' % (v(dst, 4), vO, s(sOB, 4), sT0, tg * 2048 + c * 512, OMOD))
        if t < 3: e('s_add_u32 s%d, s%d, 4096' % (sT0, sT0))
    e('s_mov_b32 s%d, %s' % (sT1, f32(2.0 ** 64)))
    e('v_cmp_lt_f32 vcc, v%d, s%d' % (LA, sT1)); e('v_cndmask_b32 v%d, 1, 0, vcc' % TM)
    e('v_cmp_lt_f32 vcc, v%d, s%d' % (LA + 2, sT1)); e('v_cndmask_b32 v%d, 1, v%d, vcc' % (TM, TM))
    e('v_cmp_ne_u32 vcc, 0, v%d' % TM); e('s_cmp_lg_u64 vcc, 0'); e('s_cselect_b32 s%d, 1, 0' % sT1)
    e('s_lshl_b32 s%d, s%d, 2' % (sT0, sW)); e('s_add_u32 s%d, s%d, %d' % (sT0, sT0, FLAGOFF))
    e('v_mov_b32 v%d, s%d' % (TM, sT0)); e('v_mov_b32 v%d, s%d' % (TM + 1, sT1)); e('ds_write_b32 v%d, v%d' % (TM, TM + 1))
    e('v_mov_b32 v%d, %d' % (TM + 2, FLAGOFF))
    e('s_waitcnt lgkmcnt(0)'); e('s_barrier')
    e('ds_read_b128 %s, v%d' % (v(TM + 4, 4), TM + 2))
    e('v_or_b32 v%d, v%d, v%d' % (TM, TM + 4, TM + 5)); e('v_or3_b32 v%d, v%d, v%d, v%d' % (TM, TM, TM + 6, TM + 7))
    e('v_readfirstlane_b32 s%d, v%d' % (sT1, TM))
    if prof:
        stamp(e, 5); e('s_waitcnt vmcnt(0)'); stamp(e, 6); e('s_memrealtime s[78:79]'); e('s_waitcnt lgkmcnt(0)')
        e('s_add_u32 s80, s80, %d' % PROF); e('s_addc_u32 s81, s81, 0'); e('s_mov_b32 s82, 0x100000'); e('s_mov_b32 s83, 0x00020000')
        e('s_lshl_b32 s84, s2, 2'); e('s_add_u32 s84, s84, s%d' % sW); e('s_lshl_b32 s84, s84, 6')
        for i in range(10): e('v_mov_b32 v%d, s%d' % (i, 60 + 2 * i))
        e('v_mov_b32 v10, s%d' % sT1); e('v_mov_b32 v11, s%d' % sFB); e('v_mov_b32 v12, 0')
        for i in range(3): e('buffer_store_dwordx4 %s, v12, s[80:83], s84 offen offset:%d' % (v(4 * i, 4), 16 * i))
    e('s_cmp_eq_u32 s%d, 0' % sT1); e('s_cbranch_scc1 %s' % Lend)
    e('s_cmp_lg_u32 s%d, 0' % sFB); e('s_cbranch_scc1 %s' % Lend)
    e('s_mov_b32 s%d, 1' % sFB)
    e('s_waitcnt vmcnt(0) lgkmcnt(0)')
    e('s_mov_b32 s%d, 0' % sFOFF); e('s_mov_b32 s%d, 16' % sCNT); e('s_mov_b32 m0, s%d' % sW44)
    e('v_mov_b32 v%d, 0xff800000' % TM); e('v_mov_b32 v%d, 0xff800000' % (TM + 2))
    e('v_mov_b32 v%d, v%d' % (vRK0, cK0)); e('v_mov_b32 v%d, v%d' % (vRK1, cK1))
    e(Lmx + ':')
    e('s_barrier')
    for i in range(2): e(*fill_dma(i, 0))
    e('s_add_u32 s%d, s%d, 8192' % (sFOFF, sFOFF))
    e('s_waitcnt vmcnt(0)'); e('s_barrier')
    for sd in range(8): e(k_read(sd))
    e('s_waitcnt lgkmcnt(0)')
    for tg in range(2):
        for x in s_mfma(tg, True): e(x)
    for tg in range(2):
        sb = S_ + 16 * tg; tm = TM + 2 * tg
        for r_ in range(0, 16, 2): e('v_max3_f32 v%d, v%d, v%d, v%d' % (tm, tm, sb + r_, sb + r_ + 1))
    e('s_sub_u32 s%d, s%d, 1' % (sCNT, sCNT)); e('s_cmp_lg_u32 s%d, 0' % sCNT); e('s_cbranch_scc1 %s' % Lmx)
    for tg in range(2):
        tm = TM + 2 * tg
        e('v_mov_b32 v%d, v%d' % (tm + 1, tm)); e('v_permlane32_swap_b32 v%d, v%d' % (tm, tm + 1)); e('v_max_f32 v%d, v%d, v%d' % (tm, tm, tm + 1))
        e('v_sub_f32 v%d, 0, v%d' % (vMX + tg, tm))
    e('s_barrier')
    e('s_mov_b32 s%d, 0' % sFOFF); e('s_mov_b32 s%d, 0' % sFILL); e('s_mov_b32 s%d, 0' % sRD)
    for u in range(6):
        for x in fill_begin(): e(x)
        for i in range(4): e(*fill_dma(i, 0))
        for x in fill_end(): e(x)
    e('s_waitcnt vmcnt(0)'); e('s_barrier')
    enter(e, False)
    e('s_waitcnt vmcnt(0) lgkmcnt(0)')
    e('s_branch %s' % Lent)
    e(Lend + ':'); e('s_endpgm')
    segs.append(('once', e))
    assemble(k, segs)
    return k
```

```python
from asmlib import *
from layout import *
import struct
def f32(x): return '0x%08x' % struct.unpack('<I', struct.pack('<f', x))[0]

def srd(k, sb, off, size, add=0):
    if add:
        k('s_add_u32 s%d, s%d, %d' % (sb, sb, add)); k('s_addc_u32 s%d, s%d, 0' % (sb + 1, sb + 1))
    k('s_mov_b32 s%d, %d' % (sb + 2, size)); k('s_mov_b32 s%d, 0x00020000' % (sb + 3))

import os
PFW = int(os.environ.get('PFW', 64))
PFKV = int(os.environ.get('PFKV', 0))
def touches(k):
    n = 0
    if PFW:
        per = 2048 // PFW; tot = 20 * per
        k('s_mov_b32 s26, %d' % (640 * 8192)); k('s_mov_b32 s27, 0x00020000')
        k('s_lshr_b32 s28, s2, 3'); k('s_mul_i32 s28, s28, %d' % (20 * 8192)); k('s_bfe_u32 s29, s2, 0x20001'); k('s_lshl_b32 s29, s29, 11'); k('s_add_u32 s28, s28, s29')
        for i in range((tot + 255) // 256):
            k('v_add_u32 v90, %d, v0' % (256 * i)); k('v_min_u32 v90, %d, v90' % (tot - 1))
            k('v_lshrrev_b32 v91, %d, v90' % (per.bit_length() - 1)); k('v_and_b32 v90, %d, v90' % (per - 1))
            k('v_lshlrev_b32 v91, 13, v91'); k('v_lshl_add_u32 v%d, v90, %d, v91' % (92 + (i & 1), PFW.bit_length() - 1))
            k('buffer_load_dword v94, v%d, s[24:27], s28 offen' % (92 + (i & 1))); n += 1
    if PFKV:
        k('s_bfe_u32 s29, s2, 0x20001'); k('s_lshl_b32 s29, s29, 3'); k('s_lshr_b32 s28, s2, 5'); k('s_add_u32 s28, s28, s29'); k('s_lshl_b32 s28, s28, 19')
        k('s_bfe_u32 s29, s2, 0x20003'); k('s_lshl_b32 s29, s29, 15'); k('s_add_u32 s28, s28, s29'); k('s_add_u32 s28, s28, 393216')
        k('v_mul_u32_u24 v95, %d, v0' % PFKV)
        for b in (32, 36):
            k('s_mov_b32 s%d, %d' % (b + 2, 32 << 19)); k('s_mov_b32 s%d, 0x00020000' % (b + 3))
        for i in range(32768 // (256 * PFKV)):
            for b in (32, 36):
                k('buffer_load_dword v94, v95, s[%d:%d], s28 offen' % (b, b + 3)); n += 1
            k('s_add_u32 s28, s28, %d' % (256 * PFKV))
    return n

def gen_k1(prof=False):
    k0 = K('prep_kernel', vgprs=96)
    class KK:
        def __call__(self, t):
            if prof and t == 's_endpgm':
                k0('s_mov_b64 exec, -1'); k0('s_waitcnt vmcnt(0)'); k0('s_memrealtime s[42:43]'); k0('s_waitcnt lgkmcnt(0)')
                k0('s_add_u32 s44, s44, %d' % (0x3000000 + 4 * 65536)); k0('s_addc_u32 s45, s45, 0'); k0('s_mov_b32 s46, 0x10000'); k0('s_mov_b32 s47, 0x00020000')
                k0('v_lshrrev_b32 v0, 6, v0'); k0('v_lshlrev_b32 v0, 3, v0'); k0('s_lshl_b32 s48, s2, 5'); k0('v_mov_b32 v2, s40'); k0('v_mov_b32 v3, s42')
                k0('buffer_store_dwordx2 v[2:3], v0, s[44:47], s48 offen')
            k0(t)
        def label(self, x): return k0.label(x)
        def place(self, x): return k0.place(x)
    k = KK()
    if prof: k('s_memrealtime s[40:41]'); k('s_load_dwordx2 s[44:45], s[0:1], %d' % KA['ws'])
    Lln, Lend = k.label('ln'), k.label('end')
    k('s_cmp_ge_u32 s2, 256'); k('s_cbranch_scc1 %s' % Lend)
    k('s_load_dwordx2 s[12:13], s[0:1], %d' % KA['ws'])
    k('s_load_dwordx2 s[24:25], s[0:1], %d' % KA['wq'])
    if PFKV: k('s_load_dwordx2 s[32:33], s[0:1], %d' % KA['k']); k('s_load_dwordx2 s[36:37], s[0:1], %d' % KA['v'])
    Lt = k.label('t')
    k('s_cmp_ge_u32 s2, 128'); k('s_cbranch_scc1 %s' % Lln)
    k('s_load_dwordx2 s[4:5], s[0:1], %d' % KA['c'])
    k('s_load_dwordx2 s[8:9], s[0:1], %d' % KA['wmod'])
    k('s_and_b32 s16, s2, 7'); k('s_lshr_b32 s17, s2, 3')
    k('s_lshr_b32 s18, s17, 1'); k('s_lshl_b32 s18, s18, 4'); k('s_lshl_b32 s16, s16, 1'); k('s_add_u32 s18, s18, s16')
    k('s_and_b32 s17, s17, 1'); k('s_add_u32 s18, s18, s17')
    k('s_cmp_ge_u32 s18, 120'); k('s_cbranch_scc1 %s' % Lt)
    k('v_lshrrev_b32 v1, 2, v0')
    k('v_and_b32 v2, 3, v0')
    k('v_lshlrev_b32 v3, 1, v1')
    k('v_mul_u32_u24 v4, 7680, v1'); k('v_lshl_add_u32 v4, v2, 4, v4')
    k('s_lshl_b32 s19, s18, 6')
    k('s_waitcnt lgkmcnt(0)')
    srd(k, 4, 0, 1280); srd(k, 8, 0, 640 * 7680); srd(k, 12, 0, GS + 2560)
    for i in range(10):
        k('buffer_load_ushort v%d, v3, s[4:7], 0 offen offset:%d' % (8 + i, 128 * i))
    for i in range(10):
        k('buffer_load_dwordx4 %s, v4, s[8:11], s19 offen' % v(20 + 4 * i, 4))
        if i < 9: k('s_add_u32 s19, s19, %d' % (64 * 7680))
    nt = touches(k)
    k('s_waitcnt vmcnt(%d)' % (10 + nt))
    for i in range(10):
        c = 8 + i
        k('v_lshlrev_b32 v%d, 16, v%d' % (c, c))
        k('v_mul_f32 v60, %s, v%d' % (f32(-1.4426950408889634), c))
        k('v_exp_f32 v60, v60'); k('v_add_f32 v60, 1.0, v60'); k('v_rcp_f32 v60, v60')
        k('v_mul_f32 v60, v60, v%d' % c)
        k('v_cvt_pk_bf16_f32 v60, v60, v60'); k('v_lshlrev_b32 v%d, 16, v60' % c)
    for j in range(8): k('v_mov_b32 v%d, 0' % (64 + j))
    for i in range(10):
        k('s_waitcnt vmcnt(%d)' % (9 - i + nt))
        for j in range(4):
            w = 20 + 4 * i + j
            k('v_lshlrev_b32 v60, 16, v%d' % w); k('v_and_b32 v61, 0xffff0000, v%d' % w)
            k('v_fmac_f32 v%d, v60, v%d' % (64 + 2 * j, 8 + i)); k('v_fmac_f32 v%d, v61, v%d' % (65 + 2 * j, 8 + i))
    for sh in (4, 8):
        for j in range(8):
            k('v_add_f32_dpp v%d, v%d, v%d row_ror:%d row_mask:0xf bank_mask:0xf' % (72 + j, 64 + j, 64 + j, sh))
        for j in range(8): k('v_mov_b32 v%d, v%d' % (64 + j, 72 + j))
    k('v_lshrrev_b32 v5, 4, v0'); k('v_lshlrev_b32 v5, 7, v5'); k('v_lshl_add_u32 v5, v2, 5, v5')
    k('v_and_b32 v6, 15, v0'); k('v_cmp_gt_u32 vcc, 4, v6'); k('s_and_saveexec_b64 s[20:21], vcc')
    k('ds_write_b128 v5, v[64:67]'); k('ds_write_b128 v5, v[68:71] offset:16')
    k('s_mov_b64 exec, s[20:21]')
    k('s_waitcnt lgkmcnt(0)'); k('s_barrier')
    k('v_cmp_gt_u32 vcc, 32, v0'); k('s_and_saveexec_b64 s[20:21], vcc'); k('s_cbranch_execz %s' % Lend)
    k('v_lshlrev_b32 v5, 2, v0')
    for j in range(16): k('ds_read_b32 v%d, v5 offset:%d' % (20 + j, 128 * j))
    k('s_waitcnt lgkmcnt(0)')
    for st in (8, 4, 2, 1):
        for j in range(st): k('v_add_f32 v%d, v%d, v%d' % (20 + j, 20 + j, 20 + j + st))
    k('v_cvt_pk_bf16_f32 v20, v20, v20'); k('v_lshlrev_b32 v20, 16, v20')
    k('s_sub_u32 s22, s18, 20'); k('s_cmp_lt_u32 s22, 20'); k('s_cselect_b32 s23, 1, 0')
    k('s_sub_u32 s22, s18, 80'); k('s_cmp_lt_u32 s22, 20'); k('s_cselect_b32 s23, 1, s23')
    Lno = k.label('no1')
    k('s_cmp_eq_u32 s23, 0'); k('s_cbranch_scc1 %s' % Lno)
    k('v_add_f32 v20, 1.0, v20'); k('v_cvt_pk_bf16_f32 v20, v20, v20'); k('v_lshlrev_b32 v20, 16, v20')
    k.place(Lno)
    k('s_lshl_b32 s19, s18, 7')
    k('buffer_store_dword v20, v5, s[12:15], s19 offen')
    k('s_cmp_ge_u32 s18, 40'); k('s_cbranch_scc1 %s' % Lend)
    k('s_cmp_lt_u32 s18, 20'); k('s_cselect_b32 s22, %s, 1.0' % f32(QSCALE)); k('s_mov_b32 s23, %d' % (GS - 20 * 128)); k('s_cselect_b32 s23, %d, s23' % (GS + 16))
    k('s_add_u32 s19, s19, s23')
    k('v_mul_f32 v21, s22, v20'); k('v_cvt_f16_f32 v21, v21')
    k('v_lshrrev_b32 v6, 3, v0'); k('v_lshlrev_b32 v6, 5, v6'); k('v_and_b32 v7, 7, v0'); k('v_lshl_add_u32 v6, v7, 1, v6')
    k('buffer_store_short v21, v6, s[12:15], s19 offen')
    k('s_endpgm')
    k.place(Lln)
    k('s_load_dwordx2 s[4:5], s[0:1], %d' % KA['x'])
    k('s_and_b32 s16, s2, 7'); k('s_lshl_b32 s16, s16, 4'); k('s_bfe_u32 s17, s2, 0x40003'); k('s_add_u32 s16, s16, s17')
    k('v_and_b32 v1, 15, v0')
    k('v_bfe_u32 v2, v0, 4, 2')
    k('v_lshrrev_b32 v3, 6, v0')
    k('v_mul_u32_u24 v4, 1280, v1'); k('v_mul_u32_u24 v5, 320, v3'); k('v_add_u32 v4, v4, v5'); k('v_lshl_add_u32 v4, v2, 4, v4')
    k('s_mul_i32 s17, s16, %d' % (16 * 1280))
    k('s_waitcnt lgkmcnt(0)')
    srd(k, 4, 0, T * 1280); srd(k, 12, 0, 64 * 40960, add=XH)
    for i in range(5):
        k('buffer_load_dwordx4 %s, v4, s[4:7], s17 offen offset:%d' % (v(8 + 4 * i, 4), 64 * i))
    nt = touches(k)
    k('v_mul_u32_u24 v5, 10240, v3'); k('v_lshl_add_u32 v5, v2, 9, v5'); k('v_lshl_add_u32 v5, v1, 4, v5')
    k('s_and_b32 s18, s16, 1'); k('s_lshl_b32 s18, s18, 8'); k('s_lshr_b32 s19, s16, 1'); k('s_mul_i32 s19, s19, 40960'); k('s_add_u32 s19, s19, s18')
    k('v_lshlrev_b32 v6, 3, v1'); k('v_lshl_add_u32 v7, v3, 7, v6')
    for j in range(4): k('v_mov_b32 v%d, 0' % (72 + j))
    for i in range(5):
        k('s_waitcnt vmcnt(%d)' % (4 - i + nt))
        for j in range(4):
            w = 8 + 4 * i + j; d = 32 + 8 * i + 2 * j
            k('v_lshlrev_b32 v%d, 16, v%d' % (d, w)); k('v_and_b32 v%d, 0xffff0000, v%d' % (d + 1, w))
            k('v_pk_add_f32 v[72:73], v[72:73], %s' % v(d, 2))
            k('v_pk_fma_f32 v[74:75], %s, %s, v[74:75]' % (v(d, 2), v(d, 2)))
    k('v_add_f32 v72, v72, v73'); k('v_add_f32 v73, v74, v75')
    for sw in ('v_permlane32_swap_b32', 'v_permlane16_swap_b32'):
        k('v_mov_b32 v74, v72'); k('v_mov_b32 v75, v73')
        k('%s v72, v74' % sw); k('%s v73, v75' % sw)
        k('v_add_f32 v72, v72, v74'); k('v_add_f32 v73, v73, v75')
    k('ds_write_b64 v7, v[72:73]')
    k('s_waitcnt lgkmcnt(0)'); k('s_barrier')
    for j in range(4): k('ds_read_b64 %s, v6 offset:%d' % (v(76 + 2 * j, 2), 128 * j))
    k('s_waitcnt lgkmcnt(0)')
    k('v_pk_add_f32 v[76:77], v[76:77], v[78:79]'); k('v_pk_add_f32 v[80:81], v[80:81], v[82:83]'); k('v_pk_add_f32 v[76:77], v[76:77], v[80:81]')
    k('v_mul_f32 v76, %s, v76' % f32(1.0 / 640))
    k('v_mul_f32 v77, %s, v77' % f32(1.0 / 640))
    k('v_fma_f32 v77, -v76, v76, v77'); k('v_max_f32 v77, 0, v77'); k('v_add_f32 v77, %s, v77' % f32(1e-5))
    k('v_rsq_f32 v78, v77')
    k('v_mul_f32 v78, %s, v78' % f32(QSCALE))
    k('v_mul_f32 v80, -v76, v78')
    for i in range(5):
        for j in range(4):
            w = 8 + 4 * i + j; d = 32 + 8 * i + 2 * j
            k('v_pk_fma_f32 %s, %s, v[78:79], v[80:81] op_sel_hi:[1,0,0]' % (v(d, 2), v(d, 2)))
            k('v_cvt_pk_f16_f32 v%d, v%d, v%d' % (w, d, d + 1))
        k('buffer_store_dwordx4 %s, v5, s[12:15], s19 offen' % v(8 + 4 * i, 4))
        if i < 4: k('s_add_u32 s19, s19, 2048')
    k('s_endpgm')
    k.place(Lt)
    k('s_waitcnt lgkmcnt(0)')
    touches(k)
    k.place(Lend)
    k('s_endpgm')
    return k0
```

```python
from asmlib import *
from layout import *
from sched import *
from k1 import f32, srd

BLK, WST = 1088, 4480
SLOT = 4 * WST
R = 7
GSOFF = R * SLOT
FLAGOFF = GSOFF + 4096
K2_LDS = FLAGOFF + 64
MF = 'v_mfma_f32_32x32x16_bf16'

def ACC(tg, t): return (tg * 4 + t) * 16
XR = 128
HB = 192
GB = 208
TM = 224
S_ = 128
NM = 160
P_ = 192
LA = 208
vF = 232
vKV = 236
vX0, vX1 = 240, 241
cW, cK0, cK1, cV = 242, 243, 244, 245
vRW, vRK0, vRK1, vRV = 246, 247, 248, 249
vGS, vO = 250, 251
def QF(tg, s): return (tg * 8 + s) * 4
def KF(s): return 64 + 4 * s
def VF(f): return 96 + 4 * f
def WF(b, t): return 128 + 16 * b + 4 * t
sWQ, sK, sV, sXH, sOB, sGS = 4, 8, 12, 16, 20, 24
sW, sFILL, sRD, sFOFF, sXOFF, sCNT, sHEAD, sQB, sFB, sT0, sT1, sW44, sFSTR, sRV, sRK = 28, 29, 30, 31, 32, 33, 34, 35, 36, 37, 38, 39, 40, 41, 42
sFA, sFB2 = 44, 48
sPS3, sPS5, sPD3, sPD5, sP4 = 84, 88, 92, 96, 100
aPK = 160
sFBM = 52
vMX = 253
import os
PA, PB, PC = [int(x) for x in os.environ.get('PABC', '2,5,5').split(',')]
PKMOD = os.environ.get('PKMOD', ' sc1')
OMOD = os.environ.get('OMOD', ' sc1')
E2 = os.environ.get('E2', '').split(',')

COST = {'v_exp': 8}
def cost(t):
    if isinstance(t, tuple):
        if t[0] in ('NEED', 'TOUCH'): return 4
        t = t[0]
    return 8 if t.startswith(('v_exp', 'v_rcp')) else 4

def pack(gaps, stream, g0, g1):
    n = g1 - g0 + 1
    tot = sum(cost(x) for x in stream) + sum(cost(x) for g in range(g0, g1 + 1) for x in gaps[g])
    i = 0; cum = 0
    for q, g in enumerate(range(g0, g1 + 1)):
        cum += sum(cost(x) for x in gaps[g])
        lim = tot * (q + 1) / n
        while i < len(stream) and (cum + cost(stream[i]) / 2 <= lim or g == g1):
            gaps[g].append(stream[i]); cum += cost(stream[i]); i += 1
    assert i == len(stream)

def fill_dma(i, u):
    srdr = sFA if i < 2 else sFB2
    return ('buffer_load_dwordx4 v%d, %s, s%d offen offset:%d lds' % (vF + i, s(srdr, 4), sFOFF, i * BLK), ('dma', u))

def adv(sreg, tmp):
    return ['s_add_u32 s%d, s%d, %d' % (sreg, sreg, SLOT), 's_cmp_ge_u32 s%d, %d' % (sreg, R * SLOT),
            's_cselect_b32 s%d, %d, 0' % (tmp, R * SLOT), 's_sub_u32 s%d, s%d, s%d' % (sreg, sreg, tmp)]

def h_stream(s1):
    out = []
    gb = GB + 8 * (s1 & 1)
    n = 0
    for tg in range(2):
        x = XR + ((s1 & 7) * 2 + tg) * 4
        h = HB + ((s1 & 1) * 2 + tg) * 4
        for q in range(4):
            t0 = TM + 2 * (n & 3); n += 1
            out.append('v_fma_mix_f32 v%d, v%d, v%d, v%d op_sel:[0,0,0] op_sel_hi:[1,1,1]' % (t0, x + q, gb + q, gb + 4 + q))
            out.append('v_fma_mix_f32 v%d, v%d, v%d, v%d op_sel:[1,1,1] op_sel_hi:[1,1,1]' % (t0 + 1, x + q, gb + q, gb + 4 + q))
            out.append('v_cvt_pk_bf16_f32 v%d, v%d, v%d' % (h + q, t0, t0 + 1))
    o2 = []
    for i in range(0, len(out), 3):
        o2 += out[i:i + 2]
        if i >= 3: o2.append(out[i - 1])
    o2.append(out[-1])
    return o2

def w_reads(s1):
    b = s1 & 1; sl = s1 & 3
    return ['ds_read_b64_tr_b16 %s, v%d offset:%d' % (a(WF(b, t) + 2 * jh, 2), vRW, sl * WST + jh * 256 + t * 64)
            for t in range(4) for jh in range(2)]
def gs_reads(s2):
    gb = GB + 8 * (s2 & 1)
    return ['ds_read_b128 %s, v%d offset:%d' % (v(gb + 4 * h, 4), vGS, (s2 & 7) * 64 + h * 16) for h in range(2)]
def x_loads(s8):
    return [('buffer_load_dwordx4 %s, v%d, %s, s%d offen offset:%d' % (v(XR + ((s8 & 7) * 2 + tg) * 4, 4), vX0 + tg, s(sXH, 4), sXOFF, (s8 & 3) * 1024), None)
            for tg in range(2)]
def k_read(sd):
    return 'ds_read_b128 %s, v%d offset:%d' % (a(KF(sd), 4), vRK0 + (sd & 1), (sd >> 1) * 64)
def v_reads(f):
    sp, t = f >> 2, f & 3
    return ['ds_read_b64_tr_b16 %s, v%d offset:%d' % (a(VF(f) + 2 * jh, 2), vRV, sp * 2 * WST + jh * 512 + t * 64) for jh in range(2)]
def softmax(tg):
    sb = S_ + 16 * tg
    out = []
    def E(r): return 'v_exp_f32 v%d, v%d' % (sb + r, sb + r)
    def C(q): return 'v_cvt_pk_bf16_f32 v%d, v%d, v%d' % (P_ + 8 * tg + q, sb + 2 * q, sb + 2 * q + 1)
    def A(r): return 'v_add_f32 v%d, v%d, v%d' % (LA + 2 * tg + (r & 1), LA + 2 * tg + (r & 1), sb + r)
    for q in range(9):
        if q < 8 and 'noexp' not in E2: out += [E(2 * q), E(2 * q + 1)]
        if q > 0:
            out += [C(q - 1)]
            if 'noadd' in E2: pass
            elif 'pkadd' not in E2: out += [A(2 * q - 2), A(2 * q - 1)]
            else: out += ['v_pk_add_f32 %s, %s, %s' % (v(LA + 2 * tg, 2), v(LA + 2 * tg, 2), v(sb + 2 * q - 2, 2))]
    return out
def s_mfma(tg, czero=False):
    d = v(S_ + 16 * tg, 16)
    return ['%s %s, %s, %s, %s' % (MF, d, a(KF(sd), 4), a(QF(tg, sd), 4), (('0' if czero else v(NM + 16 * tg, 16)) if sd == 0 else d)) for sd in range(8)]
def pv_mfma(tg, first=False):
    return ['%s %s, %s, %s, %s' % (MF, v(ACC(tg, f & 3), 16), a(VF(f), 4), v(P_ + 8 * tg + 4 * (f >> 2), 4),
                                   '0' if (first and f < 4) else v(ACC(tg, f & 3), 16)) for f in range(8)]

PROF = 0x3000000
def gen_k2(prof=False):
    def stamp(q, i, pro=False):
        if 'pro' in E2 and i in (1, 2, 3, 4, 5) and not pro: return
        if pro and 'pro' not in E2: return
        if prof: q('s_memtime s[%d:%d]' % (60 + 2 * i, 61 + 2 * i))

    k = K('attn_kernel', vgprs=256, agprs=200)
    Lend, L1, L1s, L2, Lent, Lnom, Lfb, Lmx = [k.label(x) for x in ('end', 'p1', 'p1s', 'p2', 'ent', 'nom', 'fb', 'mx')]
    L2e, Lpk, Lps = k.label('p2e'), k.label('pk'), k.label('ps')
    segs = []
    p = Seq()
    p('s_cmp_ge_u32 s2, 256'); p('s_cbranch_scc1 %s' % Lend)
    stamp(p, 0)
    if prof: p('s_memrealtime s[76:77]'); p('s_load_dwordx2 s[80:81], s[0:1], %d' % KA['ws'])
    p('s_load_dwordx2 s[%d:%d], s[0:1], %d' % (sWQ, sWQ + 1, KA['wq']))
    p('s_load_dwordx4 s[%d:%d], s[0:1], %d' % (sFA, sFA + 3, KA['k']))
    p('s_load_dwordx2 s[%d:%d], s[0:1], %d' % (sGS, sGS + 1, KA['ws']))
    p('s_load_dwordx2 s[%d:%d], s[0:1], %d' % (sPS3, sPS3 + 1, KA['wo'])); p('s_load_dwordx2 s[%d:%d], s[0:1], %d' % (sPS5, sPS5 + 1, KA['w2']))
    p('v_lshrrev_b32 v1, 6, v0'); p('v_and_b32 v2, 63, v0')
    p('v_mov_b32 v255, v0')
    p('v_readfirstlane_b32 s%d, v1' % sW)
    p('s_and_b32 s%d, s2, 7' % sT0); p('s_lshr_b32 s%d, s2, 3' % sT1)
    p('s_and_b32 s%d, s%d, 1' % (sQB, sT0)); p('s_lshl_b32 s%d, s%d, 2' % (sQB, sQB)); p('s_and_b32 s%d, s%d, 3' % (sCNT, sT1)); p('s_add_u32 s%d, s%d, s%d' % (sQB, sQB, sCNT))
    p('s_lshr_b32 s%d, s%d, 1' % (sHEAD, sT0)); p('s_lshl_b32 s%d, s%d, 3' % (sHEAD, sHEAD)); p('s_lshr_b32 s%d, s%d, 2' % (sT1, sT1)); p('s_add_u32 s%d, s%d, s%d' % (sHEAD, sHEAD, sT1))
    p('s_mul_i32 s%d, s%d, %d' % (sW44, sW, WST))
    p('v_lshrrev_b32 v3, 4, v2'); p('v_and_b32 v4, 15, v2')
    p('v_lshlrev_b32 v5, 4, v1'); p('v_lshl_add_u32 v5, v3, 2, v5'); p('v_lshlrev_b32 v5, 13, v5'); p('v_lshl_add_u32 v%d, v4, 4, v5' % vF)
    for r_ in range(1, 4): p('v_add_u32 v%d, %d, v%d' % (vF + r_, r_ * (8192 - BLK), vF))
    p('s_mov_b32 s%d, 524288' % sFSTR); p('s_mov_b32 s%d, 0' % sFOFF); p('s_mov_b32 s%d, 0' % sXOFF)
    p('v_mul_u32_u24 v5, 81920, v1'); p('v_lshl_add_u32 v%d, v2, 4, v5' % vX0); p('v_add_u32 v%d, 40960, v%d' % (vX1, vX0))
    p('s_waitcnt lgkmcnt(0)')
    stamp(p, 1, True)
    def fill_begin(): return ['s_add_u32 m0, s%d, s%d' % (sFILL, sW44)]
    def fill_end(): return adv(sFILL, sT0) + ['s_add_u32 s%d, s%d, s%d' % (sFOFF, sFOFF, sFSTR)]
    p('s_lshl_b32 s%d, s%d, 19' % (sT1, sHEAD)); p('s_add_u32 s%d, s%d, %d' % (sT1, sT1, 393216 - 4096))
    for dst, src in ((sK, sFA), (sV, sFA + 2)):
        p('s_add_u32 s%d, s%d, s%d' % (dst, src, sT1)); p('s_addc_u32 s%d, s%d, 0' % (dst + 1, src + 1))
    p('s_lshl_b32 s%d, s%d, 8' % (sT0, sHEAD))
    for d in (sFA, sFB2):
        p('s_add_u32 s%d, s%d, s%d' % (d, sWQ, sT0)); p('s_addc_u32 s%d, s%d, 0' % (d + 1, sWQ + 1))
        p('s_sub_u32 s%d, %d, s%d' % (d + 2, 640 * 8192, sT0)); p('s_mov_b32 s%d, 0x00020000' % (d + 3))
    p('s_mov_b32 m0, s%d' % sW44)
    for i in range(4): p(*fill_dma(i, 0))
    p('s_mul_i32 s%d, s%d, %d' % (sT0, sQB, 8 * 40960)); p('s_add_u32 s%d, s%d, %d' % (sT0, sT0, XH))
    p('s_add_u32 s%d, s%d, s%d' % (sXH, sGS, sT0)); p('s_addc_u32 s%d, s%d, 0' % (sXH + 1, sGS + 1))
    p('s_mov_b32 s%d, %d' % (sXH + 2, 8 * 40960)); p('s_mov_b32 s%d, 0x00020000' % (sXH + 3))
    for x in x_loads(0): p(*x)
    p('s_mov_b32 s%d, s%d' % (sPD3, sGS)); p('s_mov_b32 s%d, s%d' % (sPD3 + 1, sGS + 1))
    p('s_add_u32 s%d, s%d, %d' % (sGS, sGS, GS)); p('s_addc_u32 s%d, s%d, 0' % (sGS + 1, sGS + 1))
    p('s_mov_b32 s%d, 2560' % (sGS + 2)); p('s_mov_b32 s%d, 0x00020000' % (sGS + 3))
    p('v_lshlrev_b32 v5, 4, v0'); p('s_lshl_b32 s%d, s%d, 10' % (sT0, sW)); p('s_add_u32 m0, s%d, %d' % (sT0, GSOFF))
    p('buffer_load_dwordx4 v5, %s, 0 offen lds' % s(sGS, 4), ('gs', 0))
    for x in x_loads(1): p(*x)
    p('s_mov_b32 s%d, %d' % (sFILL, SLOT)); p('s_mov_b32 s%d, s%d' % (sFOFF, sFSTR))
    for x in fill_begin(): p(x)
    for x in x_loads(2): p(*x)
    for i in range(2): p(*fill_dma(i, 1))
    for x in x_loads(3): p(*x)
    for i in range(2, 4): p(*fill_dma(i, 1))
    for x in fill_end(): p(x)
    stamp(p, 2, True)
    for dst in (sK, sV):
        p('s_mov_b32 s%d, %d' % (dst + 2, 131072 + 4096)); p('s_mov_b32 s%d, 0x00020000' % (dst + 3))
    p('s_lshl_b32 s%d, s%d, 21' % (sT0, sQB)); p('s_add_u32 s%d, s%d, %d' % (sT0, sT0, OB))
    p('s_add_u32 s%d, s%d, s%d' % (sOB, sPD3, sT0)); p('s_addc_u32 s%d, s%d, 0' % (sOB + 1, sPD3 + 1))
    p('s_mov_b32 s%d, %d' % (sOB + 2, 4 * 524288)); p('s_mov_b32 s%d, 0x00020000' % (sOB + 3))
    p('s_mov_b32 s%d, 0' % sFB)
    p('v_lshl_add_u32 v5, v1, 3, v3'); p('v_lshlrev_b32 v5, 8, v5'); p('v_xor_b32 v6, v4, v3'); p('v_lshl_add_u32 v5, v6, 4, v5')
    p('v_add_u32 v%d, 4096, v5' % vKV); p('v_add_u32 v%d, %d, v5' % (vKV + 1, 4096 + 1024 - BLK))
    p('v_lshrrev_b32 v5, 1, v1'); p('v_lshlrev_b32 v5, 4, v5'); p('v_lshl_add_u32 v5, v3, 2, v5'); p('v_and_b32 v6, 1, v1'); p('v_lshl_add_u32 v5, v6, 1, v5')
    p('v_lshlrev_b32 v5, 8, v5'); p('v_lshl_add_u32 v5, v4, 4, v5')
    p('v_add_u32 v%d, %d, v5' % (vKV + 2, 4096 - 2 * BLK)); p('v_add_u32 v%d, %d, v5' % (vKV + 3, 4096 + 256 - 3 * BLK))
    p('v_bfe_u32 v5, v2, 2, 2'); p('v_and_b32 v6, 3, v2'); p('v_lshrrev_b32 v7, 5, v2'); p('v_and_b32 v8, 1, v3')
    p('v_mul_u32_u24 v9, %d, v5' % BLK); p('v_lshl_add_u32 v9, v7, 9, v9'); p('v_lshl_add_u32 v9, v8, 5, v9')
    p('v_and_b32 v10, 1, v6'); p('v_lshl_add_u32 v9, v10, 4, v9'); p('v_lshrrev_b32 v10, 1, v6'); p('v_lshl_add_u32 v%d, v10, 3, v9' % cW)
    p('v_lshrrev_b32 v9, 1, v5'); p('v_mul_u32_u24 v9, %d, v9' % WST); p('v_and_b32 v10, 1, v5'); p('v_mul_u32_u24 v10, %d, v10' % BLK)
    p('v_add3_u32 v9, v9, v10, %d' % 0); p('v_add_u32 v9, %d, v9' % (2 * BLK))
    p('v_lshl_add_u32 v9, v7, 8, v9'); p('v_lshl_add_u32 v9, v8, 5, v9'); p('v_lshl_add_u32 v%d, v6, 3, v9' % cV)
    p('v_bfe_u32 v9, v2, 3, 2'); p('v_mul_u32_u24 v9, %d, v9' % WST); p('v_bfe_u32 v10, v2, 2, 1'); p('v_mul_u32_u24 v10, %d, v10' % BLK)
    p('v_add_u32 v9, v9, v10'); p('v_lshl_add_u32 v9, v6, 8, v9')
    p('v_xor_b32 v10, v7, v6'); p('v_lshl_add_u32 v%d, v10, 4, v9' % cK0)
    p('v_xor_b32 v10, 2, v10'); p('v_lshl_add_u32 v%d, v10, 4, v9' % cK1)
    p('v_lshlrev_b32 v%d, 5, v7' % vGS); p('v_add_u32 v%d, %d, v%d' % (vGS, GSOFF, vGS))
    p('v_lshlrev_b32 v9, 19, v1'); p('v_lshl_add_u32 v9, v8, 10, v9'); p('v_lshl_add_u32 v9, v7, 8, v9'); p('v_lshl_add_u32 v%d, v4, 4, v9' % vO)
    sNTp, sRB = sPS3 + 2, sPS3 + 3
    p('s_and_b32 s%d, s2, 1' % sT0); p('s_lshl_b32 s%d, s%d, 2' % (sT0, sT0)); p('s_bfe_u32 s%d, s2, 0x20003' % sT1); p('s_add_u32 s%d, s%d, s%d' % (sNTp, sT0, sT1))
    p('s_bfe_u32 s%d, s2, 0x20001' % sT0); p('s_lshr_b32 s%d, s2, 5' % sT1)
    p('s_lshl_b32 s%d, s%d, 2' % (sPD5 + 3, sT1)); p('s_add_u32 s%d, s%d, s%d' % (sPD5 + 3, sPD5 + 3, sT0)); p('s_min_u32 s%d, s%d, 14' % (sPD5 + 3, sPD5 + 3))
    p('s_lshl_b32 s%d, s%d, 3' % (sT0, sT0)); p('s_add_u32 s%d, s%d, s%d' % (sRB, sT0, sT1))
    p('s_mul_i32 s%d, s%d, 160' % (sP4, sNTp)); p('s_mul_i32 s%d, s%d, %d' % (sT1, sPD5 + 3, 128 * 1280)); p('s_add_u32 s%d, s%d, s%d' % (sT1, sT1, sP4))
    p('s_add_u32 s%d, s%d, s%d' % (sPS5, sPS5, sT1)); p('s_addc_u32 s%d, s%d, 0' % (sPS5 + 1, sPS5 + 1))
    p('s_sub_u32 s%d, %d, s%d' % (sPS5 + 2, 1728 * 1280, sT1)); p('s_max_i32 s%d, s%d, 0' % (sPS5 + 2, sPS5 + 2)); p('s_mov_b32 s%d, 0x00020000' % (sPS5 + 3))
    p('s_mul_i32 s%d, s%d, %d' % (sT0, sNTp, 1728 * 160)); p('s_mul_i32 s%d, s%d, 20480' % (sT1, sPD5 + 3))
    p('s_sub_u32 s%d, %d, s%d' % (sPD5 + 2, 1728 * 160, sT1)); p('s_max_i32 s%d, s%d, 0' % (sPD5 + 2, sPD5 + 2)); p('s_mov_b32 s%d, 0x00020000' % (sPD5 + 3))
    p('s_add_u32 s%d, s%d, s%d' % (sT0, sT0, sT1)); p('s_add_u32 s%d, s%d, %d' % (sT0, sT0, WP5))
    p('s_add_u32 s%d, s%d, s%d' % (sPD5, sPD3, sT0)); p('s_addc_u32 s%d, s%d, 0' % (sPD5 + 1, sPD3 + 1))
    p('s_lshl_b32 s%d, s%d, 5' % (sT0, sNTp)); p('s_add_u32 s%d, s%d, s%d' % (sT0, sT0, sRB)); p('s_mul_i32 s%d, s%d, 20480' % (sT0, sT0)); p('s_add_u32 s%d, s%d, %d' % (sT0, sT0, WP3))
    p('s_add_u32 s%d, s%d, s%d' % (sPD3, sPD3, sT0)); p('s_addc_u32 s%d, s%d, 0' % (sPD3 + 1, sPD3 + 1))
    p('s_mov_b32 s%d, 20480' % (sPD3 + 2)); p('s_mov_b32 s%d, 0x00020000' % (sPD3 + 3))
    p('s_mul_i32 s%d, s%d, %d' % (sT1, sRB, 128 * 1280)); p('s_add_u32 s%d, s%d, s%d' % (sT1, sT1, sP4))
    p('s_add_u32 s%d, s%d, s%d' % (sPS3, sPS3, sT1)); p('s_addc_u32 s%d, s%d, 0' % (sPS3 + 1, sPS3 + 1))
    p('s_sub_u32 s%d, %d, s%d' % (sPS3 + 2, 4096 * 1280, sT1)); p('s_mov_b32 s%d, 0x00020000' % (sPS3 + 3))
    p('s_mov_b32 s%d, 4096' % sP4)
    p('v_and_b32 v252, 63, v255'); p('v_lshrrev_b32 v253, 6, v255'); p('v_mul_u32_u24 v253, 320, v253'); p('v_add_u32 v252, v252, v253')
    p('v_lshlrev_b32 v255, 4, v252')
    p('v_mov_b32 v%d, v%d' % (vRW, cW))
    p('s_mov_b32 s%d, 0' % sRD); p('s_mov_b32 s%d, 4' % sCNT)
    stamp(p, 3, True)
    p.need(lambda t: t[0] == 'gs'); p('s_barrier')
    stamp(p, 4, True)
    for x in gs_reads(0) + gs_reads(1) + w_reads(0): p(x)
    for x in h_stream(0): p(x)
    stamp(p, 1); stamp(p, 5, True)
    if prof: p('s_waitcnt lgkmcnt(0)')
    segs.append(('once', p))

    RAMP = [[4, 5, 'w'], [6, 7, 'w'], [8, 9, 'w'], [10, 11, 'w'], [12, 'w', 'w', 'w'], [13, 'w', 'w', 'w'], [14, 'w', 'w', 'w'], [15, 'w', 'w', 'w']]
    def p1(it):
        q = Seq()
        peel = it == 0
        if not peel: q(L1 + ':')
        wn = 8
        for st in range(8):
            sg = 8 * it + st; c = sg >> 2
            b = sg & 1
            mf = ['%s %s, %s, %s, %s' % (MF, v(ACC(tg, t), 16), a(WF(b, t), 4), v(HB + (b * 2 + tg) * 4, 4), '0' if sg == 0 else v(ACC(tg, t), 16))
                  for t in range(4) for tg in range(2)]
            g = [[] for _ in range(8)]
            q.touch(a(WF(b, 0), 16) + ' ' + v(GB + 8 * ((sg + 1) & 1), 8) + ' ' + v(XR + ((sg + 1) & 7) * 8, 8))
            if st == 6: g[0].append('v_add_u32 v%d, 512, v%d' % (vGS, vGS))
            g[0] += gs_reads(sg + 2)
            if st & 3 == 2:
                if peel: g[2] += adv(sRD, sT1)
                else: g[5] += adv(sRD, sT1)[:2]; g[6] += adv(sRD, sT1)[2:]
            if st & 3 == 3:
                g[0] += [('NEED', lambda t, c=c: t[0] == 'dma' and t[1] <= c + 1), 's_barrier']
                g[0] += ['v_add_u32 v%d, s%d, v%d' % (vRW, sRD, cW)]
            wr = w_reads(sg + 1)
            if 'nowr' not in E2:
                for i in range(8): g[1 + i // 2].append(wr[i])
            if peel:
                ops = []
                for o in RAMP[st]:
                    if o == 'w':
                        pre = fill_begin() if wn & 3 == 0 else []
                        post = (fill_end() if wn != 23 else fill_end()[:4]) if wn & 3 == 3 else []
                        ops.append(pre + [fill_dma(wn & 3, wn >> 2)] + post); wn += 1
                    else:
                        xl = x_loads(o)
                        ops.append((['s_add_u32 s%d, s%d, 4096' % (sXOFF, sXOFF)] if o & 3 == 0 else []) + [xl[0]]); ops.append([xl[1]])
                for i, o in enumerate(ops): g[3 + i] += o
            else:
                xl = x_loads(sg + 8)
                if 'nox' not in E2: g[5].append(xl[0]); g[6].append(xl[1])
                if st & 3 == 0:
                    g[1].append('s_add_u32 s%d, s%d, 4096' % (sXOFF, sXOFF)); g[2].append(fill_end()[4]); g[6] += fill_begin()
                if st & 3 == 1: g[5] += fill_end()[:2]; g[6] += fill_end()[2:4]
                if 'nowq' not in E2: g[7].append(fill_dma(st & 3, c + 4))
                if st == 7:
                    g[6] += ['s_sub_u32 s%d, s%d, 1' % (sCNT, sCNT), 's_cmp_eq_u32 s%d, 1' % sCNT, 's_cselect_b32 s%d, 0, s%d' % (sXH + 2, sXH + 2)]
            if 'noh' not in E2: pack(g, h_stream(sg + 1), 0, 7)
            interleave(q, mf, g)
        if peel: return q
        q('s_cmp_eq_u32 s%d, 2' % sCNT); q('s_cbranch_scc0 %s' % L1s)
        for j in range(4):
            q('s_mov_b32 s%d, s%d' % (sFA + j, sK + j)); q('s_mov_b32 s%d, s%d' % (sFB2 + j, sV + j)); q('v_mov_b32 v%d, v%d' % (vF + j, vKV + j))
        q('s_mov_b32 s%d, 8192' % sFSTR); q('s_mov_b32 s%d, -8192' % sFOFF)
        q(L1s + ':')
        q('s_cmp_lg_u32 s%d, 0' % sCNT); q('s_cbranch_scc1 %s' % L1)
        return q
    segs.append(('once', p1(0)))
    segs.append(('loop', 4, lambda it: p1(it + 1)))

    def qcvt(tg):
        out = []
        for sd in range(8):
            for q in range(4):
                src = ACC(tg, sd >> 1) + 8 * (sd & 1) + 2 * q
                tm = TM + ((4 * sd + q) & 3)
                out.append('v_cvt_pk_bf16_f32 v%d, v%d, v%d' % (tm, src, src + 1))
                out.append('v_accvgpr_write_b32 a%d, v%d' % (QF(tg, sd) + q, tm))
        o2 = [out[0]]
        for i in range(2, len(out), 2): o2 += [out[i], out[i - 1]]
        return o2 + [out[-1]]
    def standin(tg):
        sb = S_ + 16 * tg; tm = TM + 4 + 2 * tg
        o = ['v_max3_f32 v%d, v%d, v%d, v%d' % (tm, sb, sb + 1, sb + 2), 'v_max3_f32 v%d, v%d, v%d, v%d' % (tm + 1, sb + 3, sb + 4, sb + 5)]
        for i, r_ in enumerate(range(6, 16, 2)): o.append('v_max3_f32 v%d, v%d, v%d, v%d' % (tm + (i & 1), tm + (i & 1), sb + r_, sb + r_ + 1))
        o += ['v_max_f32 v%d, v%d, v%d' % (tm, tm, tm + 1), 'v_mov_b32 v%d, v%d' % (tm + 1, tm), 'v_permlane32_swap_b32 v%d, v%d' % (tm, tm + 1),
              'v_max_f32 v%d, v%d, v%d' % (tm, tm, tm + 1), 'v_sub_f32 v%d, %s, v%d' % (tm, f32(-40.0), tm),
              'v_cndmask_b32 v%d, v%d, v%d, %s' % (tm, tm, vMX + tg, s(sFBM, 2))]
        o += ['v_add_f32 v%d, v%d, v%d' % (sb + r_, sb + r_, tm) for r_ in range(16)]
        return o
    def nmfill(tg): return ['v_mov_b32 v%d, v%d' % (NM + 16 * tg + r_, TM + 4 + 2 * tg) for r_ in range(16)]
    def enter(t_, main):
        t_('v_add_u32 v%d, s%d, v%d' % (vRK0, sRD, cK0)); t_('v_add_u32 v%d, s%d, v%d' % (vRK1, sRD, cK1)); t_('v_add_u32 v%d, s%d, v%d' % (vRV, sRD, cV))
        for sd in range(8): t_(k_read(sd))
        if main:
            fl = [fill_end()[4]]
            for u in (14, 15): fl += fill_begin() + [fill_dma(i, u) for i in range(4)] + fill_end()
            c0 = qcvt(0)
            for i, x in enumerate(c0):
                t_(x)
                if i % 3 == 2 and fl:
                    y = fl.pop(0); t_(*y) if isinstance(y, tuple) else t_(y)
            assert not fl
        t_('s_mov_b32 s%d, s%d' % (sRK, sRD))
        for x in adv(sRK, sT1): t_(x)
        t_('s_cmp_lg_u32 s%d, 0' % sFB); t_('s_cselect_b64 %s, -1, 0' % s(sFBM, 2))
        g = [[] for _ in range(16)]
        for f in range(8): g[f] += v_reads(f)
        g[0] += ['v_add_u32 v%d, s%d, v%d' % (vRK0, sRK, cK0), 'v_add_u32 v%d, s%d, v%d' % (vRK1, sRK, cK1)]
        if main:
            pack(g, qcvt(1), 0, 7)
            g[7] += [('NEED', lambda t: t[0] == 'dma' and t[1] <= 11), 's_barrier']
        for sd in range(8): g[8 + sd].append(k_read(sd))
        g[8] += ['v_mov_b32 v%d, 0' % (LA + i) for i in range(4)]
        sm = softmax(0)
        pack(g, standin(0) + sm[:SMX], 10, 15)
        interleave(t_, s_mfma(0, True) + s_mfma(1, True), g)
        for x in sm[SMX:]: t_(x)
        t_('s_mov_b32 s%d, %d' % (sCNT, PA))
    SMX = int(os.environ.get('SMX', 10))
    t_ = Seq()
    stamp(t_, 2)
    enter(t_, True)
    stamp(t_, 3)
    if prof: t_('s_waitcnt lgkmcnt(0)')
    t_(Lent + ':')
    segs.append(('once', t_))

    def pk_loads():
        o = []
        for j in range(5):
            ta, tb = TM + 2 * (j & 1), TM + 2 * (j & 1) + 1
            o += ['v_add_u32 v%d, %d, v252' % (ta, 64 * j), 'v_mul_u32_u24 v%d, 6554, v%d' % (tb, ta), 'v_lshrrev_b32 v%d, 16, v%d' % (tb, tb),
                  'v_mul_u32_u24 v%d, 1120, v%d' % (tb, tb), 'v_lshl_add_u32 v%d, v%d, 4, v%d' % (tb, ta, tb),
                  ('buffer_load_dwordx4 %s, v%d, %s, 0 offen' % (a(aPK + 4 * j, 4), tb, s(sPS3, 4)), None),
                  ('buffer_load_dwordx4 %s, v%d, %s, 0 offen' % (a(aPK + 20 + 4 * j, 4), tb, s(sPS5, 4)), None)]
        return o
    def pk_stores():
        return [('buffer_store_dwordx4 %s, v255, %s, %s offen offset:%d%s' % (a(aPK + b + 4 * j, 4), s(d, 4), 's%d' % sP4 if j == 4 else '0', (j & 3) * 1024, PKMOD), None)
                for j in range(5) for d, b in ((sPD3, 0), (sPD5, 20))]
    def p2(j, first=False, last=False, loop=None, job=None, cnt=None):
        q = Seq()
        if loop: q(loop + ':')
        g = [[] for _ in range(32)]
        q('s_waitcnt lgkmcnt(8)')
        if last:
            mf = pv_mfma(0) + pv_mfma(1)
            pack(g, softmax(1), 0, 7)
            interleave(q, mf, g)
            return q
        mf = pv_mfma(0, first) + s_mfma(0) + pv_mfma(1, first) + s_mfma(1)
        if j + 6 < 16:
            g[0] += fill_begin()
            for i in range(4): g[1 + i] += [] if 'nokv' in E2 else [fill_dma(i, j + 16)]
            fe = fill_end()
            g[5] += fe[:2]; g[6] += fe[2:4]; g[7] += fe[4:]
        g[8].append('v_add_u32 v%d, s%d, v%d' % (vRV, sRK, cV))
        ad = adv(sRK, sT1)
        g[9] += ad[:2]; g[10] += ad[2:]
        g[11] += ['v_add_u32 v%d, s%d, v%d' % (vRK0, sRK, cK0)]; g[12] += ['v_add_u32 v%d, s%d, v%d' % (vRK1, sRK, cK1)]
        if loop: g[13] += ['s_sub_u32 s%d, s%d, 1' % (sCNT, sCNT)]
        if cnt: g[13] += ['s_mov_b32 s%d, %d' % (sCNT, cnt)]
        for f in range(8): g[16 + f] += [] if 'novr' in E2 else v_reads(f)
        g[15] += [('NEED', lambda t, j=j: t[0] == 'dma' and t[1] <= j + 12)] + ([] if 'nobar' in E2 else ['s_barrier'])
        for sd in range(8): g[24 + sd] += [] if 'nokr' in E2 else [k_read(sd)]
        if job and 'nojob' not in E2:
            jb = job(); n = len(jb)
            for i, x in enumerate(jb): g[8 + (i * 22) // n].append(x)
        if first:
            pack(g, nmfill(0), 0, 6)
            pack(g, standin(1) + softmax(1), 0, 15)
            pack(g, nmfill(1), 16, 22)
        else:
            pack(g, softmax(1), 2, 15)
        g[7].append('s_waitcnt lgkmcnt(0)')
        pack(g, softmax(0), 18, 31)
        if loop: g[31].append('s_cmp_lg_u32 s%d, 0' % sCNT)
        interleave(q, mf, g)
        if loop: q('s_cbranch_scc1 %s' % loop)
        return q
    UNR = os.environ.get('UNR', '5,2,10,2')
    segs.append(('once', p2(0, first=True)))
    if UNR:
        l0, ls, s0, ss = [int(x) for x in UNR.split(',')]
        for j in range(1, 15):
            jb = []
            for n in range(5):
                if l0 + (n * ls) // 2 == j: jb += pk_loads()[7 * n:7 * n + 7]
                if s0 + (n * ss) // 2 == j: jb += pk_stores()[2 * n:2 * n + 2]
            segs.append(('once', p2(j, job=(lambda jb=jb: jb) if jb else None)))
    else:
        assert PA + PB + PC == 12
        segs.append(('loop', PA, lambda it: p2(it + 1, loop=L2)))
        segs.append(('once', p2(PA + 1, job=pk_loads, cnt=PB)))
        segs.append(('loop', PB, lambda it: p2(it + PA + 2, loop=Lpk)))
        segs.append(('once', p2(PA + PB + 2, job=pk_stores, cnt=PC)))
        segs.append(('loop', PC, lambda it: p2(it + PA + PB + 3, loop=Lps)))
    segs.append(('once', p2(15, last=True)))

    e = Seq()
    stamp(e, 4)
    e('s_lshl_b32 s%d, s%d, 14' % (sT0, sHEAD))
    for tg in range(2):
        la = LA + 2 * tg
        e('v_add_f32 v%d, v%d, v%d' % (la, la, la + 1)); e('v_mov_b32 v%d, v%d' % (la + 1, la))
        e('v_permlane32_swap_b32 v%d, v%d' % (la, la + 1)); e('v_add_f32 v%d, v%d, v%d' % (la, la, la + 1))
        e('v_rcp_f32 v%d, v%d' % (TM + 2 * tg, la))
    n = 0
    for t in range(4):
        for tg in range(2):
            for c in range(2):
                src = ACC(tg, t) + 8 * c
                dst = S_ + 4 * (n & 7); n += 1
                for q in range(4):
                    e('v_pk_mul_f32 %s, %s, %s op_sel_hi:[1,0]' % (v(src + 2 * q, 2), v(src + 2 * q, 2), v(TM + 2 * tg, 2)))
                for q in range(4):
                    e('v_cvt_pk_bf16_f32 v%d, v%d, v%d' % (dst + q, src + 2 * q, src + 2 * q + 1))
                e('buffer_store_dwordx4 %s, v%d, %s, s%d offen offset:%d%s' % (v(dst, 4), vO, s(sOB, 4), sT0, tg * 2048 + c * 512, OMOD))
        if t < 3: e('s_add_u32 s%d, s%d, 4096' % (sT0, sT0))
    e('s_mov_b32 s%d, %s' % (sT1, f32(2.0 ** 64)))
    e('v_cmp_lt_f32 vcc, v%d, s%d' % (LA, sT1)); e('v_cndmask_b32 v%d, 1, 0, vcc' % TM)
    e('v_cmp_lt_f32 vcc, v%d, s%d' % (LA + 2, sT1)); e('v_cndmask_b32 v%d, 1, v%d, vcc' % (TM, TM))
    e('v_cmp_ne_u32 vcc, 0, v%d' % TM); e('s_cmp_lg_u64 vcc, 0'); e('s_cselect_b32 s%d, 1, 0' % sT1)
    e('s_lshl_b32 s%d, s%d, 2' % (sT0, sW)); e('s_add_u32 s%d, s%d, %d' % (sT0, sT0, FLAGOFF))
    e('v_mov_b32 v%d, s%d' % (TM, sT0)); e('v_mov_b32 v%d, s%d' % (TM + 1, sT1)); e('ds_write_b32 v%d, v%d' % (TM, TM + 1))
    e('v_mov_b32 v%d, %d' % (TM + 2, FLAGOFF))
    e('s_waitcnt lgkmcnt(0)'); e('s_barrier')
    e('ds_read_b128 %s, v%d' % (v(TM + 4, 4), TM + 2))
    e('v_or_b32 v%d, v%d, v%d' % (TM, TM + 4, TM + 5)); e('v_or3_b32 v%d, v%d, v%d, v%d' % (TM, TM, TM + 6, TM + 7))
    e('v_readfirstlane_b32 s%d, v%d' % (sT1, TM))
    if prof:
        stamp(e, 5); e('s_waitcnt vmcnt(0)'); stamp(e, 6); e('s_memrealtime s[78:79]'); e('s_waitcnt lgkmcnt(0)')
        e('s_add_u32 s80, s80, %d' % PROF); e('s_addc_u32 s81, s81, 0'); e('s_mov_b32 s82, 0x100000'); e('s_mov_b32 s83, 0x00020000')
        e('s_lshl_b32 s84, s2, 2'); e('s_add_u32 s84, s84, s%d' % sW); e('s_lshl_b32 s84, s84, 6')
        for i in range(10): e('v_mov_b32 v%d, s%d' % (i, 60 + 2 * i))
        e('v_mov_b32 v10, s%d' % sT1); e('v_mov_b32 v11, s%d' % sFB); e('v_mov_b32 v12, 0')
        for i in range(3): e('buffer_store_dwordx4 %s, v12, s[80:83], s84 offen offset:%d' % (v(4 * i, 4), 16 * i))
    e('s_cmp_eq_u32 s%d, 0' % sT1); e('s_cbranch_scc1 %s' % Lend)
    e('s_cmp_lg_u32 s%d, 0' % sFB); e('s_cbranch_scc1 %s' % Lend)
    e('s_mov_b32 s%d, 1' % sFB)
    e('s_waitcnt vmcnt(0) lgkmcnt(0)')
    e('s_mov_b32 s%d, 0' % sFOFF); e('s_mov_b32 s%d, 16' % sCNT); e('s_mov_b32 m0, s%d' % sW44)
    e('v_mov_b32 v%d, 0xff800000' % TM); e('v_mov_b32 v%d, 0xff800000' % (TM + 2))
    e('v_mov_b32 v%d, v%d' % (vRK0, cK0)); e('v_mov_b32 v%d, v%d' % (vRK1, cK1))
    e(Lmx + ':')
    e('s_barrier')
    for i in range(2): e(*fill_dma(i, 0))
    e('s_add_u32 s%d, s%d, 8192' % (sFOFF, sFOFF))
    e('s_waitcnt vmcnt(0)'); e('s_barrier')
    for sd in range(8): e(k_read(sd))
    e('s_waitcnt lgkmcnt(0)')
    for tg in range(2):
        for x in s_mfma(tg, True): e(x)
    for tg in range(2):
        sb = S_ + 16 * tg; tm = TM + 2 * tg
        for r_ in range(0, 16, 2): e('v_max3_f32 v%d, v%d, v%d, v%d' % (tm, tm, sb + r_, sb + r_ + 1))
    e('s_sub_u32 s%d, s%d, 1' % (sCNT, sCNT)); e('s_cmp_lg_u32 s%d, 0' % sCNT); e('s_cbranch_scc1 %s' % Lmx)
    for tg in range(2):
        tm = TM + 2 * tg
        e('v_mov_b32 v%d, v%d' % (tm + 1, tm)); e('v_permlane32_swap_b32 v%d, v%d' % (tm, tm + 1)); e('v_max_f32 v%d, v%d, v%d' % (tm, tm, tm + 1))
        e('v_sub_f32 v%d, 0, v%d' % (vMX + tg, tm))
    e('s_barrier')
    e('s_mov_b32 s%d, 0' % sFOFF); e('s_mov_b32 s%d, 0' % sFILL); e('s_mov_b32 s%d, 0' % sRD)
    for u in range(6):
        for x in fill_begin(): e(x)
        for i in range(4): e(*fill_dma(i, 0))
        for x in fill_end(): e(x)
    e('s_waitcnt vmcnt(0)'); e('s_barrier')
    enter(e, False)
    e('s_waitcnt vmcnt(0) lgkmcnt(0)')
    e('s_branch %s' % Lent)
    e(Lend + ':'); e('s_endpgm')
    segs.append(('once', e))
    assemble(k, segs)
    return k
```

```python
from asmlib import *
from layout import *
from sched import *
from k1 import f32, srd

BLK, WST = 1088, 4480
SLOT = 4 * WST
R = 7
GSOFF = R * SLOT
FLAGOFF = GSOFF + 4096
SCR = FLAGOFF + 64
K2_LDS = SCR + 2048
GSB = 5120
POLLS = int(__import__('os').environ.get('POLLS', 4000))
MF = 'v_mfma_f32_32x32x16_bf16'

def ACC(tg, t): return (tg * 4 + t) * 16
XR = 128
HB = 192
GB = 208
TM = 224
S_ = 128
NM = 160
P_ = 192
LA = 208
vF = 232
vKV = 236
vX0, vX1 = 240, 241
cW, cK0, cK1, cV = 242, 243, 244, 245
vRW, vRK0, vRK1, vRV = 246, 247, 248, 249
vGS, vO = 250, 251
def QF(tg, s): return (tg * 8 + s) * 4
def KF(s): return 64 + 4 * s
def VF(f): return 96 + 4 * f
def WF(b, t): return 128 + 16 * b + 4 * t
sWQ, sK, sV, sXH, sOB, sGS = 4, 8, 12, 16, 20, 24
sW, sFILL, sRD, sFOFF, sXOFF, sCNT, sHEAD, sQB, sFB, sT0, sT1, sW44, sFSTR, sRV, sRK = 28, 29, 30, 31, 32, 33, 34, 35, 36, 37, 38, 39, 40, 41, 42
sFA, sFB2 = 44, 48
sPS3, sPS5, sPD3, sPD5, sP4 = 84, 88, 92, 96, 100
aPK = 160
sFBM = 52
sDBG, sMODE, sTASK, sPOLL, sWQR = 56, 54, 55, 43, 74
vMX = 253
import os
PA, PB, PC = [int(x) for x in os.environ.get('PABC', '2,5,5').split(',')]
PKMOD = os.environ.get('PKMOD', ' sc1')
OMOD = os.environ.get('OMOD', ' sc1')
SLP = int(os.environ.get('SLP', 0))
E2 = os.environ.get('E2', '').split(',')

COST = {'v_exp': 8}
def cost(t):
    if isinstance(t, tuple):
        if t[0] in ('NEED', 'TOUCH'): return 4
        t = t[0]
    return 8 if t.startswith(('v_exp', 'v_rcp')) else 4

def pack(gaps, stream, g0, g1):
    n = g1 - g0 + 1
    tot = sum(cost(x) for x in stream) + sum(cost(x) for g in range(g0, g1 + 1) for x in gaps[g])
    i = 0; cum = 0
    for q, g in enumerate(range(g0, g1 + 1)):
        cum += sum(cost(x) for x in gaps[g])
        lim = tot * (q + 1) / n
        while i < len(stream) and (cum + cost(stream[i]) / 2 <= lim or g == g1):
            gaps[g].append(stream[i]); cum += cost(stream[i]); i += 1
    assert i == len(stream)

def fill_dma(i, u):
    srdr = sFA if i < 2 else sFB2
    return ('buffer_load_dwordx4 v%d, %s, s%d offen offset:%d lds' % (vF + i, s(srdr, 4), sFOFF, i * BLK), ('dma', u))

def adv(sreg, tmp):
    return ['s_add_u32 s%d, s%d, %d' % (sreg, sreg, SLOT), 's_cmp_ge_u32 s%d, %d' % (sreg, R * SLOT),
            's_cselect_b32 s%d, %d, 0' % (tmp, R * SLOT), 's_sub_u32 s%d, s%d, s%d' % (sreg, sreg, tmp)]

def h_stream(s1):
    out = []
    gb = GB + 8 * (s1 & 1)
    n = 0
    for tg in range(2):
        x = XR + ((s1 & 7) * 2 + tg) * 4
        h = HB + ((s1 & 1) * 2 + tg) * 4
        for q in range(4):
            t0 = TM + 2 * (n & 3); n += 1
            out.append('v_fma_mix_f32 v%d, v%d, v%d, v%d op_sel:[0,0,0] op_sel_hi:[1,1,1]' % (t0, x + q, gb + q, gb + 4 + q))
            out.append('v_fma_mix_f32 v%d, v%d, v%d, v%d op_sel:[1,1,1] op_sel_hi:[1,1,1]' % (t0 + 1, x + q, gb + q, gb + 4 + q))
            out.append('v_cvt_pk_bf16_f32 v%d, v%d, v%d' % (h + q, t0, t0 + 1))
    o2 = []
    for i in range(0, len(out), 3):
        o2 += out[i:i + 2]
        if i >= 3: o2.append(out[i - 1])
    o2.append(out[-1])
    return o2

def w_reads(s1):
    b = s1 & 1; sl = s1 & 3
    return ['ds_read_b64_tr_b16 %s, v%d offset:%d' % (a(WF(b, t) + 2 * jh, 2), vRW, sl * WST + jh * 256 + t * 64)
            for t in range(4) for jh in range(2)]
def gs_reads(s2):
    gb = GB + 8 * (s2 & 1)
    return ['ds_read_b128 %s, v%d offset:%d' % (v(gb + 4 * h, 4), vGS, (s2 & 7) * 64 + h * 16) for h in range(2)]
def x_loads(s8):
    return [('buffer_load_dwordx4 %s, v%d, %s, s%d offen offset:%d' % (v(XR + ((s8 & 7) * 2 + tg) * 4, 4), vX0 + tg, s(sXH, 4), sXOFF, (s8 & 3) * 1024), None)
            for tg in range(2)]
def k_read(sd):
    return 'ds_read_b128 %s, v%d offset:%d' % (a(KF(sd), 4), vRK0 + (sd & 1), (sd >> 1) * 64)
def v_reads(f):
    sp, t = f >> 2, f & 3
    return ['ds_read_b64_tr_b16 %s, v%d offset:%d' % (a(VF(f) + 2 * jh, 2), vRV, sp * 2 * WST + jh * 512 + t * 64) for jh in range(2)]
def softmax(tg):
    sb = S_ + 16 * tg
    out = []
    def E(r): return 'v_exp_f32 v%d, v%d' % (sb + r, sb + r)
    def C(q): return 'v_cvt_pk_bf16_f32 v%d, v%d, v%d' % (P_ + 8 * tg + q, sb + 2 * q, sb + 2 * q + 1)
    def A(r): return 'v_add_f32 v%d, v%d, v%d' % (LA + 2 * tg + (r & 1), LA + 2 * tg + (r & 1), sb + r)
    for q in range(9):
        if q < 8 and 'noexp' not in E2: out += [E(2 * q), E(2 * q + 1)]
        if q > 0:
            out += [C(q - 1)]
            if 'noadd' in E2: pass
            elif 'pkadd' not in E2: out += [A(2 * q - 2), A(2 * q - 1)]
            else: out += ['v_pk_add_f32 %s, %s, %s' % (v(LA + 2 * tg, 2), v(LA + 2 * tg, 2), v(sb + 2 * q - 2, 2))]
    return out
def s_mfma(tg, czero=False):
    d = v(S_ + 16 * tg, 16)
    return ['%s %s, %s, %s, %s' % (MF, d, a(KF(sd), 4), a(QF(tg, sd), 4), (('0' if czero else v(NM + 16 * tg, 16)) if sd == 0 else d)) for sd in range(8)]
def pv_mfma(tg, first=False):
    return ['%s %s, %s, %s, %s' % (MF, v(ACC(tg, f & 3), 16), a(VF(f), 4), v(P_ + 8 * tg + 4 * (f >> 2), 4),
                                   '0' if (first and f < 4) else v(ACC(tg, f & 3), 16)) for f in range(8)]

PROF = 0x3000000
def gen_k2(prof=False):
    def stamp(q, i, pro=False):
        if 'pg' in E2 and i in (1, 2, 3, 4, 5):
            if pro != 'g': return
        elif pro == 'g': return
        elif 'pro' in E2 and i in (1, 2, 3, 4, 5) and not pro: return
        elif pro and 'pro' not in E2: return
        if prof: q('s_memtime s[%d:%d]' % (60 + 2 * i, 61 + 2 * i))

    k = K('attn_kernel', vgprs=256, agprs=200)
    Lend, L1, L1s, L2, Lent, Lnom, Lfb, Lmx = [k.label(x) for x in ('end', 'p1', 'p1s', 'p2', 'ent', 'nom', 'fb', 'mx')]
    L2e, Lpk, Lps = k.label('p2e'), k.label('pk'), k.label('ps')
    segs = []
    p = Seq()
    p('s_cmp_ge_u32 s2, 256'); p('s_cbranch_scc1 %s' % Lend)
    stamp(p, 0)
    if prof: p('s_memrealtime s[76:77]'); p('s_load_dwordx2 s[80:81], s[0:1], %d' % KA['ws'])
    Lprod, Lln, Lnone, Ldone, Lpost, Lpoll, Lgo, Lsync, Lredo, Lnext, Lnf, Lno1 = [k.label(x) for x in
        ('prod', 'ln', 'none', 'done', 'post', 'poll', 'go', 'sync', 'redo', 'next', 'nf', 'no1')]
    def fill_begin(): return ['s_add_u32 m0, s%d, s%d' % (sFILL, sW44)]
    def fill_end(): return adv(sFILL, sT0) + ['s_add_u32 s%d, s%d, s%d' % (sFOFF, sFOFF, sFSTR)]
    p('s_load_dwordx2 s[%d:%d], s[0:1], %d' % (sWQR, sWQR + 1, KA['wq'])); p('s_load_dwordx2 s[%d:%d], s[0:1], %d' % (sDBG, sDBG + 1, KA['dbg']))
    p('s_and_b32 s16, s2, 7'); p('s_lshr_b32 s17, s2, 3')
    p('s_lshr_b32 s18, s17, 1'); p('s_lshl_b32 s18, s18, 4'); p('s_lshl_b32 s19, s16, 1'); p('s_add_u32 s18, s18, s19')
    p('s_and_b32 s19, s17, 1'); p('s_add_u32 s18, s18, s19')
    p('s_lshl_b32 s16, s16, 4'); p('s_and_b32 s17, s17, 15'); p('s_add_u32 s16, s16, s17')
    p('s_cmp_ge_u32 s18, 120'); p('s_cselect_b32 s17, 2, 0'); p('s_cmp_ge_u32 s2, 128'); p('s_cselect_b32 s17, 1, s17')
    if 'nopri' in E2:
        p('s_cmp_eq_u32 s17, 1'); p('s_cselect_b32 s18, 0, s18'); p('s_cmp_lt_u32 s18, 40'); p('s_cselect_b32 s17, 2, s17'); p('s_cselect_b32 s18, 120, s18')
    p('s_mov_b32 s%d, 0' % sMODE)
    p(Lprod + ':')
    p('s_load_dwordx2 s[12:13], s[0:1], %d' % KA['ws']); p('s_load_dwordx2 s[4:5], s[0:1], %d' % KA['c'])
    p('s_load_dwordx2 s[8:9], s[0:1], %d' % KA['wmod']); p('s_load_dwordx2 s[24:25], s[0:1], %d' % KA['x'])
    p('v_lshrrev_b32 v1, 6, v0'); p('v_and_b32 v2, 63, v0')
    p('v_mov_b32 v255, v0')
    p('v_readfirstlane_b32 s%d, v1' % sW)
    p('s_and_b32 s%d, s2, 7' % sT0); p('s_lshr_b32 s%d, s2, 3' % sT1)
    p('s_and_b32 s%d, s%d, 1' % (sQB, sT0)); p('s_lshl_b32 s%d, s%d, 2' % (sQB, sQB)); p('s_and_b32 s%d, s%d, 3' % (sCNT, sT1)); p('s_add_u32 s%d, s%d, s%d' % (sQB, sQB, sCNT))
    p('s_lshr_b32 s%d, s%d, 1' % (sHEAD, sT0)); p('s_lshl_b32 s%d, s%d, 3' % (sHEAD, sHEAD)); p('s_lshr_b32 s%d, s%d, 2' % (sT1, sT1)); p('s_add_u32 s%d, s%d, s%d' % (sHEAD, sHEAD, sT1))
    p('s_mul_i32 s%d, s%d, %d' % (sW44, sW, WST))
    p('v_lshrrev_b32 v3, 4, v2'); p('v_and_b32 v4, 15, v2')
    p('v_lshlrev_b32 v5, 4, v1'); p('v_lshl_add_u32 v5, v3, 2, v5'); p('v_lshlrev_b32 v5, 13, v5'); p('v_lshl_add_u32 v%d, v4, 4, v5' % vF)
    for r_ in range(1, 4): p('v_add_u32 v%d, %d, v%d' % (vF + r_, r_ * (8192 - BLK), vF))
    p('s_mov_b32 s%d, 524288' % sFSTR)
    NW0 = int(os.environ.get('NW0', 2))
    def wfirst():
        p('s_lshl_b32 s%d, s%d, 8' % (sT0, sHEAD))
        for d in (sFA, sFB2):
            p('s_add_u32 s%d, s%d, s%d' % (d, sWQR, sT0)); p('s_addc_u32 s%d, s%d, 0' % (d + 1, sWQR + 1))
            p('s_sub_u32 s%d, %d, s%d' % (d + 2, 640 * 8192, sT0)); p('s_mov_b32 s%d, 0x00020000' % (d + 3))
        for u in range(NW0):
            p('s_mov_b32 s%d, %d' % (sFOFF, u * 524288)); p('s_add_u32 m0, s%d, %d' % (sW44, u * SLOT))
            for i in range(4): p(fill_dma(i, u)[0])
        return 4 * NW0
    p('s_cmp_eq_u32 s17, 1'); p('s_cbranch_scc1 %s' % Lln)
    p('s_cmp_eq_u32 s17, 2'); p('s_cbranch_scc1 %s' % Lnone)
    p('v_lshrrev_b32 v1, 2, v0'); p('v_and_b32 v2, 3, v0'); p('v_lshlrev_b32 v3, 1, v1')
    p('v_mul_u32_u24 v4, 7680, v1'); p('v_lshl_add_u32 v4, v2, 4, v4')
    p('s_lshl_b32 s19, s18, 6')
    if 'gA' in E2:
        p('v_lshrrev_b32 v4, 4, v0'); p('v_mul_u32_u24 v4, 7680, v4'); p('v_and_b32 v5, 15, v0'); p('v_lshl_add_u32 v4, v5, 4, v4')
        p('s_and_b32 s19, s18, 3'); p('s_mul_i32 s19, s19, %d' % (160 * 7680)); p('s_lshr_b32 s20, s18, 2'); p('s_lshl_b32 s20, s20, 8'); p('s_add_u32 s19, s19, s20')
    p('s_waitcnt lgkmcnt(0)')
    stamp(p, 1, 'g')
    srd(p, 4, 0, 1280); srd(p, 8, 0, 640 * 7680); srd(p, 12, 0, GS + GSB)
    for i in range(10): p('buffer_load_ushort v%d, v3, s[4:7], 0 offen offset:%d' % (8 + i, 128 * i))
    for i in range(10):
        p('buffer_load_dwordx4 %s, v4, s[8:11], s19 offen' % v(20 + 4 * i, 4))
        if i < 9: p('s_add_u32 s19, s19, %d' % ((16 if 'gA' in E2 else 64) * 7680))
    nt = wfirst()
    if 'gi' in E2: stamp(p, 2, 'g')
    p('s_waitcnt vmcnt(%d)' % (10 + nt))
    if 'gi' not in E2: stamp(p, 2, 'g')
    for i in range(10):
        c = 8 + i; t = 84 + (i & 3)
        p('v_lshlrev_b32 v%d, 16, v%d' % (c, c)); p('v_mul_f32 v%d, %s, v%d' % (t, f32(-1.4426950408889634), c))
        p('v_exp_f32 v%d, v%d' % (t, t)); p('v_add_f32 v%d, 1.0, v%d' % (t, t)); p('v_rcp_f32 v%d, v%d' % (t, t))
        p('v_mul_f32 v%d, v%d, v%d' % (t, t, c)); p('v_cvt_pk_bf16_f32 v%d, v%d, v%d' % (t, t, t)); p('v_lshlrev_b32 v%d, 16, v%d' % (c, t))
    for j in range(8): p('v_mov_b32 v%d, 0' % (64 + j))
    p('v_lshrrev_b32 v5, 4, v0'); p('v_lshlrev_b32 v5, 7, v5'); p('v_lshl_add_u32 v5, v2, 5, v5'); p('v_add_u32 v5, %d, v5' % SCR)
    p('v_and_b32 v6, 15, v0'); p('v_cmp_gt_u32 vcc, 4, v6')
    for i in range(10):
        p('s_waitcnt vmcnt(%d)' % (9 - i + nt))
        for j in range(4):
            w = 20 + 4 * i + j; t = 84 + 2 * (j & 1)
            p('v_lshlrev_b32 v%d, 16, v%d' % (t, w)); p('v_and_b32 v%d, 0xffff0000, v%d' % (t + 1, w))
            p('v_fmac_f32 v%d, v%d, v%d' % (64 + 2 * j, t, 8 + i)); p('v_fmac_f32 v%d, v%d, v%d' % (65 + 2 * j, t + 1, 8 + i))
    stamp(p, 3, 'g')
    for j in range(8): p('v_add_f32_dpp v%d, v%d, v%d row_ror:4 row_mask:0xf bank_mask:0xf' % (72 + j, 64 + j, 64 + j))
    for j in range(8): p('v_add_f32_dpp v%d, v%d, v%d row_ror:8 row_mask:0xf bank_mask:0xf' % (64 + j, 72 + j, 72 + j))
    p('s_and_saveexec_b64 s[20:21], vcc')
    p('ds_write_b128 v5, v[64:67]'); p('ds_write_b128 v5, v[68:71] offset:16')
    p('s_mov_b64 exec, s[20:21]')
    p('v_lshlrev_b32 v5, 2, v0'); p('v_add_u32 v6, %d, v5' % SCR); p('v_cmp_gt_u32 vcc, 32, v0')
    p('s_waitcnt lgkmcnt(0)'); p('s_barrier')
    p('s_and_saveexec_b64 s[20:21], vcc'); p('s_cbranch_execz %s' % Ldone)
    for j in range(16): p('ds_read_b32 v%d, v6 offset:%d' % (20 + j, 128 * j))
    p('s_sub_u32 s22, s18, 20'); p('s_cmp_lt_u32 s22, 20'); p('s_cselect_b32 s23, 1.0, 0')
    p('s_sub_u32 s22, s18, 80'); p('s_cmp_lt_u32 s22, 20'); p('s_cselect_b32 s23, 1.0, s23')
    p('s_lshl_b32 s19, s18, 7'); p('s_cmp_lt_u32 s18, 20'); p('s_cselect_b32 s22, %s, 1.0' % f32(QSCALE))
    p('v_lshlrev_b32 v7, 1, v0')
    p('s_waitcnt lgkmcnt(0)')
    for st in (8, 4, 2, 1):
        for j in range(st): p('v_add_f32 v%d, v%d, v%d' % (20 + j, 20 + j, 20 + j + st))
    p('v_cvt_pk_bf16_f32 v20, v20, v20'); p('v_lshlrev_b32 v20, 16, v20')
    p('v_add_f32 v20, s23, v20'); p('v_cvt_pk_bf16_f32 v20, v20, v20'); p('v_lshlrev_b32 v20, 16, v20')
    p('v_mul_f32 v21, s22, v20'); p('v_cvt_f16_f32 v21, v21')
    p('s_add_u32 s22, s19, %d' % GS)
    stamp(p, 4, 'g')
    p('buffer_store_short v21, v7, s[12:15], s22 offen sc1')
    p('buffer_store_dword v20, v5, s[12:15], s19 offen')
    p('s_branch %s' % Ldone)
    p(Lln + ':')
    p('v_and_b32 v1, 15, v0'); p('v_bfe_u32 v2, v0, 4, 2'); p('v_lshrrev_b32 v3, 6, v0')
    p('v_mul_u32_u24 v4, 1280, v1'); p('v_mul_u32_u24 v5, 320, v3'); p('v_add_u32 v4, v4, v5'); p('v_lshl_add_u32 v4, v2, 4, v4')
    p('s_mul_i32 s19, s16, %d' % (16 * 1280))
    p('s_waitcnt lgkmcnt(0)')
    stamp(p, 1, 'g')
    srd(p, 24, 0, T * 1280); srd(p, 12, 0, 64 * 40960, add=XH)
    for i in range(5): p('buffer_load_dwordx4 %s, v4, s[24:27], s19 offen offset:%d' % (v(8 + 4 * i, 4), 64 * i))
    nt = wfirst()
    p('v_mul_u32_u24 v5, 10240, v3'); p('v_lshl_add_u32 v5, v2, 9, v5'); p('v_lshl_add_u32 v5, v1, 4, v5')
    p('s_and_b32 s20, s16, 1'); p('s_lshl_b32 s20, s20, 8'); p('s_lshr_b32 s19, s16, 1'); p('s_mul_i32 s19, s19, 40960'); p('s_add_u32 s19, s19, s20')
    p('v_lshlrev_b32 v6, 3, v1'); p('v_add_u32 v6, %d, v6' % SCR); p('v_lshl_add_u32 v7, v3, 7, v6')
    for j in range(4): p('v_mov_b32 v%d, 0' % (72 + j))
    for i in range(5):
        p('s_waitcnt vmcnt(%d)' % (4 - i + nt))
        for j in range(4):
            w = 8 + 4 * i + j; d = 32 + 8 * i + 2 * j
            p('v_lshlrev_b32 v%d, 16, v%d' % (d, w)); p('v_and_b32 v%d, 0xffff0000, v%d' % (d + 1, w))
            p('v_pk_add_f32 v[72:73], v[72:73], %s' % v(d, 2)); p('v_pk_fma_f32 v[74:75], %s, %s, v[74:75]' % (v(d, 2), v(d, 2)))
    stamp(p, 2, 'g')
    p('v_add_f32 v72, v72, v73'); p('v_add_f32 v73, v74, v75')
    for sw in ('v_permlane32_swap_b32', 'v_permlane16_swap_b32'):
        p('v_mov_b32 v74, v72'); p('v_mov_b32 v75, v73')
        p('%s v72, v74' % sw); p('%s v73, v75' % sw)
        p('v_add_f32 v72, v72, v74'); p('v_add_f32 v73, v73, v75')
    p('ds_write_b64 v7, v[72:73]')
    p('s_waitcnt lgkmcnt(0)'); p('s_barrier')
    for j in range(4): p('ds_read_b64 %s, v6 offset:%d' % (v(76 + 2 * j, 2), 128 * j))
    p('s_waitcnt lgkmcnt(0)')
    p('v_pk_add_f32 v[76:77], v[76:77], v[78:79]'); p('v_pk_add_f32 v[80:81], v[80:81], v[82:83]'); p('v_pk_add_f32 v[76:77], v[76:77], v[80:81]')
    stamp(p, 3, 'g')
    p('v_mul_f32 v76, %s, v76' % f32(1.0 / 640)); p('v_mul_f32 v77, %s, v77' % f32(1.0 / 640))
    p('v_fma_f32 v77, -v76, v76, v77'); p('v_max_f32 v77, 0, v77'); p('v_add_f32 v77, %s, v77' % f32(1e-5))
    p('v_rsq_f32 v78, v77'); p('v_mul_f32 v78, %s, v78' % f32(QSCALE)); p('v_mul_f32 v80, -v76, v78')
    for i in range(5):
        for j in range(4):
            w = 8 + 4 * i + j; d = 32 + 8 * i + 2 * j
            p('v_pk_fma_f32 %s, %s, v[78:79], v[80:81] op_sel_hi:[1,0,0]' % (v(d, 2), v(d, 2)))
            p('v_cvt_pk_f16_f32 v%d, v%d, v%d' % (w, d, d + 1))
        p('buffer_store_dwordx4 %s, v5, s[12:15], s19 offen sc1' % v(8 + 4 * i, 4))
        if i < 4: p('s_add_u32 s19, s19, 2048')
    stamp(p, 4, 'g')
    p('s_branch %s' % Ldone)
    p(Lnone + ':')
    p('s_waitcnt lgkmcnt(0)')
    wfirst()
    p(Ldone + ':')
    p('s_mov_b64 exec, -1')
    p('s_mov_b32 s%d, 256' % (sDBG + 2)); p('s_mov_b32 s%d, 0x00020000' % (sDBG + 3))
    p('s_add_u32 s19, s16, 64'); p('s_cmp_eq_u32 s17, 1'); p('s_cselect_b32 s19, s19, s18')
    p('s_cselect_b32 s20, 0, s18'); p('s_cmp_eq_u32 s%d, 0' % sW); p('s_cselect_b32 s20, s20, 40')
    p('v_mov_b32 v6, 1'); p('v_mov_b32 v7, 0')
    p('s_waitcnt vmcnt(0) lgkmcnt(0)'); p('s_barrier')
    p('s_cmp_eq_u32 s%d, 1' % sMODE); p('s_cbranch_scc1 %s' % Lnext)
    p('s_cmp_ge_u32 s20, 40'); p('s_cbranch_scc1 %s' % Lpost)
    p('s_mov_b64 exec, 1')
    p('buffer_store_byte v6, v7, %s, s19 offen sc0 sc1' % s(sDBG, 4))
    p('s_mov_b64 exec, -1')
    p(Lpost + ':')
    stamp(p, 1, True); stamp(p, 5, 'g')
    p('s_load_dwordx2 s[%d:%d], s[0:1], %d' % (sK, sK + 1, KA['k'])); p('s_load_dwordx2 s[%d:%d], s[0:1], %d' % (sV, sV + 1, KA['v']))
    p('s_load_dwordx2 s[%d:%d], s[0:1], %d' % (sGS, sGS + 1, KA['ws']))
    p('s_load_dwordx2 s[%d:%d], s[0:1], %d' % (sPS3, sPS3 + 1, KA['wo'])); p('s_load_dwordx2 s[%d:%d], s[0:1], %d' % (sPS5, sPS5 + 1, KA['w2']))
    for u in range(NW0, 6):
        p('s_mov_b32 s%d, %d' % (sFOFF, u * 524288)); p('s_add_u32 m0, s%d, %d' % (sW44, u * SLOT))
        for i in range(4): p(fill_dma(i, u)[0])
    p('s_mov_b32 s%d, %d' % (sFILL, 6 * SLOT)); p('s_mov_b32 s%d, 0' % sXOFF); p('s_mov_b32 s%d, 0' % sFB)
    p('v_lshrrev_b32 v1, 6, v0'); p('v_and_b32 v2, 63, v0'); p('v_lshrrev_b32 v3, 4, v2'); p('v_and_b32 v4, 15, v2'); p('v_mov_b32 v255, v0')
    p('v_mul_u32_u24 v5, 81920, v1'); p('v_lshl_add_u32 v%d, v2, 4, v5' % vX0); p('v_add_u32 v%d, 40960, v%d' % (vX1, vX0))
    p('s_waitcnt lgkmcnt(0)')
    stamp(p, 2, True)
    p('s_lshl_b32 s%d, s%d, 19' % (sT1, sHEAD)); p('s_add_u32 s%d, s%d, %d' % (sT1, sT1, 393216 - 4096))
    for dst in (sK, sV):
        p('s_add_u32 s%d, s%d, s%d' % (dst, dst, sT1)); p('s_addc_u32 s%d, s%d, 0' % (dst + 1, dst + 1))
        p('s_mov_b32 s%d, %d' % (dst + 2, 131072 + 4096)); p('s_mov_b32 s%d, 0x00020000' % (dst + 3))
    p('s_mul_i32 s%d, s%d, %d' % (sT0, sQB, 8 * 40960)); p('s_add_u32 s%d, s%d, %d' % (sT0, sT0, XH))
    p('s_add_u32 s%d, s%d, s%d' % (sXH, sGS, sT0)); p('s_addc_u32 s%d, s%d, 0' % (sXH + 1, sGS + 1))
    p('s_mov_b32 s%d, %d' % (sXH + 2, 8 * 40960)); p('s_mov_b32 s%d, 0x00020000' % (sXH + 3))
    p('s_mov_b32 s%d, s%d' % (sPD3, sGS)); p('s_mov_b32 s%d, s%d' % (sPD3 + 1, sGS + 1))
    p('s_add_u32 s%d, s%d, %d' % (sGS, sGS, GS)); p('s_addc_u32 s%d, s%d, 0' % (sGS + 1, sGS + 1))
    p('s_mov_b32 s%d, %d' % (sGS + 2, GSB)); p('s_mov_b32 s%d, 0x00020000' % (sGS + 3))
    p('s_lshl_b32 s%d, s%d, 21' % (sT0, sQB)); p('s_add_u32 s%d, s%d, %d' % (sT0, sT0, OB))
    p('s_add_u32 s%d, s%d, s%d' % (sOB, sPD3, sT0)); p('s_addc_u32 s%d, s%d, 0' % (sOB + 1, sPD3 + 1))
    p('s_mov_b32 s%d, %d' % (sOB + 2, 4 * 524288)); p('s_mov_b32 s%d, 0x00020000' % (sOB + 3))
    p('v_lshl_add_u32 v5, v1, 3, v3'); p('v_lshlrev_b32 v5, 8, v5'); p('v_xor_b32 v6, v4, v3'); p('v_lshl_add_u32 v5, v6, 4, v5')
    p('v_add_u32 v%d, 4096, v5' % vKV); p('v_add_u32 v%d, %d, v5' % (vKV + 1, 4096 + 1024 - BLK))
    p('v_lshrrev_b32 v5, 1, v1'); p('v_lshlrev_b32 v5, 4, v5'); p('v_lshl_add_u32 v5, v3, 2, v5'); p('v_and_b32 v6, 1, v1'); p('v_lshl_add_u32 v5, v6, 1, v5')
    p('v_lshlrev_b32 v5, 8, v5'); p('v_lshl_add_u32 v5, v4, 4, v5')
    p('v_add_u32 v%d, %d, v5' % (vKV + 2, 4096 - 2 * BLK)); p('v_add_u32 v%d, %d, v5' % (vKV + 3, 4096 + 256 - 3 * BLK))
    p('v_bfe_u32 v5, v2, 2, 2'); p('v_and_b32 v6, 3, v2'); p('v_lshrrev_b32 v7, 5, v2'); p('v_and_b32 v8, 1, v3')
    p('v_mul_u32_u24 v9, %d, v5' % BLK); p('v_lshl_add_u32 v9, v7, 9, v9'); p('v_lshl_add_u32 v9, v8, 5, v9')
    p('v_and_b32 v10, 1, v6'); p('v_lshl_add_u32 v9, v10, 4, v9'); p('v_lshrrev_b32 v10, 1, v6'); p('v_lshl_add_u32 v%d, v10, 3, v9' % cW)
    p('v_lshrrev_b32 v9, 1, v5'); p('v_mul_u32_u24 v9, %d, v9' % WST); p('v_and_b32 v10, 1, v5'); p('v_mul_u32_u24 v10, %d, v10' % BLK)
    p('v_add3_u32 v9, v9, v10, %d' % 0); p('v_add_u32 v9, %d, v9' % (2 * BLK))
    p('v_lshl_add_u32 v9, v7, 8, v9'); p('v_lshl_add_u32 v9, v8, 5, v9'); p('v_lshl_add_u32 v%d, v6, 3, v9' % cV)
    p('v_bfe_u32 v9, v2, 3, 2'); p('v_mul_u32_u24 v9, %d, v9' % WST); p('v_bfe_u32 v10, v2, 2, 1'); p('v_mul_u32_u24 v10, %d, v10' % BLK)
    p('v_add_u32 v9, v9, v10'); p('v_lshl_add_u32 v9, v6, 8, v9')
    p('v_xor_b32 v10, v7, v6'); p('v_lshl_add_u32 v%d, v10, 4, v9' % cK0)
    p('v_xor_b32 v10, 2, v10'); p('v_lshl_add_u32 v%d, v10, 4, v9' % cK1)
    p('v_lshlrev_b32 v%d, 5, v7' % vGS); p('v_add_u32 v%d, %d, v%d' % (vGS, GSOFF, vGS))
    p('v_lshlrev_b32 v9, 19, v1'); p('v_lshl_add_u32 v9, v8, 10, v9'); p('v_lshl_add_u32 v9, v7, 8, v9'); p('v_lshl_add_u32 v%d, v4, 4, v9' % vO)
    sNTp, sRB = sPS3 + 2, sPS3 + 3
    p('s_and_b32 s%d, s2, 1' % sT0); p('s_lshl_b32 s%d, s%d, 2' % (sT0, sT0)); p('s_bfe_u32 s%d, s2, 0x20003' % sT1); p('s_add_u32 s%d, s%d, s%d' % (sNTp, sT0, sT1))
    p('s_bfe_u32 s%d, s2, 0x20001' % sT0); p('s_lshr_b32 s%d, s2, 5' % sT1)
    p('s_lshl_b32 s%d, s%d, 2' % (sPD5 + 3, sT1)); p('s_add_u32 s%d, s%d, s%d' % (sPD5 + 3, sPD5 + 3, sT0)); p('s_min_u32 s%d, s%d, 14' % (sPD5 + 3, sPD5 + 3))
    p('s_lshl_b32 s%d, s%d, 3' % (sT0, sT0)); p('s_add_u32 s%d, s%d, s%d' % (sRB, sT0, sT1))
    p('s_mul_i32 s%d, s%d, 160' % (sP4, sNTp)); p('s_mul_i32 s%d, s%d, %d' % (sT1, sPD5 + 3, 128 * 1280)); p('s_add_u32 s%d, s%d, s%d' % (sT1, sT1, sP4))
    p('s_add_u32 s%d, s%d, s%d' % (sPS5, sPS5, sT1)); p('s_addc_u32 s%d, s%d, 0' % (sPS5 + 1, sPS5 + 1))
    p('s_sub_u32 s%d, %d, s%d' % (sPS5 + 2, 1728 * 1280, sT1)); p('s_max_i32 s%d, s%d, 0' % (sPS5 + 2, sPS5 + 2)); p('s_mov_b32 s%d, 0x00020000' % (sPS5 + 3))
    p('s_mul_i32 s%d, s%d, %d' % (sT0, sNTp, 1728 * 160)); p('s_mul_i32 s%d, s%d, 20480' % (sT1, sPD5 + 3))
    p('s_sub_u32 s%d, %d, s%d' % (sPD5 + 2, 1728 * 160, sT1)); p('s_max_i32 s%d, s%d, 0' % (sPD5 + 2, sPD5 + 2)); p('s_mov_b32 s%d, 0x00020000' % (sPD5 + 3))
    p('s_add_u32 s%d, s%d, s%d' % (sT0, sT0, sT1)); p('s_add_u32 s%d, s%d, %d' % (sT0, sT0, WP5))
    p('s_add_u32 s%d, s%d, s%d' % (sPD5, sPD3, sT0)); p('s_addc_u32 s%d, s%d, 0' % (sPD5 + 1, sPD3 + 1))
    p('s_lshl_b32 s%d, s%d, 5' % (sT0, sNTp)); p('s_add_u32 s%d, s%d, s%d' % (sT0, sT0, sRB)); p('s_mul_i32 s%d, s%d, 20480' % (sT0, sT0)); p('s_add_u32 s%d, s%d, %d' % (sT0, sT0, WP3))
    p('s_add_u32 s%d, s%d, s%d' % (sPD3, sPD3, sT0)); p('s_addc_u32 s%d, s%d, 0' % (sPD3 + 1, sPD3 + 1))
    p('s_mov_b32 s%d, 20480' % (sPD3 + 2)); p('s_mov_b32 s%d, 0x00020000' % (sPD3 + 3))
    p('s_mul_i32 s%d, s%d, %d' % (sT1, sRB, 128 * 1280)); p('s_add_u32 s%d, s%d, s%d' % (sT1, sT1, sP4))
    p('s_add_u32 s%d, s%d, s%d' % (sPS3, sPS3, sT1)); p('s_addc_u32 s%d, s%d, 0' % (sPS3 + 1, sPS3 + 1))
    p('s_sub_u32 s%d, %d, s%d' % (sPS3 + 2, 4096 * 1280, sT1)); p('s_mov_b32 s%d, 0x00020000' % (sPS3 + 3))
    p('s_mov_b32 s%d, 4096' % sP4)
    p('v_and_b32 v252, 63, v255'); p('v_lshrrev_b32 v253, 6, v255'); p('v_mul_u32_u24 v253, 320, v253'); p('v_add_u32 v252, v252, v253')
    p('v_lshlrev_b32 v255, 4, v252')
    p('v_mov_b32 v%d, v%d' % (vRW, cW))
    p('s_mov_b32 s%d, 0' % sRD); p('s_mov_b32 s%d, 4' % sCNT)
    p('v_lshlrev_b32 v11, 2, v2'); p('v_lshrrev_b32 v12, 2, v2'); p('s_add_u32 s%d, s%d, 4' % (sT0, sQB))
    p('v_cmp_eq_u32 vcc, s%d, v12' % sT0); p('v_cndmask_b32 v12, 0, 1, vcc'); p('v_cmp_gt_u32 vcc, 10, v2'); p('v_cndmask_b32 v12, v12, 1, vcc')
    p('v_mul_lo_u32 v12, v12, s%d' % sP4 if False else 's_mov_b32 s%d, 0x01010101' % sT1); p('v_mul_lo_u32 v12, v12, s%d' % sT1)
    p('v_lshrrev_b32 v13, 3, v0'); p('v_lshlrev_b32 v13, 7, v13'); p('v_bfe_u32 v14, v0, 1, 2'); p('v_lshl_add_u32 v13, v14, 4, v13')
    p('v_and_b32 v14, 1, v0'); p('v_xor_b32 v14, 1, v14'); p('v_mul_u32_u24 v14, 2560, v14'); p('v_add_u32 v13, v13, v14')
    p('s_lshl_b32 s%d, s%d, 2' % (sT0, sW)); p('s_add_u32 s%d, s%d, %d' % (sT0, sT0, FLAGOFF + 16)); p('v_mov_b32 v15, s%d' % sT0); p('v_mov_b32 v16, %d' % (FLAGOFF + 16))
    p('s_lshl_b32 s%d, s%d, 10' % (sT0, sW)); p('s_add_u32 m0, s%d, %d' % (sT0, GSOFF))
    p('s_mov_b32 s%d, %d' % (sPOLL, POLLS)); p('v_mov_b32 v17, 0')
    stamp(p, 3, True)
    p('s_cmp_eq_u32 s%d, 2' % sMODE); p('s_cbranch_scc1 %s' % Lgo)
    p('s_cmp_lg_u32 s%d, 0' % sW); p('s_cbranch_scc1 %s' % Lsync)
    p('v_cmp_ne_u32 vcc, 0, v12'); p('s_mov_b64 exec, vcc')
    p(Lpoll + ':')
    p('buffer_load_dword v14, v11, %s, 0 offen sc0 sc1' % s(sDBG, 4))
    p('s_sub_u32 s%d, s%d, 1' % (sPOLL, sPOLL))
    p('s_waitcnt vmcnt(0)')
    p('v_cmp_ne_u32 vcc, v14, v12'); p('s_and_b64 exec, vcc, vcc'); p('s_cbranch_scc0 %s' % Lno1)
    if SLP: p('s_sleep %d' % SLP)
    p('s_cmp_gt_i32 s%d, 0' % sPOLL); p('s_cbranch_scc1 %s' % Lpoll)
    p('s_mov_b64 exec, -1'); p('v_mov_b32 v17, 1')
    p(Lno1 + ':')
    p('s_mov_b64 exec, -1'); p('ds_write_b32 v16, v17'); p('s_waitcnt lgkmcnt(0)')
    p(Lsync + ':')
    p('s_barrier')
    p('ds_read_b32 v20, v16'); p('s_waitcnt lgkmcnt(0)'); p('v_readfirstlane_b32 s%d, v20' % sT0)
    p('s_cmp_lg_u32 s%d, 0' % sT0); p('s_cbranch_scc1 %s' % Lredo)
    p(Lgo + ':')
    segs.append(('raw', p))
    p = Seq()
    stamp(p, 4, True)
    if 'inv' in E2: p('buffer_inv sc1')
    p('buffer_load_dwordx4 v13, %s, 0 offen lds' % s(sGS, 4), ('gs', 0))
    for s8 in range(4):
        for x in x_loads(s8): p(*x)
    for x in w_reads(0): p(x)
    p.need(lambda t: t[0] == 'gs'); p('s_barrier')
    for x in gs_reads(0) + gs_reads(1): p(x)
    for x in h_stream(0): p(x)
    stamp(p, 1); stamp(p, 5, True)
    if prof: p('s_waitcnt lgkmcnt(0)')
    segs.append(('once', p))

    RAMP = [[4, 5], [6, 7], [8, 9], [10, 11], [12], [13], [14], [15]]
    def p1(it):
        q = Seq()
        peel = it == 0
        if not peel: q(L1 + ':')
        wn = 8
        for st in range(8):
            sg = 8 * it + st; c = sg >> 2
            b = sg & 1
            mf = ['%s %s, %s, %s, %s' % (MF, v(ACC(tg, t), 16), a(WF(b, t), 4), v(HB + (b * 2 + tg) * 4, 4), '0' if sg == 0 else v(ACC(tg, t), 16))
                  for t in range(4) for tg in range(2)]
            g = [[] for _ in range(8)]
            q.touch(a(WF(b, 0), 16) + ' ' + v(GB + 8 * ((sg + 1) & 1), 8) + ' ' + v(XR + ((sg + 1) & 7) * 8, 8))
            if st == 6: g[0].append('v_add_u32 v%d, 512, v%d' % (vGS, vGS))
            g[0] += gs_reads(sg + 2)
            if st & 3 == 2:
                if peel: g[2] += adv(sRD, sT1)
                else: g[5] += adv(sRD, sT1)[:2]; g[6] += adv(sRD, sT1)[2:]
            if st & 3 == 3:
                g[0] += [('NEED', lambda t, c=c: t[0] == 'dma' and t[1] <= c + 1), 's_barrier']
                g[0] += ['v_add_u32 v%d, s%d, v%d' % (vRW, sRD, cW)]
            wr = w_reads(sg + 1)
            if 'nowr' not in E2:
                for i in range(8): g[1 + i // 2].append(wr[i])
            if peel:
                ops = []
                for o in RAMP[st]:
                    if o == 'w':
                        pre = fill_begin() if wn & 3 == 0 else []
                        post = (fill_end() if wn != 23 else fill_end()[:4]) if wn & 3 == 3 else []
                        ops.append(pre + [fill_dma(wn & 3, wn >> 2)] + post); wn += 1
                    else:
                        xl = x_loads(o)
                        ops.append((['s_add_u32 s%d, s%d, 4096' % (sXOFF, sXOFF)] if o & 3 == 0 else []) + [xl[0]]); ops.append([xl[1]])
                for i, o in enumerate(ops): g[3 + i] += o
            else:
                xl = x_loads(sg + 8)
                if 'nox' not in E2: g[5].append(xl[0]); g[6].append(xl[1])
                if st & 3 == 0:
                    g[1].append('s_add_u32 s%d, s%d, 4096' % (sXOFF, sXOFF)); g[2].append(fill_end()[4]); g[6] += fill_begin()
                if st & 3 == 1: g[5] += fill_end()[:2]; g[6] += fill_end()[2:4]
                if 'nowq' not in E2: g[7].append(fill_dma(st & 3, c + 4))
                if st == 7:
                    g[6] += ['s_sub_u32 s%d, s%d, 1' % (sCNT, sCNT), 's_cmp_eq_u32 s%d, 1' % sCNT, 's_cselect_b32 s%d, 0, s%d' % (sXH + 2, sXH + 2)]
            if 'noh' not in E2: pack(g, h_stream(sg + 1), 0, 7)
            interleave(q, mf, g)
        if peel: return q
        q('s_cmp_eq_u32 s%d, 2' % sCNT); q('s_cbranch_scc0 %s' % L1s)
        for j in range(4):
            q('s_mov_b32 s%d, s%d' % (sFA + j, sK + j)); q('s_mov_b32 s%d, s%d' % (sFB2 + j, sV + j)); q('v_mov_b32 v%d, v%d' % (vF + j, vKV + j))
        q('s_mov_b32 s%d, 8192' % sFSTR); q('s_mov_b32 s%d, -8192' % sFOFF)
        q(L1s + ':')
        q('s_cmp_lg_u32 s%d, 0' % sCNT); q('s_cbranch_scc1 %s' % L1)
        return q
    segs.append(('once', p1(0)))
    segs.append(('loop', 4, lambda it: p1(it + 1)))

    def qcvt(tg):
        out = []
        for sd in range(8):
            for q in range(4):
                src = ACC(tg, sd >> 1) + 8 * (sd & 1) + 2 * q
                tm = TM + ((4 * sd + q) & 3)
                out.append('v_cvt_pk_bf16_f32 v%d, v%d, v%d' % (tm, src, src + 1))
                out.append('v_accvgpr_write_b32 a%d, v%d' % (QF(tg, sd) + q, tm))
        o2 = [out[0]]
        for i in range(2, len(out), 2): o2 += [out[i], out[i - 1]]
        return o2 + [out[-1]]
    def standin(tg):
        sb = S_ + 16 * tg; tm = TM + 4 + 2 * tg
        o = ['v_max3_f32 v%d, v%d, v%d, v%d' % (tm, sb, sb + 1, sb + 2), 'v_max3_f32 v%d, v%d, v%d, v%d' % (tm + 1, sb + 3, sb + 4, sb + 5)]
        for i, r_ in enumerate(range(6, 16, 2)): o.append('v_max3_f32 v%d, v%d, v%d, v%d' % (tm + (i & 1), tm + (i & 1), sb + r_, sb + r_ + 1))
        o += ['v_max_f32 v%d, v%d, v%d' % (tm, tm, tm + 1), 'v_mov_b32 v%d, v%d' % (tm + 1, tm), 'v_permlane32_swap_b32 v%d, v%d' % (tm, tm + 1),
              'v_max_f32 v%d, v%d, v%d' % (tm, tm, tm + 1), 'v_sub_f32 v%d, %s, v%d' % (tm, f32(-40.0), tm),
              'v_cndmask_b32 v%d, v%d, v%d, %s' % (tm, tm, vMX + tg, s(sFBM, 2))]
        o += ['v_add_f32 v%d, v%d, v%d' % (sb + r_, sb + r_, tm) for r_ in range(16)]
        return o
    def nmfill(tg): return ['v_mov_b32 v%d, v%d' % (NM + 16 * tg + r_, TM + 4 + 2 * tg) for r_ in range(16)]
    def enter(t_, main):
        t_('v_add_u32 v%d, s%d, v%d' % (vRK0, sRD, cK0)); t_('v_add_u32 v%d, s%d, v%d' % (vRK1, sRD, cK1)); t_('v_add_u32 v%d, s%d, v%d' % (vRV, sRD, cV))
        for sd in range(8): t_(k_read(sd))
        if main:
            fl = [fill_end()[4]]
            for u in (14, 15): fl += fill_begin() + [fill_dma(i, u) for i in range(4)] + fill_end()
            c0 = qcvt(0)
            for i, x in enumerate(c0):
                t_(x)
                if i % 3 == 2 and fl:
                    y = fl.pop(0); t_(*y) if isinstance(y, tuple) else t_(y)
            assert not fl
        t_('s_mov_b32 s%d, s%d' % (sRK, sRD))
        for x in adv(sRK, sT1): t_(x)
        t_('s_cmp_lg_u32 s%d, 0' % sFB); t_('s_cselect_b64 %s, -1, 0' % s(sFBM, 2))
        g = [[] for _ in range(16)]
        for f in range(8): g[f] += v_reads(f)
        g[0] += ['v_add_u32 v%d, s%d, v%d' % (vRK0, sRK, cK0), 'v_add_u32 v%d, s%d, v%d' % (vRK1, sRK, cK1)]
        if main:
            pack(g, qcvt(1), 0, 7)
            g[7] += [('NEED', lambda t: t[0] == 'dma' and t[1] <= 11), 's_barrier']
        for sd in range(8): g[8 + sd].append(k_read(sd))
        g[8] += ['v_mov_b32 v%d, 0' % (LA + i) for i in range(4)]
        sm = softmax(0)
        pack(g, standin(0) + sm[:SMX], 10, 15)
        interleave(t_, s_mfma(0, True) + s_mfma(1, True), g)
        for x in sm[SMX:]: t_(x)
        t_('s_mov_b32 s%d, %d' % (sCNT, PA))
    SMX = int(os.environ.get('SMX', 10))
    t_ = Seq()
    stamp(t_, 2)
    enter(t_, True)
    stamp(t_, 3)
    if prof: t_('s_waitcnt lgkmcnt(0)')
    t_(Lent + ':')
    segs.append(('once', t_))

    def pk_loads():
        o = []
        for j in range(5):
            ta, tb = TM + 2 * (j & 1), TM + 2 * (j & 1) + 1
            o += ['v_add_u32 v%d, %d, v252' % (ta, 64 * j), 'v_mul_u32_u24 v%d, 6554, v%d' % (tb, ta), 'v_lshrrev_b32 v%d, 16, v%d' % (tb, tb),
                  'v_mul_u32_u24 v%d, 1120, v%d' % (tb, tb), 'v_lshl_add_u32 v%d, v%d, 4, v%d' % (tb, ta, tb),
                  ('buffer_load_dwordx4 %s, v%d, %s, 0 offen' % (a(aPK + 4 * j, 4), tb, s(sPS3, 4)), None),
                  ('buffer_load_dwordx4 %s, v%d, %s, 0 offen' % (a(aPK + 20 + 4 * j, 4), tb, s(sPS5, 4)), None)]
        return o
    def pk_stores():
        return [('buffer_store_dwordx4 %s, v255, %s, %s offen offset:%d%s' % (a(aPK + b + 4 * j, 4), s(d, 4), 's%d' % sP4 if j == 4 else '0', (j & 3) * 1024, PKMOD), None)
                for j in range(5) for d, b in ((sPD3, 0), (sPD5, 20))]
    def p2(j, first=False, last=False, loop=None, job=None, cnt=None):
        q = Seq()
        if loop: q(loop + ':')
        g = [[] for _ in range(32)]
        q('s_waitcnt lgkmcnt(8)')
        if last:
            mf = pv_mfma(0) + pv_mfma(1)
            pack(g, softmax(1), 0, 7)
            interleave(q, mf, g)
            return q
        mf = pv_mfma(0, first) + s_mfma(0) + pv_mfma(1, first) + s_mfma(1)
        if j + 6 < 16:
            g[0] += fill_begin()
            for i in range(4): g[1 + i] += [] if 'nokv' in E2 else [fill_dma(i, j + 16)]
            fe = fill_end()
            g[5] += fe[:2]; g[6] += fe[2:4]; g[7] += fe[4:]
        g[8].append('v_add_u32 v%d, s%d, v%d' % (vRV, sRK, cV))
        ad = adv(sRK, sT1)
        g[9] += ad[:2]; g[10] += ad[2:]
        g[11] += ['v_add_u32 v%d, s%d, v%d' % (vRK0, sRK, cK0)]; g[12] += ['v_add_u32 v%d, s%d, v%d' % (vRK1, sRK, cK1)]
        if loop: g[13] += ['s_sub_u32 s%d, s%d, 1' % (sCNT, sCNT)]
        if cnt: g[13] += ['s_mov_b32 s%d, %d' % (sCNT, cnt)]
        for f in range(8): g[16 + f] += [] if 'novr' in E2 else v_reads(f)
        g[15] += [('NEED', lambda t, j=j: t[0] == 'dma' and t[1] <= j + 12)] + ([] if 'nobar' in E2 else ['s_barrier'])
        for sd in range(8): g[24 + sd] += [] if 'nokr' in E2 else [k_read(sd)]
        if job and 'nojob' not in E2:
            jb = job(); n = len(jb)
            for i, x in enumerate(jb): g[8 + (i * 22) // n].append(x)
        if first:
            pack(g, nmfill(0), 0, 6)
            pack(g, standin(1) + softmax(1), 0, 15)
            pack(g, nmfill(1), 16, 22)
        else:
            pack(g, softmax(1), 2, 15)
        g[7].append('s_waitcnt lgkmcnt(0)')
        pack(g, softmax(0), 18, 31)
        if loop: g[31].append('s_cmp_lg_u32 s%d, 0' % sCNT)
        interleave(q, mf, g)
        if loop: q('s_cbranch_scc1 %s' % loop)
        return q
    UNR = os.environ.get('UNR', '5,2,10,2')
    segs.append(('once', p2(0, first=True)))
    if UNR:
        l0, ls, s0, ss = [int(x) for x in UNR.split(',')]
        for j in range(1, 15):
            jb = []
            for n in range(5):
                if l0 + (n * ls) // 2 == j: jb += pk_loads()[7 * n:7 * n + 7]
                if s0 + (n * ss) // 2 == j: jb += pk_stores()[2 * n:2 * n + 2]
            segs.append(('once', p2(j, job=(lambda jb=jb: jb) if jb else None)))
    else:
        assert PA + PB + PC == 12
        segs.append(('loop', PA, lambda it: p2(it + 1, loop=L2)))
        segs.append(('once', p2(PA + 1, job=pk_loads, cnt=PB)))
        segs.append(('loop', PB, lambda it: p2(it + PA + 2, loop=Lpk)))
        segs.append(('once', p2(PA + PB + 2, job=pk_stores, cnt=PC)))
        segs.append(('loop', PC, lambda it: p2(it + PA + PB + 3, loop=Lps)))
    segs.append(('once', p2(15, last=True)))

    e = Seq()
    stamp(e, 4)
    e('s_lshl_b32 s%d, s%d, 14' % (sT0, sHEAD))
    for tg in range(2):
        la = LA + 2 * tg
        e('v_add_f32 v%d, v%d, v%d' % (la, la, la + 1)); e('v_mov_b32 v%d, v%d' % (la + 1, la))
        e('v_permlane32_swap_b32 v%d, v%d' % (la, la + 1)); e('v_add_f32 v%d, v%d, v%d' % (la, la, la + 1))
        e('v_rcp_f32 v%d, v%d' % (TM + 2 * tg, la))
    n = 0
    for t in range(4):
        for tg in range(2):
            for c in range(2):
                src = ACC(tg, t) + 8 * c
                dst = S_ + 4 * (n & 7); n += 1
                for q in range(4):
                    e('v_pk_mul_f32 %s, %s, %s op_sel_hi:[1,0]' % (v(src + 2 * q, 2), v(src + 2 * q, 2), v(TM + 2 * tg, 2)))
                for q in range(4):
                    e('v_cvt_pk_bf16_f32 v%d, v%d, v%d' % (dst + q, src + 2 * q, src + 2 * q + 1))
                e('buffer_store_dwordx4 %s, v%d, %s, s%d offen offset:%d%s' % (v(dst, 4), vO, s(sOB, 4), sT0, tg * 2048 + c * 512, OMOD))
        if t < 3: e('s_add_u32 s%d, s%d, 4096' % (sT0, sT0))
    e('s_mov_b32 s%d, %s' % (sT1, f32(2.0 ** 64)))
    e('v_cmp_lt_f32 vcc, v%d, s%d' % (LA, sT1)); e('v_cndmask_b32 v%d, 1, 0, vcc' % TM)
    e('v_cmp_lt_f32 vcc, v%d, s%d' % (LA + 2, sT1)); e('v_cndmask_b32 v%d, 1, v%d, vcc' % (TM, TM))
    e('v_cmp_ne_u32 vcc, 0, v%d' % TM); e('s_cmp_lg_u64 vcc, 0'); e('s_cselect_b32 s%d, 1, 0' % sT1)
    e('s_lshl_b32 s%d, s%d, 2' % (sT0, sW)); e('s_add_u32 s%d, s%d, %d' % (sT0, sT0, FLAGOFF))
    e('v_mov_b32 v%d, s%d' % (TM, sT0)); e('v_mov_b32 v%d, s%d' % (TM + 1, sT1)); e('ds_write_b32 v%d, v%d' % (TM, TM + 1))
    e('v_mov_b32 v%d, %d' % (TM + 2, FLAGOFF))
    e('s_waitcnt lgkmcnt(0)'); e('s_barrier')
    e('ds_read_b128 %s, v%d' % (v(TM + 4, 4), TM + 2))
    e('v_or_b32 v%d, v%d, v%d' % (TM, TM + 4, TM + 5)); e('v_or3_b32 v%d, v%d, v%d, v%d' % (TM, TM, TM + 6, TM + 7))
    e('v_readfirstlane_b32 s%d, v%d' % (sT1, TM))
    if prof:
        stamp(e, 5); e('s_waitcnt vmcnt(0)'); stamp(e, 6); e('s_memrealtime s[78:79]'); e('s_waitcnt lgkmcnt(0)')
        e('s_add_u32 s80, s80, %d' % PROF); e('s_addc_u32 s81, s81, 0'); e('s_mov_b32 s82, 0x100000'); e('s_mov_b32 s83, 0x00020000')
        e('s_lshl_b32 s84, s2, 2'); e('s_add_u32 s84, s84, s%d' % sW); e('s_lshl_b32 s84, s84, 6')
        for i in range(10): e('v_mov_b32 v%d, s%d' % (i, 60 + 2 * i))
        e('v_mov_b32 v10, s%d' % sT1); e('v_mov_b32 v11, s%d' % sFB); e('v_mov_b32 v12, 0')
        for i in range(3): e('buffer_store_dwordx4 %s, v12, s[80:83], s84 offen offset:%d' % (v(4 * i, 4), 16 * i))
    e('s_cmp_eq_u32 s%d, 0' % sT1); e('s_cbranch_scc1 %s' % Lend)
    e('s_cmp_lg_u32 s%d, 0' % sFB); e('s_cbranch_scc1 %s' % Lend)
    e('s_mov_b32 s%d, 1' % sFB)
    e('s_waitcnt vmcnt(0) lgkmcnt(0)')
    e('s_mov_b32 s%d, 0' % sFOFF); e('s_mov_b32 s%d, 16' % sCNT); e('s_mov_b32 m0, s%d' % sW44)
    e('v_mov_b32 v%d, 0xff800000' % TM); e('v_mov_b32 v%d, 0xff800000' % (TM + 2))
    e('v_mov_b32 v%d, v%d' % (vRK0, cK0)); e('v_mov_b32 v%d, v%d' % (vRK1, cK1))
    e(Lmx + ':')
    e('s_barrier')
    for i in range(2): e(*fill_dma(i, 0))
    e('s_add_u32 s%d, s%d, 8192' % (sFOFF, sFOFF))
    e('s_waitcnt vmcnt(0)'); e('s_barrier')
    for sd in range(8): e(k_read(sd))
    e('s_waitcnt lgkmcnt(0)')
    for tg in range(2):
        for x in s_mfma(tg, True): e(x)
    for tg in range(2):
        sb = S_ + 16 * tg; tm = TM + 2 * tg
        for r_ in range(0, 16, 2): e('v_max3_f32 v%d, v%d, v%d, v%d' % (tm, tm, sb + r_, sb + r_ + 1))
    e('s_sub_u32 s%d, s%d, 1' % (sCNT, sCNT)); e('s_cmp_lg_u32 s%d, 0' % sCNT); e('s_cbranch_scc1 %s' % Lmx)
    for tg in range(2):
        tm = TM + 2 * tg
        e('v_mov_b32 v%d, v%d' % (tm + 1, tm)); e('v_permlane32_swap_b32 v%d, v%d' % (tm, tm + 1)); e('v_max_f32 v%d, v%d, v%d' % (tm, tm, tm + 1))
        e('v_sub_f32 v%d, 0, v%d' % (vMX + tg, tm))
    e('s_barrier')
    e('s_mov_b32 s%d, 0' % sFOFF); e('s_mov_b32 s%d, 0' % sFILL); e('s_mov_b32 s%d, 0' % sRD)
    for u in range(6):
        for x in fill_begin(): e(x)
        for i in range(4): e(*fill_dma(i, 0))
        for x in fill_end(): e(x)
    e('s_waitcnt vmcnt(0)'); e('s_barrier')
    enter(e, False)
    e('s_waitcnt vmcnt(0) lgkmcnt(0)')
    e('s_branch %s' % Lent)
    e(Lredo + ':')
    e('s_mov_b32 s%d, 1' % sMODE); e('s_mov_b32 s%d, -1' % sTASK)
    e('s_waitcnt vmcnt(0) lgkmcnt(0)'); e('s_barrier')
    e(Lnext + ':')
    e('s_add_u32 s%d, s%d, 1' % (sTASK, sTASK))
    e('s_mov_b32 s18, s%d' % sTASK); e('s_lshl_b32 s16, s%d, 4' % sQB); e('s_add_u32 s16, s16, s%d' % sTASK); e('s_sub_u32 s16, s16, 40')
    e('s_cmp_ge_u32 s%d, 40' % sTASK); e('s_cselect_b32 s17, 1, 0')
    e('s_cmp_lt_u32 s%d, 56' % sTASK); e('s_cbranch_scc1 %s' % Lprod)
    e('s_mov_b32 s%d, 2' % sMODE); e('s_branch %s' % Lpost)
    e(Lend + ':'); e('s_endpgm')
    segs.append(('once', e))
    assemble(k, segs)
    return k
```

```python
import sys
sys.path.insert(0, 'dev')
from asmlib import *
from k1 import gen_k1
from k2 import gen_k2, K2_LDS
import k3, k5, os
def main(out, prof=False):
    if os.environ.get('FUSE', '1') == '1':
        import k2f
        ks = [k2f.gen_k2(prof)]; la = [('attn_kernel', 256, 256, k2f.K2_LDS)]
    else:
        ks = [gen_k1(prof), gen_k2(prof)]; la = [('prep_kernel', 256, 256, 4096), ('attn_kernel', 256, 256, K2_LDS)]
    for i, kind in enumerate(('oproj', 'mlp1', 'mlp2')):
        if kind == 'mlp1' or os.environ.get('OLD3'):
            ks.append(k3.gen(kind, prof, i + 1)); la.append((kind + '_kernel', k3.CFG[kind]['grid'], 512, k3.lds_size(kind)))
        else:
            ks.append(k5.gen(kind, prof, i + 1)); la.append((kind + '_kernel', 256, k5.BLOCK, k5.lds_size(kind)))
    open(out, 'w').write(render(ks, la))
if __name__ == '__main__':
    main(sys.argv[1] if len(sys.argv) > 1 else 'kern.s', len(sys.argv) > 2)
```

```python
from asmlib import *
from layout import *
from sched import *
from k1 import f32, srd

BLK, WST = 1088, 4480
SLOT = 4 * WST
R = 7
GSOFF = R * SLOT
FLAGOFF = GSOFF + 4096
SCR = FLAGOFF + 64
K2_LDS = SCR + 2048
GSB = 5120
POLLS = int(__import__('os').environ.get('POLLS', 4000))
MF = 'v_mfma_f32_32x32x16_bf16'

def ACC(tg, t): return (tg * 4 + t) * 16
XR = 128
HB = 192
GB = 208
TM = 224
S_ = 128
NM = 160
P_ = 192
LA = 208
vF = 232
vKV = 236
vX0, vX1 = 240, 241
cW, cK0, cK1, cV = 242, 243, 244, 245
vRW, vRK0, vRK1, vRV = 246, 247, 248, 249
vGS, vO = 250, 251
def QF(tg, s): return (tg * 8 + s) * 4
def KF(s): return 64 + 4 * s
def VF(f): return 96 + 4 * f
def WF(b, t): return 128 + 16 * b + 4 * t
sWQ, sK, sV, sXH, sOB, sGS = 4, 8, 12, 16, 20, 24
sW, sFILL, sRD, sFOFF, sXOFF, sCNT, sHEAD, sQB, sFB, sT0, sT1, sW44, sFSTR, sRV, sRK = 28, 29, 30, 31, 32, 33, 34, 35, 36, 37, 38, 39, 40, 41, 42
sFA, sFB2 = 44, 48
sPS3, sPS5, sPD3, sPD5, sP4 = 84, 88, 92, 96, 100
aPK = 160
sFBM = 52
sDBG, sMODE, sTASK, sPOLL, sWQR = 56, 54, 55, 43, 74
vMX = 253
import os
PA, PB, PC = [int(x) for x in os.environ.get('PABC', '2,5,5').split(',')]
PKMOD = os.environ.get('PKMOD', ' sc1')
OMOD = os.environ.get('OMOD', ' sc1')
SLP = int(os.environ.get('SLP', 16))
FST = os.environ.get('FST', 'sc0 sc1')
PDL = int(os.environ.get('PDL', 0))
E2 = os.environ.get('E2', '').split(',')

COST = {'v_exp': 8}
def cost(t):
    if isinstance(t, tuple):
        if t[0] in ('NEED', 'TOUCH'): return 4
        t = t[0]
    return 8 if t.startswith(('v_exp', 'v_rcp')) else 4

def pack(gaps, stream, g0, g1):
    n = g1 - g0 + 1
    tot = sum(cost(x) for x in stream) + sum(cost(x) for g in range(g0, g1 + 1) for x in gaps[g])
    i = 0; cum = 0
    for q, g in enumerate(range(g0, g1 + 1)):
        cum += sum(cost(x) for x in gaps[g])
        lim = tot * (q + 1) / n
        while i < len(stream) and (cum + cost(stream[i]) / 2 <= lim or g == g1):
            gaps[g].append(stream[i]); cum += cost(stream[i]); i += 1
    assert i == len(stream)

def fill_dma(i, u):
    srdr = sFA if i < 2 else sFB2
    return ('buffer_load_dwordx4 v%d, %s, s%d offen offset:%d lds' % (vF + i, s(srdr, 4), sFOFF, i * BLK), ('dma', u))

def adv(sreg, tmp):
    return ['s_add_u32 s%d, s%d, %d' % (sreg, sreg, SLOT), 's_cmp_ge_u32 s%d, %d' % (sreg, R * SLOT),
            's_cselect_b32 s%d, %d, 0' % (tmp, R * SLOT), 's_sub_u32 s%d, s%d, s%d' % (sreg, sreg, tmp)]

def h_stream(s1):
    out = []
    gb = GB + 8 * (s1 & 1)
    n = 0
    for tg in range(2):
        x = XR + ((s1 & 7) * 2 + tg) * 4
        h = HB + ((s1 & 1) * 2 + tg) * 4
        for q in range(4):
            t0 = TM + 2 * (n & 3); n += 1
            out.append('v_fma_mix_f32 v%d, v%d, v%d, v%d op_sel:[0,0,0] op_sel_hi:[1,1,1]' % (t0, x + q, gb + q, gb + 4 + q))
            out.append('v_fma_mix_f32 v%d, v%d, v%d, v%d op_sel:[1,1,1] op_sel_hi:[1,1,1]' % (t0 + 1, x + q, gb + q, gb + 4 + q))
            out.append('v_cvt_pk_bf16_f32 v%d, v%d, v%d' % (h + q, t0, t0 + 1))
    o2 = []
    for i in range(0, len(out), 3):
        o2 += out[i:i + 2]
        if i >= 3: o2.append(out[i - 1])
    o2.append(out[-1])
    return o2

def w_reads(s1):
    b = s1 & 1; sl = s1 & 3
    return ['ds_read_b64_tr_b16 %s, v%d offset:%d' % (a(WF(b, t) + 2 * jh, 2), vRW, sl * WST + jh * 256 + t * 64)
            for t in range(4) for jh in range(2)]
def gs_reads(s2):
    gb = GB + 8 * (s2 & 1)
    return ['ds_read_b128 %s, v%d offset:%d' % (v(gb + 4 * h, 4), vGS, (s2 & 7) * 64 + h * 16) for h in range(2)]
def x_loads(s8):
    return [('buffer_load_dwordx4 %s, v%d, %s, s%d offen offset:%d' % (v(XR + ((s8 & 7) * 2 + tg) * 4, 4), vX0 + tg, s(sXH, 4), sXOFF, (s8 & 3) * 1024), None)
            for tg in range(2)]
def k_read(sd):
    return 'ds_read_b128 %s, v%d offset:%d' % (a(KF(sd), 4), vRK0 + (sd & 1), (sd >> 1) * 64)
def v_reads(f):
    sp, t = f >> 2, f & 3
    return ['ds_read_b64_tr_b16 %s, v%d offset:%d' % (a(VF(f) + 2 * jh, 2), vRV, sp * 2 * WST + jh * 512 + t * 64) for jh in range(2)]
def softmax(tg):
    sb = S_ + 16 * tg
    out = []
    def E(r): return 'v_exp_f32 v%d, v%d' % (sb + r, sb + r)
    def C(q): return 'v_cvt_pk_bf16_f32 v%d, v%d, v%d' % (P_ + 8 * tg + q, sb + 2 * q, sb + 2 * q + 1)
    def A(r): return 'v_add_f32 v%d, v%d, v%d' % (LA + 2 * tg + (r & 1), LA + 2 * tg + (r & 1), sb + r)
    for q in range(9):
        if q < 8 and 'noexp' not in E2: out += [E(2 * q), E(2 * q + 1)]
        if q > 0:
            out += [C(q - 1)]
            if 'noadd' in E2: pass
            elif 'pkadd' not in E2: out += [A(2 * q - 2), A(2 * q - 1)]
            else: out += ['v_pk_add_f32 %s, %s, %s' % (v(LA + 2 * tg, 2), v(LA + 2 * tg, 2), v(sb + 2 * q - 2, 2))]
    return out
def s_mfma(tg, czero=False):
    d = v(S_ + 16 * tg, 16)
    return ['%s %s, %s, %s, %s' % (MF, d, a(KF(sd), 4), a(QF(tg, sd), 4), (('0' if czero else v(NM + 16 * tg, 16)) if sd == 0 else d)) for sd in range(8)]
def pv_mfma(tg, first=False):
    return ['%s %s, %s, %s, %s' % (MF, v(ACC(tg, f & 3), 16), a(VF(f), 4), v(P_ + 8 * tg + 4 * (f >> 2), 4),
                                   '0' if (first and f < 4) else v(ACC(tg, f & 3), 16)) for f in range(8)]

PROF = 0x3000000
def gen_k2(prof=False):
    def stamp(q, i, pro=False):
        if 'pg' in E2 and i in (1, 2, 3, 4, 5):
            if pro != 'g': return
        elif pro == 'g': return
        elif 'pro' in E2 and i in (1, 2, 3, 4, 5) and not pro: return
        elif pro and 'pro' not in E2: return
        if prof: q('s_memtime s[%d:%d]' % (60 + 2 * i, 61 + 2 * i))

    k = K('attn_kernel', vgprs=256, agprs=200)
    Lend, L1, L1s, L2, Lent, Lnom, Lfb, Lmx = [k.label(x) for x in ('end', 'p1', 'p1s', 'p2', 'ent', 'nom', 'fb', 'mx')]
    L2e, Lpk, Lps = k.label('p2e'), k.label('pk'), k.label('ps')
    segs = []
    p = Seq()
    p('s_cmp_ge_u32 s2, 256'); p('s_cbranch_scc1 %s' % Lend)
    stamp(p, 0)
    if prof: p('s_memrealtime s[76:77]'); p('s_load_dwordx2 s[80:81], s[0:1], %d' % KA['ws'])
    Lprod, Lln, Lnone, Ldone, Lpost, Lpoll, Lgo, Lsync, Lredo, Lnext, Lnf, Lno1 = [k.label(x) for x in
        ('prod', 'ln', 'none', 'done', 'post', 'poll', 'go', 'sync', 'redo', 'next', 'nf', 'no1')]
    def fill_begin(): return ['s_add_u32 m0, s%d, s%d' % (sFILL, sW44)]
    def fill_end(): return adv(sFILL, sT0) + ['s_add_u32 s%d, s%d, s%d' % (sFOFF, sFOFF, sFSTR)]
    p('s_load_dwordx2 s[%d:%d], s[0:1], %d' % (sWQR, sWQR + 1, KA['wq'])); p('s_load_dwordx2 s[%d:%d], s[0:1], %d' % (sDBG, sDBG + 1, KA['dbg']))
    p('s_and_b32 s16, s2, 7'); p('s_lshr_b32 s17, s2, 3')
    p('s_lshr_b32 s18, s17, 1'); p('s_lshl_b32 s18, s18, 4'); p('s_lshl_b32 s19, s16, 1'); p('s_add_u32 s18, s18, s19')
    p('s_and_b32 s19, s17, 1'); p('s_add_u32 s18, s18, s19')
    p('s_lshl_b32 s16, s16, 4'); p('s_and_b32 s17, s17, 15'); p('s_add_u32 s16, s16, s17')
    p('s_cmp_ge_u32 s18, 120'); p('s_cselect_b32 s17, 2, 0'); p('s_cmp_ge_u32 s2, 128'); p('s_cselect_b32 s17, 1, s17')
    if 'nopri' in E2:
        p('s_cmp_eq_u32 s17, 1'); p('s_cselect_b32 s18, 0, s18'); p('s_cmp_lt_u32 s18, 40'); p('s_cselect_b32 s17, 2, s17'); p('s_cselect_b32 s18, 120, s18')
    p('s_mov_b32 s%d, 0' % sMODE); p('s_mov_b32 s3, s17')
    p(Lprod + ':')
    p('s_load_dwordx2 s[12:13], s[0:1], %d' % KA['ws']); p('s_load_dwordx2 s[4:5], s[0:1], %d' % KA['c'])
    p('s_load_dwordx2 s[8:9], s[0:1], %d' % KA['wmod']); p('s_load_dwordx2 s[24:25], s[0:1], %d' % KA['x'])
    p('v_lshrrev_b32 v1, 6, v0'); p('v_and_b32 v2, 63, v0')
    p('v_mov_b32 v255, v0')
    p('v_readfirstlane_b32 s%d, v1' % sW)
    p('s_and_b32 s%d, s2, 7' % sT0); p('s_lshr_b32 s%d, s2, 3' % sT1)
    p('s_and_b32 s%d, s%d, 1' % (sQB, sT0)); p('s_lshl_b32 s%d, s%d, 2' % (sQB, sQB)); p('s_and_b32 s%d, s%d, 3' % (sCNT, sT1)); p('s_add_u32 s%d, s%d, s%d' % (sQB, sQB, sCNT))
    p('s_lshr_b32 s%d, s%d, 1' % (sHEAD, sT0)); p('s_lshl_b32 s%d, s%d, 3' % (sHEAD, sHEAD)); p('s_lshr_b32 s%d, s%d, 2' % (sT1, sT1)); p('s_add_u32 s%d, s%d, s%d' % (sHEAD, sHEAD, sT1))
    p('s_mul_i32 s%d, s%d, %d' % (sW44, sW, WST))
    p('v_lshrrev_b32 v3, 4, v2'); p('v_and_b32 v4, 15, v2')
    p('v_lshlrev_b32 v5, 4, v1'); p('v_lshl_add_u32 v5, v3, 2, v5'); p('v_lshlrev_b32 v5, 13, v5'); p('v_lshl_add_u32 v%d, v4, 4, v5' % vF)
    for r_ in range(1, 4): p('v_add_u32 v%d, %d, v%d' % (vF + r_, r_ * (8192 - BLK), vF))
    p('s_mov_b32 s%d, 524288' % sFSTR)
    NW0 = int(os.environ.get('NW0', 1))
    def wfirst():
        p('s_lshl_b32 s%d, s%d, 8' % (sT0, sHEAD))
        for d in (sFA, sFB2):
            p('s_add_u32 s%d, s%d, s%d' % (d, sWQR, sT0)); p('s_addc_u32 s%d, s%d, 0' % (d + 1, sWQR + 1))
            p('s_sub_u32 s%d, %d, s%d' % (d + 2, 640 * 8192, sT0)); p('s_mov_b32 s%d, 0x00020000' % (d + 3))
        for u in range(NW0):
            p('s_mov_b32 s%d, %d' % (sFOFF, u * 524288)); p('s_add_u32 m0, s%d, %d' % (sW44, u * SLOT))
            for i in range(4): p(fill_dma(i, u)[0])
        return 4 * NW0
    p('s_cmp_eq_u32 s17, 1'); p('s_cbranch_scc1 %s' % Lln)
    p('s_cmp_eq_u32 s17, 2'); p('s_cbranch_scc1 %s' % Lnone)
    p('v_lshrrev_b32 v1, 2, v0'); p('v_and_b32 v2, 3, v0'); p('v_lshlrev_b32 v3, 1, v1')
    p('v_mul_u32_u24 v4, 7680, v1'); p('v_lshl_add_u32 v4, v2, 4, v4')
    p('s_lshl_b32 s19, s18, 6')
    if 'gA' in E2:
        p('v_lshrrev_b32 v4, 4, v0'); p('v_mul_u32_u24 v4, 7680, v4'); p('v_and_b32 v5, 15, v0'); p('v_lshl_add_u32 v4, v5, 4, v4')
        p('s_and_b32 s19, s18, 3'); p('s_mul_i32 s19, s19, %d' % (160 * 7680)); p('s_lshr_b32 s20, s18, 2'); p('s_lshl_b32 s20, s20, 8'); p('s_add_u32 s19, s19, s20')
    p('s_waitcnt lgkmcnt(0)')
    stamp(p, 1, 'g')
    srd(p, 4, 0, 1280); srd(p, 8, 0, 640 * 7680); srd(p, 12, 0, GS + GSB)
    for i in range(10): p('buffer_load_ushort v%d, v3, s[4:7], 0 offen offset:%d' % (8 + i, 128 * i))
    for i in range(10):
        p('buffer_load_dwordx4 %s, v4, s[8:11], s19 offen' % v(20 + 4 * i, 4))
        if i < 9: p('s_add_u32 s19, s19, %d' % ((16 if 'gA' in E2 else 64) * 7680))
    nt = wfirst()
    if 'gi' in E2: stamp(p, 2, 'g')
    p('s_waitcnt vmcnt(%d)' % (10 + nt))
    if 'gi' not in E2: stamp(p, 2, 'g')
    for i in range(10):
        c = 8 + i; t = 84 + (i & 3)
        p('v_lshlrev_b32 v%d, 16, v%d' % (c, c)); p('v_mul_f32 v%d, %s, v%d' % (t, f32(-1.4426950408889634), c))
        p('v_exp_f32 v%d, v%d' % (t, t)); p('v_add_f32 v%d, 1.0, v%d' % (t, t)); p('v_rcp_f32 v%d, v%d' % (t, t))
        p('v_mul_f32 v%d, v%d, v%d' % (t, t, c)); p('v_cvt_pk_bf16_f32 v%d, v%d, v%d' % (t, t, t)); p('v_lshlrev_b32 v%d, 16, v%d' % (c, t))
    for j in range(8): p('v_mov_b32 v%d, 0' % (64 + j))
    p('v_lshrrev_b32 v5, 4, v0'); p('v_lshlrev_b32 v5, 7, v5'); p('v_lshl_add_u32 v5, v2, 5, v5'); p('v_add_u32 v5, %d, v5' % SCR)
    p('v_and_b32 v6, 15, v0'); p('v_cmp_gt_u32 vcc, 4, v6')
    for i in range(10):
        p('s_waitcnt vmcnt(%d)' % (9 - i + nt))
        for j in range(4):
            w = 20 + 4 * i + j; t = 84 + 2 * (j & 1)
            p('v_lshlrev_b32 v%d, 16, v%d' % (t, w)); p('v_and_b32 v%d, 0xffff0000, v%d' % (t + 1, w))
            p('v_fmac_f32 v%d, v%d, v%d' % (64 + 2 * j, t, 8 + i)); p('v_fmac_f32 v%d, v%d, v%d' % (65 + 2 * j, t + 1, 8 + i))
    stamp(p, 3, 'g')
    for j in range(8): p('v_add_f32_dpp v%d, v%d, v%d row_ror:4 row_mask:0xf bank_mask:0xf' % (72 + j, 64 + j, 64 + j))
    for j in range(8): p('v_add_f32_dpp v%d, v%d, v%d row_ror:8 row_mask:0xf bank_mask:0xf' % (64 + j, 72 + j, 72 + j))
    p('s_and_saveexec_b64 s[20:21], vcc')
    p('ds_write_b128 v5, v[64:67]'); p('ds_write_b128 v5, v[68:71] offset:16')
    p('s_mov_b64 exec, s[20:21]')
    p('v_lshlrev_b32 v5, 2, v0'); p('v_add_u32 v6, %d, v5' % SCR); p('v_cmp_gt_u32 vcc, 32, v0')
    p('s_waitcnt lgkmcnt(0)'); p('s_barrier')
    p('s_and_saveexec_b64 s[20:21], vcc'); p('s_cbranch_execz %s' % Ldone)
    for j in range(16): p('ds_read_b32 v%d, v6 offset:%d' % (20 + j, 128 * j))
    p('s_sub_u32 s22, s18, 20'); p('s_cmp_lt_u32 s22, 20'); p('s_cselect_b32 s23, 1.0, 0')
    p('s_sub_u32 s22, s18, 80'); p('s_cmp_lt_u32 s22, 20'); p('s_cselect_b32 s23, 1.0, s23')
    p('s_lshl_b32 s19, s18, 7'); p('s_cmp_lt_u32 s18, 20'); p('s_cselect_b32 s22, %s, 1.0' % f32(QSCALE))
    p('v_lshlrev_b32 v7, 1, v0')
    p('s_waitcnt lgkmcnt(0)')
    for st in (8, 4, 2, 1):
        for j in range(st): p('v_add_f32 v%d, v%d, v%d' % (20 + j, 20 + j, 20 + j + st))
    p('v_cvt_pk_bf16_f32 v20, v20, v20'); p('v_lshlrev_b32 v20, 16, v20')
    p('v_add_f32 v20, s23, v20'); p('v_cvt_pk_bf16_f32 v20, v20, v20'); p('v_lshlrev_b32 v20, 16, v20')
    p('v_mul_f32 v21, s22, v20'); p('v_cvt_f16_f32 v21, v21')
    p('s_add_u32 s22, s19, %d' % GS)
    stamp(p, 4, 'g')
    p('buffer_store_short v21, v7, s[12:15], s22 offen sc1')
    p('buffer_store_dword v20, v5, s[12:15], s19 offen')
    p('s_branch %s' % Ldone)
    p(Lln + ':')
    p('v_and_b32 v1, 15, v0'); p('v_bfe_u32 v2, v0, 4, 2'); p('v_lshrrev_b32 v3, 6, v0')
    p('v_mul_u32_u24 v4, 1280, v1'); p('v_mul_u32_u24 v5, 320, v3'); p('v_add_u32 v4, v4, v5'); p('v_lshl_add_u32 v4, v2, 4, v4')
    p('s_mul_i32 s19, s16, %d' % (16 * 1280))
    p('s_waitcnt lgkmcnt(0)')
    stamp(p, 1, 'g')
    srd(p, 24, 0, T * 1280); srd(p, 12, 0, 64 * 40960, add=XH)
    for i in range(5): p('buffer_load_dwordx4 %s, v4, s[24:27], s19 offen offset:%d' % (v(8 + 4 * i, 4), 64 * i))
    nt = wfirst()
    p('v_mul_u32_u24 v5, 10240, v3'); p('v_lshl_add_u32 v5, v2, 9, v5'); p('v_lshl_add_u32 v5, v1, 4, v5')
    p('s_and_b32 s20, s16, 1'); p('s_lshl_b32 s20, s20, 8'); p('s_lshr_b32 s19, s16, 1'); p('s_mul_i32 s19, s19, 40960'); p('s_add_u32 s19, s19, s20')
    p('v_lshlrev_b32 v6, 3, v1'); p('v_add_u32 v6, %d, v6' % SCR); p('v_lshl_add_u32 v7, v3, 7, v6')
    for j in range(4): p('v_mov_b32 v%d, 0' % (72 + j))
    for i in range(5):
        p('s_waitcnt vmcnt(%d)' % (4 - i + nt))
        for j in range(4):
            w = 8 + 4 * i + j; d = 32 + 8 * i + 2 * j
            p('v_lshlrev_b32 v%d, 16, v%d' % (d, w)); p('v_and_b32 v%d, 0xffff0000, v%d' % (d + 1, w))
            p('v_pk_add_f32 v[72:73], v[72:73], %s' % v(d, 2)); p('v_pk_fma_f32 v[74:75], %s, %s, v[74:75]' % (v(d, 2), v(d, 2)))
    stamp(p, 2, 'g')
    p('v_add_f32 v72, v72, v73'); p('v_add_f32 v73, v74, v75')
    for sw in ('v_permlane32_swap_b32', 'v_permlane16_swap_b32'):
        p('v_mov_b32 v74, v72'); p('v_mov_b32 v75, v73')
        p('%s v72, v74' % sw); p('%s v73, v75' % sw)
        p('v_add_f32 v72, v72, v74'); p('v_add_f32 v73, v73, v75')
    p('ds_write_b64 v7, v[72:73]')
    p('s_waitcnt lgkmcnt(0)'); p('s_barrier')
    for j in range(4): p('ds_read_b64 %s, v6 offset:%d' % (v(76 + 2 * j, 2), 128 * j))
    p('s_waitcnt lgkmcnt(0)')
    p('v_pk_add_f32 v[76:77], v[76:77], v[78:79]'); p('v_pk_add_f32 v[80:81], v[80:81], v[82:83]'); p('v_pk_add_f32 v[76:77], v[76:77], v[80:81]')
    stamp(p, 3, 'g')
    p('v_mul_f32 v76, %s, v76' % f32(1.0 / 640)); p('v_mul_f32 v77, %s, v77' % f32(1.0 / 640))
    p('v_fma_f32 v77, -v76, v76, v77'); p('v_max_f32 v77, 0, v77'); p('v_add_f32 v77, %s, v77' % f32(1e-5))
    p('v_rsq_f32 v78, v77'); p('v_mul_f32 v78, %s, v78' % f32(QSCALE)); p('v_mul_f32 v80, -v76, v78')
    for i in range(5):
        for j in range(4):
            w = 8 + 4 * i + j; d = 32 + 8 * i + 2 * j
            p('v_pk_fma_f32 %s, %s, v[78:79], v[80:81] op_sel_hi:[1,0,0]' % (v(d, 2), v(d, 2)))
            p('v_cvt_pk_f16_f32 v%d, v%d, v%d' % (w, d, d + 1))
        p('buffer_store_dwordx4 %s, v5, s[12:15], s19 offen sc1' % v(8 + 4 * i, 4))
        if i < 4: p('s_add_u32 s19, s19, 2048')
    stamp(p, 4, 'g')
    p('s_branch %s' % Ldone)
    p(Lnone + ':')
    p('s_waitcnt lgkmcnt(0)')
    wfirst()
    p(Ldone + ':')
    p('s_mov_b64 exec, -1')
    p('s_mov_b32 s%d, 256' % (sDBG + 2)); p('s_mov_b32 s%d, 0x00020000' % (sDBG + 3))
    p('s_lshr_b32 s19, s16, 4'); p('s_lshl_b32 s19, s19, 3'); p('s_add_u32 s19, s19, s16'); p('s_add_u32 s19, s19, 64'); p('s_cmp_eq_u32 s17, 1'); p('s_cselect_b32 s19, s19, s18')
    p('s_cselect_b32 s20, 0, s18'); p('s_cmp_eq_u32 s%d, 0' % sW); p('s_cselect_b32 s20, s20, 40')
    p('v_mov_b32 v6, 1'); p('v_mov_b32 v7, 0')
    p('s_waitcnt vmcnt(0) lgkmcnt(0)'); p('s_barrier')
    p('s_cmp_eq_u32 s%d, 1' % sMODE); p('s_cbranch_scc1 %s' % Lnext)
    p('s_cmp_ge_u32 s20, 40'); p('s_cbranch_scc1 %s' % Lpost)
    p('s_mov_b64 exec, 1')
    p('buffer_store_byte v6, v7, %s, s19 offen %s' % (s(sDBG, 4), FST))
    p('s_mov_b64 exec, -1')
    p(Lpost + ':')
    stamp(p, 1, True); stamp(p, 5, 'g')
    p('s_load_dwordx2 s[%d:%d], s[0:1], %d' % (sK, sK + 1, KA['k'])); p('s_load_dwordx2 s[%d:%d], s[0:1], %d' % (sV, sV + 1, KA['v']))
    p('s_load_dwordx2 s[%d:%d], s[0:1], %d' % (sGS, sGS + 1, KA['ws']))
    p('s_load_dwordx2 s[%d:%d], s[0:1], %d' % (sPS3, sPS3 + 1, KA['wo'])); p('s_load_dwordx2 s[%d:%d], s[0:1], %d' % (sPS5, sPS5 + 1, KA['w2']))
    for u in range(NW0, 6):
        p('s_mov_b32 s%d, %d' % (sFOFF, u * 524288)); p('s_add_u32 m0, s%d, %d' % (sW44, u * SLOT))
        for i in range(4): p(fill_dma(i, u)[0])
    p('s_mov_b32 s%d, %d' % (sFILL, 6 * SLOT)); p('s_mov_b32 s%d, 0' % sXOFF); p('s_mov_b32 s%d, 0' % sFB)
    p('v_lshrrev_b32 v1, 6, v0'); p('v_and_b32 v2, 63, v0'); p('v_lshrrev_b32 v3, 4, v2'); p('v_and_b32 v4, 15, v2'); p('v_mov_b32 v255, v0')
    p('v_mul_u32_u24 v5, 81920, v1'); p('v_lshl_add_u32 v%d, v2, 4, v5' % vX0); p('v_add_u32 v%d, 40960, v%d' % (vX1, vX0))
    p('s_waitcnt lgkmcnt(0)')
    stamp(p, 2, True)
    p('s_lshl_b32 s%d, s%d, 19' % (sT1, sHEAD)); p('s_add_u32 s%d, s%d, %d' % (sT1, sT1, 393216 - 4096))
    for dst in (sK, sV):
        p('s_add_u32 s%d, s%d, s%d' % (dst, dst, sT1)); p('s_addc_u32 s%d, s%d, 0' % (dst + 1, dst + 1))
        p('s_mov_b32 s%d, %d' % (dst + 2, 131072 + 4096)); p('s_mov_b32 s%d, 0x00020000' % (dst + 3))
    p('s_mul_i32 s%d, s%d, %d' % (sT0, sQB, 8 * 40960)); p('s_add_u32 s%d, s%d, %d' % (sT0, sT0, XH))
    p('s_add_u32 s%d, s%d, s%d' % (sXH, sGS, sT0)); p('s_addc_u32 s%d, s%d, 0' % (sXH + 1, sGS + 1))
    p('s_mov_b32 s%d, %d' % (sXH + 2, 8 * 40960)); p('s_mov_b32 s%d, 0x00020000' % (sXH + 3))
    p('s_mov_b32 s%d, s%d' % (sPD3, sGS)); p('s_mov_b32 s%d, s%d' % (sPD3 + 1, sGS + 1))
    p('s_add_u32 s%d, s%d, %d' % (sGS, sGS, GS)); p('s_addc_u32 s%d, s%d, 0' % (sGS + 1, sGS + 1))
    p('s_mov_b32 s%d, %d' % (sGS + 2, GSB)); p('s_mov_b32 s%d, 0x00020000' % (sGS + 3))
    p('s_lshl_b32 s%d, s%d, 21' % (sT0, sQB)); p('s_add_u32 s%d, s%d, %d' % (sT0, sT0, OB))
    p('s_add_u32 s%d, s%d, s%d' % (sOB, sPD3, sT0)); p('s_addc_u32 s%d, s%d, 0' % (sOB + 1, sPD3 + 1))
    p('s_mov_b32 s%d, %d' % (sOB + 2, 4 * 524288)); p('s_mov_b32 s%d, 0x00020000' % (sOB + 3))
    p('v_lshl_add_u32 v5, v1, 3, v3'); p('v_lshlrev_b32 v5, 8, v5'); p('v_xor_b32 v6, v4, v3'); p('v_lshl_add_u32 v5, v6, 4, v5')
    p('v_add_u32 v%d, 4096, v5' % vKV); p('v_add_u32 v%d, %d, v5' % (vKV + 1, 4096 + 1024 - BLK))
    p('v_lshrrev_b32 v5, 1, v1'); p('v_lshlrev_b32 v5, 4, v5'); p('v_lshl_add_u32 v5, v3, 2, v5'); p('v_and_b32 v6, 1, v1'); p('v_lshl_add_u32 v5, v6, 1, v5')
    p('v_lshlrev_b32 v5, 8, v5'); p('v_lshl_add_u32 v5, v4, 4, v5')
    p('v_add_u32 v%d, %d, v5' % (vKV + 2, 4096 - 2 * BLK)); p('v_add_u32 v%d, %d, v5' % (vKV + 3, 4096 + 256 - 3 * BLK))
    p('v_bfe_u32 v5, v2, 2, 2'); p('v_and_b32 v6, 3, v2'); p('v_lshrrev_b32 v7, 5, v2'); p('v_and_b32 v8, 1, v3')
    p('v_mul_u32_u24 v9, %d, v5' % BLK); p('v_lshl_add_u32 v9, v7, 9, v9'); p('v_lshl_add_u32 v9, v8, 5, v9')
    p('v_and_b32 v10, 1, v6'); p('v_lshl_add_u32 v9, v10, 4, v9'); p('v_lshrrev_b32 v10, 1, v6'); p('v_lshl_add_u32 v%d, v10, 3, v9' % cW)
    p('v_lshrrev_b32 v9, 1, v5'); p('v_mul_u32_u24 v9, %d, v9' % WST); p('v_and_b32 v10, 1, v5'); p('v_mul_u32_u24 v10, %d, v10' % BLK)
    p('v_add3_u32 v9, v9, v10, %d' % 0); p('v_add_u32 v9, %d, v9' % (2 * BLK))
    p('v_lshl_add_u32 v9, v7, 8, v9'); p('v_lshl_add_u32 v9, v8, 5, v9'); p('v_lshl_add_u32 v%d, v6, 3, v9' % cV)
    p('v_bfe_u32 v9, v2, 3, 2'); p('v_mul_u32_u24 v9, %d, v9' % WST); p('v_bfe_u32 v10, v2, 2, 1'); p('v_mul_u32_u24 v10, %d, v10' % BLK)
    p('v_add_u32 v9, v9, v10'); p('v_lshl_add_u32 v9, v6, 8, v9')
    p('v_xor_b32 v10, v7, v6'); p('v_lshl_add_u32 v%d, v10, 4, v9' % cK0)
    p('v_xor_b32 v10, 2, v10'); p('v_lshl_add_u32 v%d, v10, 4, v9' % cK1)
    p('v_lshlrev_b32 v%d, 5, v7' % vGS); p('v_add_u32 v%d, %d, v%d' % (vGS, GSOFF, vGS))
    p('v_lshlrev_b32 v9, 19, v1'); p('v_lshl_add_u32 v9, v8, 10, v9'); p('v_lshl_add_u32 v9, v7, 8, v9'); p('v_lshl_add_u32 v%d, v4, 4, v9' % vO)
    sNTp, sRB = sPS3 + 2, sPS3 + 3
    p('s_and_b32 s%d, s2, 1' % sT0); p('s_lshl_b32 s%d, s%d, 2' % (sT0, sT0)); p('s_bfe_u32 s%d, s2, 0x20003' % sT1); p('s_add_u32 s%d, s%d, s%d' % (sNTp, sT0, sT1))
    p('s_bfe_u32 s%d, s2, 0x20001' % sT0); p('s_lshr_b32 s%d, s2, 5' % sT1)
    p('s_lshl_b32 s%d, s%d, 2' % (sPD5 + 3, sT1)); p('s_add_u32 s%d, s%d, s%d' % (sPD5 + 3, sPD5 + 3, sT0)); p('s_min_u32 s%d, s%d, 14' % (sPD5 + 3, sPD5 + 3))
    p('s_lshl_b32 s%d, s%d, 3' % (sT0, sT0)); p('s_add_u32 s%d, s%d, s%d' % (sRB, sT0, sT1))
    p('s_mul_i32 s%d, s%d, 160' % (sP4, sNTp)); p('s_mul_i32 s%d, s%d, %d' % (sT1, sPD5 + 3, 128 * 1280)); p('s_add_u32 s%d, s%d, s%d' % (sT1, sT1, sP4))
    p('s_add_u32 s%d, s%d, s%d' % (sPS5, sPS5, sT1)); p('s_addc_u32 s%d, s%d, 0' % (sPS5 + 1, sPS5 + 1))
    p('s_sub_u32 s%d, %d, s%d' % (sPS5 + 2, 1728 * 1280, sT1)); p('s_max_i32 s%d, s%d, 0' % (sPS5 + 2, sPS5 + 2)); p('s_mov_b32 s%d, 0x00020000' % (sPS5 + 3))
    p('s_mul_i32 s%d, s%d, %d' % (sT0, sNTp, 1728 * 160)); p('s_mul_i32 s%d, s%d, 20480' % (sT1, sPD5 + 3))
    p('s_sub_u32 s%d, %d, s%d' % (sPD5 + 2, 1728 * 160, sT1)); p('s_max_i32 s%d, s%d, 0' % (sPD5 + 2, sPD5 + 2)); p('s_mov_b32 s%d, 0x00020000' % (sPD5 + 3))
    p('s_add_u32 s%d, s%d, s%d' % (sT0, sT0, sT1)); p('s_add_u32 s%d, s%d, %d' % (sT0, sT0, WP5))
    p('s_add_u32 s%d, s%d, s%d' % (sPD5, sPD3, sT0)); p('s_addc_u32 s%d, s%d, 0' % (sPD5 + 1, sPD3 + 1))
    p('s_lshl_b32 s%d, s%d, 5' % (sT0, sNTp)); p('s_add_u32 s%d, s%d, s%d' % (sT0, sT0, sRB)); p('s_mul_i32 s%d, s%d, 20480' % (sT0, sT0)); p('s_add_u32 s%d, s%d, %d' % (sT0, sT0, WP3))
    p('s_add_u32 s%d, s%d, s%d' % (sPD3, sPD3, sT0)); p('s_addc_u32 s%d, s%d, 0' % (sPD3 + 1, sPD3 + 1))
    p('s_mov_b32 s%d, 20480' % (sPD3 + 2)); p('s_mov_b32 s%d, 0x00020000' % (sPD3 + 3))
    p('s_mul_i32 s%d, s%d, %d' % (sT1, sRB, 128 * 1280)); p('s_add_u32 s%d, s%d, s%d' % (sT1, sT1, sP4))
    p('s_add_u32 s%d, s%d, s%d' % (sPS3, sPS3, sT1)); p('s_addc_u32 s%d, s%d, 0' % (sPS3 + 1, sPS3 + 1))
    p('s_sub_u32 s%d, %d, s%d' % (sPS3 + 2, 4096 * 1280, sT1)); p('s_mov_b32 s%d, 0x00020000' % (sPS3 + 3))
    p('s_mov_b32 s%d, 4096' % sP4)
    p('v_and_b32 v252, 63, v255'); p('v_lshrrev_b32 v253, 6, v255'); p('v_mul_u32_u24 v253, 320, v253'); p('v_add_u32 v252, v252, v253')
    p('v_lshlrev_b32 v255, 4, v252')
    p('v_mov_b32 v%d, v%d' % (vRW, cW))
    p('s_mov_b32 s%d, 0' % sRD); p('s_mov_b32 s%d, 4' % sCNT)
    p('v_lshlrev_b32 v11, 2, v2'); p('s_mul_i32 s%d, s%d, 6' % (sT0, sQB)); p('s_add_u32 s%d, s%d, 16' % (sT0, sT0)); p('v_subrev_u32 v12, s%d, v2' % sT0)
    p('v_cmp_gt_u32 vcc, 4, v12'); p('v_cndmask_b32 v12, 0, 1, vcc'); p('v_cmp_gt_u32 vcc, 10, v2'); p('v_cndmask_b32 v12, v12, 1, vcc')
    p('v_mul_lo_u32 v12, v12, s%d' % sP4 if False else 's_mov_b32 s%d, 0x01010101' % sT1); p('v_mul_lo_u32 v12, v12, s%d' % sT1)
    p('v_lshrrev_b32 v13, 3, v0'); p('v_lshlrev_b32 v13, 7, v13'); p('v_bfe_u32 v14, v0, 1, 2'); p('v_lshl_add_u32 v13, v14, 4, v13')
    p('v_and_b32 v14, 1, v0'); p('v_xor_b32 v14, 1, v14'); p('v_mul_u32_u24 v14, 2560, v14'); p('v_add_u32 v13, v13, v14')
    p('s_lshl_b32 s%d, s%d, 2' % (sT0, sW)); p('s_add_u32 s%d, s%d, %d' % (sT0, sT0, FLAGOFF + 16)); p('v_mov_b32 v15, s%d' % sT0); p('v_mov_b32 v16, %d' % (FLAGOFF + 16))
    p('s_lshl_b32 s%d, s%d, 10' % (sT0, sW)); p('s_add_u32 m0, s%d, %d' % (sT0, GSOFF))
    p('s_mov_b32 s%d, %d' % (sPOLL, POLLS)); p('v_mov_b32 v17, 0')
    stamp(p, 3, True)
    p('s_cmp_eq_u32 s%d, 2' % sMODE); p('s_cbranch_scc1 %s' % Lgo)
    p('s_cmp_lg_u32 s%d, 0' % sW); p('s_cbranch_scc1 %s' % Lsync)
    p('v_cmp_ne_u32 vcc, 0, v12'); p('s_mov_b64 exec, vcc')
    if PDL:
        p('s_cmp_eq_u32 s3, 0'); p('s_cbranch_scc1 %s' % Lpoll); p('s_sleep %d' % PDL)
    p(Lpoll + ':')
    p('buffer_load_dword v14, v11, %s, 0 offen sc0 sc1' % s(sDBG, 4))
    p('s_sub_u32 s%d, s%d, 1' % (sPOLL, sPOLL))
    p('s_waitcnt vmcnt(0)')
    p('v_cmp_ne_u32 vcc, v14, v12'); p('s_and_b64 exec, vcc, vcc'); p('s_cbranch_scc0 %s' % Lno1)
    if SLP: p('s_sleep %d' % SLP)
    p('s_cmp_gt_i32 s%d, 0' % sPOLL); p('s_cbranch_scc1 %s' % Lpoll)
    p('s_mov_b64 exec, -1'); p('v_mov_b32 v17, 1')
    p(Lno1 + ':')
    p('s_mov_b64 exec, -1'); p('ds_write_b32 v16, v17'); p('s_waitcnt lgkmcnt(0)')
    p(Lsync + ':')
    p('s_barrier')
    p('ds_read_b32 v20, v16'); p('s_waitcnt lgkmcnt(0)'); p('v_readfirstlane_b32 s%d, v20' % sT0)
    p('s_cmp_lg_u32 s%d, 0' % sT0); p('s_cbranch_scc1 %s' % Lredo)
    p(Lgo + ':')
    segs.append(('raw', p))
    p = Seq()
    stamp(p, 4, True)
    if 'inv' in E2: p('buffer_inv sc1')
    p('buffer_load_dwordx4 v13, %s, 0 offen lds' % s(sGS, 4), ('gs', 0))
    for s8 in range(4):
        for x in x_loads(s8): p(*x)
    for x in w_reads(0): p(x)
    p.need(lambda t: t[0] == 'gs'); p('s_barrier')
    for x in gs_reads(0) + gs_reads(1): p(x)
    for x in h_stream(0): p(x)
    stamp(p, 1); stamp(p, 5, True)
    if prof: p('s_waitcnt lgkmcnt(0)')
    segs.append(('once', p))

    RAMP = [[4, 5], [6, 7], [8, 9], [10, 11], [12], [13], [14], [15]]
    def p1(it):
        q = Seq()
        peel = it == 0
        if not peel: q(L1 + ':')
        wn = 8
        for st in range(8):
            sg = 8 * it + st; c = sg >> 2
            b = sg & 1
            mf = ['%s %s, %s, %s, %s' % (MF, v(ACC(tg, t), 16), a(WF(b, t), 4), v(HB + (b * 2 + tg) * 4, 4), '0' if sg == 0 else v(ACC(tg, t), 16))
                  for t in range(4) for tg in range(2)]
            g = [[] for _ in range(8)]
            q.touch(a(WF(b, 0), 16) + ' ' + v(GB + 8 * ((sg + 1) & 1), 8) + ' ' + v(XR + ((sg + 1) & 7) * 8, 8))
            if st == 6: g[0].append('v_add_u32 v%d, 512, v%d' % (vGS, vGS))
            g[0] += gs_reads(sg + 2)
            if st & 3 == 2:
                if peel: g[2] += adv(sRD, sT1)
                else: g[5] += adv(sRD, sT1)[:2]; g[6] += adv(sRD, sT1)[2:]
            if st & 3 == 3:
                g[0] += [('NEED', lambda t, c=c: t[0] == 'dma' and t[1] <= c + 1), 's_barrier']
                g[0] += ['v_add_u32 v%d, s%d, v%d' % (vRW, sRD, cW)]
            wr = w_reads(sg + 1)
            if 'nowr' not in E2:
                for i in range(8): g[1 + i // 2].append(wr[i])
            if peel:
                ops = []
                for o in RAMP[st]:
                    if o == 'w':
                        pre = fill_begin() if wn & 3 == 0 else []
                        post = (fill_end() if wn != 23 else fill_end()[:4]) if wn & 3 == 3 else []
                        ops.append(pre + [fill_dma(wn & 3, wn >> 2)] + post); wn += 1
                    else:
                        xl = x_loads(o)
                        ops.append((['s_add_u32 s%d, s%d, 4096' % (sXOFF, sXOFF)] if o & 3 == 0 else []) + [xl[0]]); ops.append([xl[1]])
                for i, o in enumerate(ops): g[3 + i] += o
            else:
                xl = x_loads(sg + 8)
                if 'nox' not in E2: g[5].append(xl[0]); g[6].append(xl[1])
                if st & 3 == 0:
                    g[1].append('s_add_u32 s%d, s%d, 4096' % (sXOFF, sXOFF)); g[2].append(fill_end()[4]); g[6] += fill_begin()
                if st & 3 == 1: g[5] += fill_end()[:2]; g[6] += fill_end()[2:4]
                if 'nowq' not in E2: g[7].append(fill_dma(st & 3, c + 4))
                if st == 7:
                    g[6] += ['s_sub_u32 s%d, s%d, 1' % (sCNT, sCNT), 's_cmp_eq_u32 s%d, 1' % sCNT, 's_cselect_b32 s%d, 0, s%d' % (sXH + 2, sXH + 2)]
            if 'noh' not in E2: pack(g, h_stream(sg + 1), 0, 7)
            interleave(q, mf, g)
        if peel: return q
        q('s_cmp_eq_u32 s%d, 2' % sCNT); q('s_cbranch_scc0 %s' % L1s)
        for j in range(4):
            q('s_mov_b32 s%d, s%d' % (sFA + j, sK + j)); q('s_mov_b32 s%d, s%d' % (sFB2 + j, sV + j)); q('v_mov_b32 v%d, v%d' % (vF + j, vKV + j))
        q('s_mov_b32 s%d, 8192' % sFSTR); q('s_mov_b32 s%d, -8192' % sFOFF)
        q(L1s + ':')
        q('s_cmp_lg_u32 s%d, 0' % sCNT); q('s_cbranch_scc1 %s' % L1)
        return q
    segs.append(('once', p1(0)))
    segs.append(('loop', 4, lambda it: p1(it + 1)))

    def qcvt(tg):
        out = []
        for sd in range(8):
            for q in range(4):
                src = ACC(tg, sd >> 1) + 8 * (sd & 1) + 2 * q
                tm = TM + ((4 * sd + q) & 3)
                out.append('v_cvt_pk_bf16_f32 v%d, v%d, v%d' % (tm, src, src + 1))
                out.append('v_accvgpr_write_b32 a%d, v%d' % (QF(tg, sd) + q, tm))
        o2 = [out[0]]
        for i in range(2, len(out), 2): o2 += [out[i], out[i - 1]]
        return o2 + [out[-1]]
    def standin(tg):
        sb = S_ + 16 * tg; tm = TM + 4 + 2 * tg
        o = ['v_max3_f32 v%d, v%d, v%d, v%d' % (tm, sb, sb + 1, sb + 2), 'v_max3_f32 v%d, v%d, v%d, v%d' % (tm + 1, sb + 3, sb + 4, sb + 5)]
        for i, r_ in enumerate(range(6, 16, 2)): o.append('v_max3_f32 v%d, v%d, v%d, v%d' % (tm + (i & 1), tm + (i & 1), sb + r_, sb + r_ + 1))
        o += ['v_max_f32 v%d, v%d, v%d' % (tm, tm, tm + 1), 'v_mov_b32 v%d, v%d' % (tm + 1, tm), 'v_permlane32_swap_b32 v%d, v%d' % (tm, tm + 1),
              'v_max_f32 v%d, v%d, v%d' % (tm, tm, tm + 1), 'v_sub_f32 v%d, %s, v%d' % (tm, f32(-40.0), tm),
              'v_cndmask_b32 v%d, v%d, v%d, %s' % (tm, tm, vMX + tg, s(sFBM, 2))]
        o += ['v_add_f32 v%d, v%d, v%d' % (sb + r_, sb + r_, tm) for r_ in range(16)]
        return o
    def nmfill(tg): return ['v_mov_b32 v%d, v%d' % (NM + 16 * tg + r_, TM + 4 + 2 * tg) for r_ in range(16)]
    def enter(t_, main):
        t_('v_add_u32 v%d, s%d, v%d' % (vRK0, sRD, cK0)); t_('v_add_u32 v%d, s%d, v%d' % (vRK1, sRD, cK1)); t_('v_add_u32 v%d, s%d, v%d' % (vRV, sRD, cV))
        for sd in range(8): t_(k_read(sd))
        if main:
            fl = [fill_end()[4]]
            for u in (14, 15): fl += fill_begin() + [fill_dma(i, u) for i in range(4)] + fill_end()
            c0 = qcvt(0)
            for i, x in enumerate(c0):
                t_(x)
                if i % 3 == 2 and fl:
                    y = fl.pop(0); t_(*y) if isinstance(y, tuple) else t_(y)
            assert not fl
        t_('s_mov_b32 s%d, s%d' % (sRK, sRD))
        for x in adv(sRK, sT1): t_(x)
        t_('s_cmp_lg_u32 s%d, 0' % sFB); t_('s_cselect_b64 %s, -1, 0' % s(sFBM, 2))
        g = [[] for _ in range(16)]
        for f in range(8): g[f] += v_reads(f)
        g[0] += ['v_add_u32 v%d, s%d, v%d' % (vRK0, sRK, cK0), 'v_add_u32 v%d, s%d, v%d' % (vRK1, sRK, cK1)]
        if main:
            pack(g, qcvt(1), 0, 7)
            g[7] += [('NEED', lambda t: t[0] == 'dma' and t[1] <= 11), 's_barrier']
        for sd in range(8): g[8 + sd].append(k_read(sd))
        g[8] += ['v_mov_b32 v%d, 0' % (LA + i) for i in range(4)]
        sm = softmax(0)
        pack(g, standin(0) + sm[:SMX], 10, 15)
        interleave(t_, s_mfma(0, True) + s_mfma(1, True), g)
        for x in sm[SMX:]: t_(x)
        t_('s_mov_b32 s%d, %d' % (sCNT, PA))
    SMX = int(os.environ.get('SMX', 10))
    t_ = Seq()
    stamp(t_, 2)
    enter(t_, True)
    stamp(t_, 3)
    if prof: t_('s_waitcnt lgkmcnt(0)')
    t_(Lent + ':')
    segs.append(('once', t_))

    def pk_loads():
        o = []
        for j in range(5):
            ta, tb = TM + 2 * (j & 1), TM + 2 * (j & 1) + 1
            o += ['v_add_u32 v%d, %d, v252' % (ta, 64 * j), 'v_mul_u32_u24 v%d, 6554, v%d' % (tb, ta), 'v_lshrrev_b32 v%d, 16, v%d' % (tb, tb),
                  'v_mul_u32_u24 v%d, 1120, v%d' % (tb, tb), 'v_lshl_add_u32 v%d, v%d, 4, v%d' % (tb, ta, tb),
                  ('buffer_load_dwordx4 %s, v%d, %s, 0 offen' % (a(aPK + 4 * j, 4), tb, s(sPS3, 4)), None),
                  ('buffer_load_dwordx4 %s, v%d, %s, 0 offen' % (a(aPK + 20 + 4 * j, 4), tb, s(sPS5, 4)), None)]
        return o
    def pk_stores():
        return [('buffer_store_dwordx4 %s, v255, %s, %s offen offset:%d%s' % (a(aPK + b + 4 * j, 4), s(d, 4), 's%d' % sP4 if j == 4 else '0', (j & 3) * 1024, PKMOD), None)
                for j in range(5) for d, b in ((sPD3, 0), (sPD5, 20))]
    def p2(j, first=False, last=False, loop=None, job=None, cnt=None):
        q = Seq()
        if loop: q(loop + ':')
        g = [[] for _ in range(32)]
        q('s_waitcnt lgkmcnt(8)')
        if last:
            mf = pv_mfma(0) + pv_mfma(1)
            pack(g, softmax(1), 0, 7)
            interleave(q, mf, g)
            return q
        mf = pv_mfma(0, first) + s_mfma(0) + pv_mfma(1, first) + s_mfma(1)
        if j + 6 < 16:
            g[0] += fill_begin()
            for i in range(4): g[1 + i] += [] if 'nokv' in E2 else [fill_dma(i, j + 16)]
            fe = fill_end()
            g[5] += fe[:2]; g[6] += fe[2:4]; g[7] += fe[4:]
        g[8].append('v_add_u32 v%d, s%d, v%d' % (vRV, sRK, cV))
        ad = adv(sRK, sT1)
        g[9] += ad[:2]; g[10] += ad[2:]
        g[11] += ['v_add_u32 v%d, s%d, v%d' % (vRK0, sRK, cK0)]; g[12] += ['v_add_u32 v%d, s%d, v%d' % (vRK1, sRK, cK1)]
        if loop: g[13] += ['s_sub_u32 s%d, s%d, 1' % (sCNT, sCNT)]
        if cnt: g[13] += ['s_mov_b32 s%d, %d' % (sCNT, cnt)]
        for f in range(8): g[16 + f] += [] if 'novr' in E2 else v_reads(f)
        g[15] += [('NEED', lambda t, j=j: t[0] == 'dma' and t[1] <= j + 12)] + ([] if 'nobar' in E2 else ['s_barrier'])
        for sd in range(8): g[24 + sd] += [] if 'nokr' in E2 else [k_read(sd)]
        if job and 'nojob' not in E2:
            jb = job(); n = len(jb)
            for i, x in enumerate(jb): g[8 + (i * 22) // n].append(x)
        if first:
            pack(g, nmfill(0), 0, 6)
            pack(g, standin(1) + softmax(1), 0, 15)
            pack(g, nmfill(1), 16, 22)
        else:
            pack(g, softmax(1), 2, 15)
        g[7].append('s_waitcnt lgkmcnt(0)')
        pack(g, softmax(0), 18, 31)
        if loop: g[31].append('s_cmp_lg_u32 s%d, 0' % sCNT)
        interleave(q, mf, g)
        if loop: q('s_cbranch_scc1 %s' % loop)
        return q
    UNR = os.environ.get('UNR', '5,2,10,2')
    segs.append(('once', p2(0, first=True)))
    if UNR:
        l0, ls, s0, ss = [int(x) for x in UNR.split(',')]
        for j in range(1, 15):
            jb = []
            for n in range(5):
                if l0 + (n * ls) // 2 == j: jb += pk_loads()[7 * n:7 * n + 7]
                if s0 + (n * ss) // 2 == j: jb += pk_stores()[2 * n:2 * n + 2]
            segs.append(('once', p2(j, job=(lambda jb=jb: jb) if jb else None)))
    else:
        assert PA + PB + PC == 12
        segs.append(('loop', PA, lambda it: p2(it + 1, loop=L2)))
        segs.append(('once', p2(PA + 1, job=pk_loads, cnt=PB)))
        segs.append(('loop', PB, lambda it: p2(it + PA + 2, loop=Lpk)))
        segs.append(('once', p2(PA + PB + 2, job=pk_stores, cnt=PC)))
        segs.append(('loop', PC, lambda it: p2(it + PA + PB + 3, loop=Lps)))
    segs.append(('once', p2(15, last=True)))

    e = Seq()
    stamp(e, 4)
    e('s_lshl_b32 s%d, s%d, 14' % (sT0, sHEAD))
    for tg in range(2):
        la = LA + 2 * tg
        e('v_add_f32 v%d, v%d, v%d' % (la, la, la + 1)); e('v_mov_b32 v%d, v%d' % (la + 1, la))
        e('v_permlane32_swap_b32 v%d, v%d' % (la, la + 1)); e('v_add_f32 v%d, v%d, v%d' % (la, la, la + 1))
        e('v_rcp_f32 v%d, v%d' % (TM + 2 * tg, la))
    n = 0
    for t in range(4):
        for tg in range(2):
            for c in range(2):
                src = ACC(tg, t) + 8 * c
                dst = S_ + 4 * (n & 7); n += 1
                for q in range(4):
                    e('v_pk_mul_f32 %s, %s, %s op_sel_hi:[1,0]' % (v(src + 2 * q, 2), v(src + 2 * q, 2), v(TM + 2 * tg, 2)))
                for q in range(4):
                    e('v_cvt_pk_bf16_f32 v%d, v%d, v%d' % (dst + q, src + 2 * q, src + 2 * q + 1))
                e('buffer_store_dwordx4 %s, v%d, %s, s%d offen offset:%d%s' % (v(dst, 4), vO, s(sOB, 4), sT0, tg * 2048 + c * 512, OMOD))
        if t < 3: e('s_add_u32 s%d, s%d, 4096' % (sT0, sT0))
    e('s_mov_b32 s%d, %s' % (sT1, f32(2.0 ** 64)))
    e('v_cmp_lt_f32 vcc, v%d, s%d' % (LA, sT1)); e('v_cndmask_b32 v%d, 1, 0, vcc' % TM)
    e('v_cmp_lt_f32 vcc, v%d, s%d' % (LA + 2, sT1)); e('v_cndmask_b32 v%d, 1, v%d, vcc' % (TM, TM))
    e('v_cmp_ne_u32 vcc, 0, v%d' % TM); e('s_cmp_lg_u64 vcc, 0'); e('s_cselect_b32 s%d, 1, 0' % sT1)
    e('s_lshl_b32 s%d, s%d, 2' % (sT0, sW)); e('s_add_u32 s%d, s%d, %d' % (sT0, sT0, FLAGOFF))
    e('v_mov_b32 v%d, s%d' % (TM, sT0)); e('v_mov_b32 v%d, s%d' % (TM + 1, sT1)); e('ds_write_b32 v%d, v%d' % (TM, TM + 1))
    e('v_mov_b32 v%d, %d' % (TM + 2, FLAGOFF))
    e('s_waitcnt lgkmcnt(0)'); e('s_barrier')
    e('ds_read_b128 %s, v%d' % (v(TM + 4, 4), TM + 2))
    e('v_or_b32 v%d, v%d, v%d' % (TM, TM + 4, TM + 5)); e('v_or3_b32 v%d, v%d, v%d, v%d' % (TM, TM, TM + 6, TM + 7))
    e('v_readfirstlane_b32 s%d, v%d' % (sT1, TM))
    if prof:
        stamp(e, 5); e('s_waitcnt vmcnt(0)'); stamp(e, 6); e('s_memrealtime s[78:79]'); e('s_waitcnt lgkmcnt(0)')
        e('s_add_u32 s80, s80, %d' % PROF); e('s_addc_u32 s81, s81, 0'); e('s_mov_b32 s82, 0x100000'); e('s_mov_b32 s83, 0x00020000')
        e('s_lshl_b32 s84, s2, 2'); e('s_add_u32 s84, s84, s%d' % sW); e('s_lshl_b32 s84, s84, 6')
        for i in range(10): e('v_mov_b32 v%d, s%d' % (i, 60 + 2 * i))
        e('v_mov_b32 v10, s%d' % sT1); e('v_mov_b32 v11, s%d' % sFB); e('v_mov_b32 v12, 0')
        for i in range(3): e('buffer_store_dwordx4 %s, v12, s[80:83], s84 offen offset:%d' % (v(4 * i, 4), 16 * i))
    e('s_cmp_eq_u32 s%d, 0' % sT1); e('s_cbranch_scc1 %s' % Lend)
    e('s_cmp_lg_u32 s%d, 0' % sFB); e('s_cbranch_scc1 %s' % Lend)
    e('s_mov_b32 s%d, 1' % sFB)
    e('s_waitcnt vmcnt(0) lgkmcnt(0)')
    e('s_mov_b32 s%d, 0' % sFOFF); e('s_mov_b32 s%d, 16' % sCNT); e('s_mov_b32 m0, s%d' % sW44)
    e('v_mov_b32 v%d, 0xff800000' % TM); e('v_mov_b32 v%d, 0xff800000' % (TM + 2))
    e('v_mov_b32 v%d, v%d' % (vRK0, cK0)); e('v_mov_b32 v%d, v%d' % (vRK1, cK1))
    e(Lmx + ':')
    e('s_barrier')
    for i in range(2): e(*fill_dma(i, 0))
    e('s_add_u32 s%d, s%d, 8192' % (sFOFF, sFOFF))
    e('s_waitcnt vmcnt(0)'); e('s_barrier')
    for sd in range(8): e(k_read(sd))
    e('s_waitcnt lgkmcnt(0)')
    for tg in range(2):
        for x in s_mfma(tg, True): e(x)
    for tg in range(2):
        sb = S_ + 16 * tg; tm = TM + 2 * tg
        for r_ in range(0, 16, 2): e('v_max3_f32 v%d, v%d, v%d, v%d' % (tm, tm, sb + r_, sb + r_ + 1))
    e('s_sub_u32 s%d, s%d, 1' % (sCNT, sCNT)); e('s_cmp_lg_u32 s%d, 0' % sCNT); e('s_cbranch_scc1 %s' % Lmx)
    for tg in range(2):
        tm = TM + 2 * tg
        e('v_mov_b32 v%d, v%d' % (tm + 1, tm)); e('v_permlane32_swap_b32 v%d, v%d' % (tm, tm + 1)); e('v_max_f32 v%d, v%d, v%d' % (tm, tm, tm + 1))
        e('v_sub_f32 v%d, 0, v%d' % (vMX + tg, tm))
    e('s_barrier')
    e('s_mov_b32 s%d, 0' % sFOFF); e('s_mov_b32 s%d, 0' % sFILL); e('s_mov_b32 s%d, 0' % sRD)
    for u in range(6):
        for x in fill_begin(): e(x)
        for i in range(4): e(*fill_dma(i, 0))
        for x in fill_end(): e(x)
    e('s_waitcnt vmcnt(0)'); e('s_barrier')
    enter(e, False)
    e('s_waitcnt vmcnt(0) lgkmcnt(0)')
    e('s_branch %s' % Lent)
    e(Lredo + ':')
    e('s_mov_b32 s%d, 1' % sMODE); e('s_mov_b32 s%d, -1' % sTASK)
    e('s_waitcnt vmcnt(0) lgkmcnt(0)'); e('s_barrier')
    e(Lnext + ':')
    e('s_add_u32 s%d, s%d, 1' % (sTASK, sTASK))
    e('s_mov_b32 s18, s%d' % sTASK); e('s_lshl_b32 s16, s%d, 4' % sQB); e('s_add_u32 s16, s16, s%d' % sTASK); e('s_sub_u32 s16, s16, 40')
    e('s_cmp_ge_u32 s%d, 40' % sTASK); e('s_cselect_b32 s17, 1, 0')
    e('s_cmp_lt_u32 s%d, 56' % sTASK); e('s_cbranch_scc1 %s' % Lprod)
    e('s_mov_b32 s%d, 2' % sMODE); e('s_branch %s' % Lpost)
    e(Lend + ':'); e('s_endpgm')
    segs.append(('once', e))
    assemble(k, segs)
    return k
```

```python
from asmlib import *
from layout import *
from sched import *
from k1 import f32
MF = 'v_mfma_f32_16x16x32_bf16'
PROF = 0x3000000
import os
EXP = os.environ.get('EXP', '')
SMOD = os.environ.get('SMOD', ' sc1')

CFG = {
    'oproj': dict(NG=5, TG=2, E=2, nst=32, pitch=160, K=4096, w=WP3, bsrc=OB,  nks=128, omap=True,  grid=256),
    'mlp2':  dict(NG=5, TG=2, E=2, nst=14, pitch=160, K=1728, w=WP5, bsrc=HID, nks=54,  omap=False, grid=256),
    'mlp1':  dict(NG=8, TG=4, E=1, nst=10, pitch=3456, K=640,  w='w1', bsrc=XG,  nks=20,  omap=False, grid=224),
}
def _cfg(kind, key, dflt): return int(os.environ.get(kind + '_' + key, dflt))
for _k, _d in (('oproj', (6, 4, 6)), ('mlp2', (6, 4, 6)), ('mlp1', (4, 3, 6))):
    CFG[_k]['UB'], CFG[_k]['DB'], CFG[_k]['UL'] = [_cfg(_k, n, x) for n, x in zip(('UB', 'DB', 'UL'), _d)]
def lds_size(kind):
    c = CFG[kind]
    ring = c['UL'] * 64 * c['E'] * c['NG'] * 32
    return ring + 4096 + (0 if kind == 'mlp1' else 4 * (c['TG'] // 2) * c['NG'] * 1024)

def mk_srd(p, dst, src, soff, size):
    if soff is None:
        if dst != src: p('s_mov_b32 s%d, s%d' % (dst, src)); p('s_mov_b32 s%d, s%d' % (dst + 1, src + 1))
    else:
        p('s_add_u32 s%d, s%d, %s' % (dst, src, soff)); p('s_addc_u32 s%d, s%d, 0' % (dst + 1, src + 1))
    p('s_mov_b32 s%d, %s' % (dst + 2, size)); p('s_mov_b32 s%d, 0x00020000' % (dst + 3))

def gen(kind, prof=False, pidx=0):
    c = CFG[kind]
    NG, TG, E, nst, pitch, KK, nks = c['NG'], c['TG'], c['E'], c['nst'], c['pitch'], c['K'], c['nks']
    RB = NG * 32; RS = 64 * E; SB = RS * RB; WQ = SB // 4; ND = WQ // 1024
    H2 = TG // 2
    U, D, UL = c['UB'], c['DB'], c['UL']; DL = UL - 1
    NT = NG * TG
    TB = UL * SB
    RED = TB + 4096
    def ACC(ng, t): return (t * NG + ng) * 4
    vb = NT * 4
    BR = vb; vb += U * E * TG * 4
    def BF(sl, e, t): return BR + ((sl * E + e) * TG + t) * 4
    AO = vb; vb += E * NG * 4
    def AF(e, ng): return AO + (e * NG + ng) * 4
    vB = vb; vb += 2 * E
    vA = vb; vb += 2 if NG == 5 else 8
    SPB = 3 if NG == 5 else 4
    vW, vL, vG, vK, t0, t1, t2, vID = range(vb, vb + 8); vb += 8
    vR, vC = AO, AO + 1
    if kind == 'mlp1':
        vE = BR; vT = BR + 64
    else:
        vT = vb; vb += 16; vE = vb; vb += 50
    assert vb <= 256, vb
    k = K(kind + '_kernel', vgprs=256, agprs=0)
    sWS, sWT, sBS, sX, sMD, sO1, sO2, sO3, sU1, sU2 = 4, 8, 12, 16, 20, 24, 28, 32, 36, 40
    sW, sTH, sKH, sTT, sNT, sWO, sBO, sWQ, sCNT, sT0, sT1, sT2, sT3 = range(44, 57)
    sG = 60
    Lend, Lp, Lld = k.label('end'), k.label('loop'), k.label('ld')
    def stamp(q, i):
        if prof: q('s_memtime s[%d:%d]' % (84 + 2 * i, 85 + 2 * i))
    segs = []
    p = Seq()
    p('s_cmp_ge_u32 s2, %d' % c['grid']); p('s_cbranch_scc1 %s' % Lend)
    stamp(p, 0)
    if prof: p('s_memrealtime s[96:97]')
    p('s_load_dwordx2 s[%d:%d], s[0:1], %d' % (sWS, sWS + 1, KA['ws']))
    if kind == 'oproj':
        p('s_load_dwordx2 s[%d:%d], s[0:1], %d' % (sX, sX + 1, KA['x'])); p('s_load_dwordx2 s[%d:%d], s[0:1], %d' % (sU1, sU1 + 1, KA['w1']))
    elif kind == 'mlp2':
        p('s_load_dwordx2 s[%d:%d], s[0:1], %d' % (sX, sX + 1, KA['b2'])); p('s_load_dwordx2 s[%d:%d], s[0:1], %d' % (sO1, sO1 + 1, KA['out']))
    else:
        p('s_load_dwordx4 s[%d:%d], s[0:1], %d' % (sWT, sWT + 3, KA['w1']))
    p('v_lshrrev_b32 v%d, 6, v0' % vW); p('v_and_b32 v%d, 63, v0' % vL); p('v_and_b32 v%d, 255, v0' % vID)
    p('v_readfirstlane_b32 s%d, v%d' % (sW, vW))
    p('v_and_b32 v%d, 3, v%d' % (vW, vW))
    p('s_and_b32 s%d, s2, 7' % sT0); p('s_lshr_b32 s%d, s2, 3' % sT1)
    if kind != 'mlp1':
        p('s_lshr_b32 s%d, s%d, 1' % (sTT, sT0)); p('s_lshl_b32 s%d, s%d, 3' % (sTT, sTT)); p('s_and_b32 s%d, s%d, 7' % (sT2, sT1)); p('s_add_u32 s%d, s%d, s%d' % (sTT, sTT, sT2))
        p('s_and_b32 s%d, s%d, 1' % (sNT, sT0)); p('s_lshl_b32 s%d, s%d, 2' % (sNT, sNT)); p('s_lshr_b32 s%d, s%d, 3' % (sT2, sT1)); p('s_add_u32 s%d, s%d, s%d' % (sNT, sNT, sT2))
    else:
        p('s_mul_i32 s%d, s%d, 37' % (sT2, sT1)); p('s_lshr_b32 s%d, s%d, 8' % (sT2, sT2))
        p('s_lshr_b32 s%d, s%d, 1' % (sTT, sT0)); p('s_lshl_b32 s%d, s%d, 2' % (sTT, sTT)); p('s_add_u32 s%d, s%d, s%d' % (sTT, sTT, sT2))
        p('s_mul_i32 s%d, s%d, 7' % (sT2, sT2)); p('s_sub_u32 s%d, s%d, s%d' % (sNT, sT1, sT2))
        p('s_and_b32 s%d, s%d, 1' % (sT2, sT0)); p('s_mul_i32 s%d, s%d, 7' % (sT2, sT2)); p('s_add_u32 s%d, s%d, s%d' % (sNT, sNT, sT2))
    if 'samet' in EXP and kind != 'mlp1': p('s_and_b32 s%d, s%d, 24' % (sTT, sTT))
    if 'samen' in EXP and kind != 'mlp1': p('s_and_b32 s%d, s%d, 4' % (sNT, sNT))
    p('s_cmp_ge_u32 s%d, 4' % sW); p('s_cbranch_scc1 %s' % Lld)
    p('s_lshr_b32 s%d, s%d, 1' % (sTH, sW))
    p('v_lshrrev_b32 v%d, 1, v%d' % (t0, vW)); p('v_and_b32 v%d, 1, v%d' % (t1, vW))
    if TG == 2:
        p('v_lshlrev_b32 v%d, 11, v%d' % (t0, t0)); p('v_lshl_add_u32 v%d, v%d, 4, v%d' % (t0, vL, t0))
        p('v_mul_u32_u24 v%d, %d, v%d' % (t2, E * 4096, t1)); p('v_add_u32 v%d, v%d, v%d' % (t0, t0, t2))
        p('v_lshl_add_u32 v%d, v%d, 10, v%d' % (vB, t1, t0)); p('v_xor_b32 v%d, 1024, v%d' % (vB + 1, vB))
        p('v_add_u32 v%d, 4096, v%d' % (vB + 2, vB)); p('v_add_u32 v%d, 4096, v%d' % (vB + 3, vB + 1))
    else:
        p('v_mul_u32_u24 v%d, %d, v%d' % (t0, nks * 4096, t0)); p('v_lshl_add_u32 v%d, v%d, 4, v%d' % (t0, vL, t0))
        p('v_lshl_add_u32 v%d, v%d, 12, v%d' % (t0, t1, t0))
        p('v_lshl_add_u32 v%d, v%d, 11, v%d' % (vB, t1, t0)); p('v_xor_b32 v%d, 2048, v%d' % (vB + 1, vB))
    tb = nks * 4096 * (2 if kind == 'mlp1' else 1)
    p('s_mul_i32 s%d, s%d, %d' % (sT0, sTT, tb)); p('s_add_u32 s%d, s%d, %d' % (sT0, sT0, c['bsrc']))
    p('s_mov_b32 s%d, 0' % sBO)
    p('s_waitcnt lgkmcnt(0)')
    mk_srd(p, sBS, sWS, 's%d' % sT0, tb)
    def bld(st, e, t):
        half = t // H2; off = (t % H2) * 1024
        return ('buffer_load_dwordx4 %s, v%d, %s, s%d offen offset:%d' % (v(BF(st % U, e, t), 4), vB + 2 * e + half, s(sBS, 4), sBO, off), None)
    def bstage(st): return [bld(st, e, t) for e in range(E) for t in range(TG)] + ['s_add_u32 s%d, s%d, %d' % (sBO, sBO, 2 * E * 4096)]
    for st in range(D):
        for x in bstage(st): p(*x) if isinstance(x, tuple) else p(x)
    p('v_lshrrev_b32 v%d, 4, v%d' % (vG, vL)); p('v_bfe_u32 v%d, v%d, 2, 2' % (vR, vL)); p('v_and_b32 v%d, 3, v%d' % (vC, vL)); p('v_and_b32 v%d, 15, v%d' % (vK, vL))
    p('v_and_b32 v%d, 1, v%d' % (t1, vW))
    if c['omap']:
        p('v_lshrrev_b32 v%d, 1, v%d' % (t0, vG)); p('v_lshlrev_b32 v%d, 4, v%d' % (t0, t0)); p('v_and_b32 v%d, 1, v%d' % (t2, vG)); p('v_lshl_add_u32 v%d, v%d, 2, v%d' % (t0, t2, t0))
        d2 = 8
    else:
        p('v_lshlrev_b32 v%d, 2, v%d' % (t0, vG)); d2 = 16
    p('v_add_u32 v%d, v%d, v%d' % (t0, t0, vR))
    p('v_mul_u32_u24 v%d, %d, v%d' % (t1, 32 * E, t1)); p('v_add_u32 v%d, v%d, v%d' % (t1, t1, t0))
    p('v_mul_u32_u24 v%d, %d, v%d' % (t1, RB, t1)); p('v_lshl_add_u32 v%d, v%d, 3, v%d' % (t1, vC, t1))
    if NG == 5:
        for b in range(2): p('v_add_u32 v%d, %d, v%d' % (vA + b, SPB * b * SB, t1))
        def a_reads(st, e, ng):
            sl = st % UL
            return ['ds_read_b64_tr_b16 %s, v%d offset:%d' % (v(AF(e, ng) + 2 * h, 2), vA + sl // SPB, (sl % SPB) * SB + (e * 32 + h * d2) * RB + ng * 32) for h in range(2)]
    else:
        p('v_and_b32 v%d, 7, v%d' % (t0, t0))
        for ng in range(8):
            p('v_xor_b32 v%d, %d, v%d' % (t2, ng, t0)); p('v_lshl_add_u32 v%d, v%d, 5, v%d' % (vA + ng, t2, t1))
        def a_reads(st, e, ng):
            sl = st % UL; pre = []
            if sl == SPB: pre = ['v_add_u32 v%d, %d, v%d' % (vA + ng, SPB * SB, vA + ng)]
            if sl == 0 and st > 0 and UL > SPB: pre = ['v_subrev_u32 v%d, %d, v%d' % (vA + ng, SPB * SB, vA + ng)]
            return pre + ['ds_read_b64_tr_b16 %s, v%d offset:%d' % (v(AF(e, ng) + 2 * h, 2), vA + ng, (sl % SPB) * SB + h * d2 * RB) for h in range(2)]
    sd = []
    eX, eA, eB = vE, vE + 10, vE + 30
    if kind in ('oproj', 'mlp2'):
        mk_srd(p, sMD, sWS, None, 6 * 2560)
        vRM, vX1, vMD, vB2 = vT, vT + 1, vT + 12, vT + 13
        p('v_lshlrev_b32 v%d, 4, v%d' % (vMD, vG)); p('s_mul_i32 s%d, s%d, 320' % (sT0, sNT))
        rows = (2, 4) if kind == 'oproj' else (5,)
        for q, row in enumerate(rows):
            p('s_add_u32 s%d, s%d, %d' % (sG + q, sT0, row * 2560))
            for ng in range(5):
                sd.append('buffer_load_dwordx4 %s, v%d, %s, s%d offen offset:%d' % (v((eA, eB)[q] + 4 * ng, 4), vMD, s(sMD, 4), sG + q, ng * 64))
        p('v_lshl_add_u32 v%d, v%d, 4, v%d' % (t0, vW, vK)); p('v_mul_u32_u24 v%d, 1280, v%d' % (t0, t0)); p('v_lshl_add_u32 v%d, v%d, 3, v%d' % (vRM, vG, t0))
        p('s_mul_i32 s%d, s%d, %d' % (sT2, sTT, 64 * 1280)); p('s_mul_i32 s%d, s%d, 160' % (sT3, sNT)); p('s_add_u32 s%d, s%d, s%d' % (sT2, sT2, sT3))
        p('v_mul_u32_u24 v%d, 2560, v%d' % (t0, vW)); p('v_lshl_add_u32 v%d, v%d, 4, v%d' % (vX1, vL, t0)); p('v_lshl_add_u32 v%d, v%d, 3, v%d' % (vX1 + 1, vL, t0))
        p('s_lshl_b32 s%d, s%d, 3' % (sT0, sTT)); p('s_add_u32 s%d, s%d, s%d' % (sT0, sT0, sNT)); p('s_mul_i32 s%d, s%d, 10240' % (sT0, sT0)); p('s_add_u32 s%d, s%d, %d' % (sT0, sT0, X1))
        mk_srd(p, sO2, sWS, 's%d' % sT0, 10240)
        if kind == 'oproj':
            mk_srd(p, sX, sX, 's%d' % sT2, 64 * 1280)
            for ng in range(5): sd.append('buffer_load_dwordx2 %s, v%d, %s, 0 offen offset:%d' % (v(eX + 2 * ng, 2), vRM, s(sX, 4), ng * 32))
            p('s_mul_i32 s%d, s%d, %d' % (sT0, sTT, 20 * 4096)); p('s_add_u32 s%d, s%d, %d' % (sT0, sT0, XG))
            mk_srd(p, sO1, sWS, 's%d' % sT0, 20 * 4096)
            p('s_lshl_b32 s%d, s%d, 14' % (sT0, sNT)); p('s_lshl_b32 s%d, s%d, 9' % (sT1, sTT)); p('s_add_u32 s%d, s%d, s%d' % (sT0, sT0, sT1)); p('s_add_u32 s%d, s%d, %d' % (sT0, sT0, STATS))
            mk_srd(p, sO3, sWS, 's%d' % sT0, 512)
        else:
            sd.append('buffer_load_dwordx4 %s, v%d, %s, 0 offen' % (v(eX, 4), vX1, s(sO2, 4)))
            sd.append('buffer_load_dwordx4 %s, v%d, %s, 0 offen offset:1024' % (v(eX + 4, 4), vX1, s(sO2, 4)))
            sd.append('buffer_load_dwordx2 %s, v%d, %s, 0 offen offset:2048' % (v(eX + 8, 2), vX1 + 1, s(sO2, 4)))
            mk_srd(p, sX, sX, 's%d' % sT3, 160)
            p('v_lshlrev_b32 v%d, 3, v%d' % (vB2, vG))
            for ng in range(5): sd.append('buffer_load_dwordx2 %s, v%d, %s, 0 offen offset:%d' % (v(eB + 2 * ng, 2), vB2, s(sX, 4), ng * 32))
            mk_srd(p, sO1, sO1, 's%d' % sT2, 64 * 1280)
    else:
        p('s_lshl_b32 s%d, s%d, 1' % (sT0, sTT)); p('s_add_u32 s%d, s%d, s%d' % (sT0, sT0, sTH))
        p('s_mul_i32 s%d, s%d, %d' % (sT0, sT0, 54 * 4096)); p('s_add_u32 s%d, s%d, %d' % (sT0, sT0, HID))
        mk_srd(p, sO1, sWS, 's%d' % sT0, 54 * 4096)
    stamp(p, 1)
    p('s_barrier')
    stamp(p, 2)
    if prof: p('s_waitcnt lgkmcnt(0)')
    for e in range(E):
        for ng in range(NG):
            for x in a_reads(0, e, ng): p(x)
    segs.append(('once', p))

    EP4 = kind == 'mlp1' and os.environ.get('EP4', '1') == '1'
    if EP4:
        assert vb <= 242 and nst == 10 and U == 4 and D == 3
        xs, xa, xb, xu2 = 242, 246, 247, 248
        RW_ = H2 * NG * 1024; s0_ = nst % UL
        assert RW_ == SB and UL >= 6 and nst % 2 == 0 and UL % 2 == 0
        def UVR(ng): return xu2 if ng == 2 else vE + 8 * ng
        def uvr(ng): return ['ds_read_b128 %s, v%d offset:%d' % (v(UVR(ng), 4), xa, ng * 64), 'ds_read_b128 %s, v%d offset:%d' % (v(UVR(ng) + 4, 4), xa, 512 + ng * 64)]
        def wf(ng):
            u_, b_ = UVR(ng), UVR(ng) + 4
            return (['v_pk_fma_f32 %s, %s, %s, %s op_sel:[0,1,0] op_sel_hi:[1,1,1]' % (v(b_ + 2 * h, 2), v(u_ + 2 * h, 2), v(xs, 2), v(b_ + 2 * h, 2)) for h in range(2)] +
                    ['v_pk_fma_f32 %s, %s, %s, %s op_sel:[0,1,0] op_sel_hi:[1,1,1]' % (v(u_ + 2 * h, 2), v(u_ + 2 * h, 2), v(xs + 2, 2), v(b_ + 2 * h, 2)) for h in range(2)])
        ex7 = ['v_add_u32 v%d, %d, v%d' % (t0, s0_, vW), 'v_subrev_u32 v%d, %d, v%d' % (t1, UL, t0), 'v_min_u32 v%d, v%d, v%d' % (t0, t0, t1),
               'v_xor_b32 v%d, 1, v%d' % (t1, t0),
               'v_mul_u32_u24 v%d, %d, v%d' % (t0, RW_, t0), 'v_lshl_add_u32 v%d, v%d, 4, v%d' % (t0, vL, t0),
               'v_mul_u32_u24 v%d, %d, v%d' % (t1, RW_, t1), 'v_lshl_add_u32 v%d, v%d, 4, v%d' % (t1, vL, t1),
               'v_lshl_add_u32 v%d, v%d, 5, v%d' % (xb, vW, vK), 'v_lshlrev_b32 v%d, 3, v%d' % (xb, xb), 'v_add_u32 v%d, %d, v%d' % (xb, TB, xb),
               'v_lshlrev_b32 v%d, 4, v%d' % (xa, vG), 'v_add_u32 v%d, %d, v%d' % (xa, TB + 1024, xa),
               'v_and_b32 v%d, 1, v%d' % (t2, vW), 'v_lshlrev_b32 v%d, 11, v%d' % (t2, t2), 'v_lshl_add_u32 v%d, v%d, 4, v%d' % (t2, vL, t2),
               's_lshl_b32 s%d, s%d, 14' % (sG, sNT)] + ['s_add_u32 s%d, s%d, %d' % (sG + m, sG, 4096 * m) for m in (1, 2, 3)]
        ex8 = ['ds_read_b64 %s, v%d' % (v(xs, 2), xb), 'ds_read_b64 %s, v%d offset:128' % (v(xs + 2, 2), xb)] + uvr(4) + uvr(5) + uvr(6) + uvr(7) + uvr(2)
        BG = int(os.environ.get('EPBG', 26))
        def ep_gaps():
            g = [[] for _ in range(32)]
            for i, x in enumerate(uvr(0) + uvr(1)): g[i].append(x)
            g[0].append('v_sub_f32 v%d, v%d, v%d' % (xs + 3, xs + 3, xs + 1))
            w1 = wf(4) + wf(5) + wf(6) + wf(7) + wf(2) + wf(0) + wf(1)
            for i, x in enumerate(w1): g[1 + (i * 23) // len(w1)].append(x)
            for i in range(16):
                ng, t = i // 2, 2 + i % 2
                g[i + 7].append('ds_write_b128 v%d, %s offset:%d' % (t0, v(ACC(ng, t), 4), ((t - 2) * NG + ng) * 1024))
            g[15] += uvr(3)
            g[BG] += ['s_waitcnt lgkmcnt(0)', 's_barrier']
            rd = ['ds_read_b128 %s, v%d offset:%d' % (v(ACC(ng, t), 4), t1, ((t - 2) * NG + ng) * 1024) for t in (2, 3) for ng in range(NG)]
            for i, x in enumerate(rd): g[BG + (i * (32 - BG)) // 16].append(x)
            for i, x in enumerate(wf(3)): g[min(31, BG + 1 + i)].append(x)
            return g
    def stage(q, st, extra=()):
        if st < nst - 1 and 'xbar' not in EXP: q('s_barrier')
        if 'nomf' in EXP: q.touch(v(BF(st % U, 0, 0), 4 * E * TG))
        mf = []; g = []
        for e in range(E):
            for ng in range(NG):
                for t in range(TG):
                    d = v(ACC(ng, t), 4)
                    mf.append('%s %s, %s, %s, %s' % (MF, d, v(AF(e, ng), 4), v(BF(st % U, e, t), 4), '0' if (st == 0 and e == 0) else d))
                    g.append(a_reads(st + 1, e, ng) if (t == TG - 1 and st < nst - 1) else [])
        ops = (bstage(st + D) if st + D < nst else []) + list(extra)
        free = [i for i in range(len(mf)) if i % TG != TG - 1]
        if EP4 and st == nst - 1:
            order = [ng * TG + t for half in ((2, 3), (0, 1)) for ng in range(NG) for t in half]
            mf = [mf[i] for i in order]; g = ep_gaps(); ops = []
        for n, o in enumerate(ops): g[free[n * len(free) // len(ops)]].append(o)
        if 'nods' in EXP: g = [[x for x in gg if not (isinstance(x, str) and x.startswith('ds_'))] for gg in g]
        if 'nob' in EXP: g = [[x for x in gg if not (isinstance(x, tuple) and x[0].startswith('buffer'))] for gg in g]
        if 'nomf' in EXP: mf = ['s_nop 0' for _ in mf]
        interleave(q, mf, g)
    nsd = (len(sd) + 2) // 3
    def sdx(st, s0): return sd[(st - s0) * nsd:(st - s0 + 1) * nsd] if s0 <= st < s0 + 3 else []
    if kind == 'oproj':
        import math
        PER = U * UL // math.gcd(U, UL)
        NIT = (nst - 1 - max(D, 4)) // PER
        HD = nst - max(D, 4) - NIT * PER
        q = Seq()
        for st in range(HD): stage(q, st, ['s_mov_b32 s%d, %d' % (sCNT, NIT)] if st == 0 else [])
        segs.append(('once', q))
        def body(it):
            q = Seq(); q(Lp + ':')
            for u_ in range(PER): stage(q, HD + PER * it + u_, ['s_sub_u32 s%d, s%d, 1' % (sCNT, sCNT)] if u_ == PER - 1 else [])
            q('s_cmp_lg_u32 s%d, 0' % sCNT); q('s_cbranch_scc1 %s' % Lp)
            return q
        segs.append(('loop', NIT, body))
        q = Seq()
        for st in range(HD + NIT * PER, nst): stage(q, st, sdx(st, nst - 4))
        segs.append(('once', q))
    else:
        q = Seq()
        for st in range(nst): stage(q, st, (ex7 if st == 7 else ex8 if st == 8 else []) if EP4 else sdx(st, nst - 4))
        segs.append(('once', q))

    e_ = Seq()
    stamp(e_, 3)
    if prof: e_('s_waitcnt lgkmcnt(0)')
    RW = H2 * NG * 1024
    e_real = e_
    if EP4: e_ = Seq()
    if kind == 'mlp1':
        assert RW == SB and UL >= 6 and nst % 2 == 0 and UL % 2 == 0
        s0 = nst % UL
        e_('v_add_u32 v%d, %d, v%d' % (t0, s0, vW)); e_('v_subrev_u32 v%d, %d, v%d' % (t1, UL, t0)); e_('v_min_u32 v%d, v%d, v%d' % (t0, t0, t1))
        e_('v_xor_b32 v%d, 1, v%d' % (t1, t0))
        e_('v_mul_u32_u24 v%d, %d, v%d' % (t0, RW, t0)); e_('v_lshl_add_u32 v%d, v%d, 4, v%d' % (t0, vL, t0))
        e_('v_mul_u32_u24 v%d, %d, v%d' % (t1, RW, t1)); e_('v_lshl_add_u32 v%d, v%d, 4, v%d' % (t1, vL, t1))
    else:
        e_('v_mul_u32_u24 v%d, %d, v%d' % (t0, RW, vW)); e_('v_lshl_add_u32 v%d, v%d, 4, v%d' % (t0, vL, t0)); e_('v_add_u32 v%d, %d, v%d' % (t0, RED, t0))
        e_('v_xor_b32 v%d, 1, v%d' % (t1, vW)); e_('v_mul_u32_u24 v%d, %d, v%d' % (t1, RW, t1)); e_('v_lshl_add_u32 v%d, v%d, 4, v%d' % (t1, vL, t1)); e_('v_add_u32 v%d, %d, v%d' % (t1, RED, t1))
    n = 0
    for t in range(H2, TG):
        for ng in range(NG):
            e_('ds_write_b128 v%d, %s offset:%d' % (t0, v(ACC(ng, t), 4), n * 1024)); n += 1
    if kind == 'mlp1':
        st_ = vT; tp = vT + 4; uvb = vE
        e_('v_lshl_add_u32 v%d, v%d, 5, v%d' % (t0, vW, vK)); e_('v_lshlrev_b32 v%d, 3, v%d' % (t0, t0)); e_('v_add_u32 v%d, %d, v%d' % (t0, TB, t0))
        e_('ds_read_b64 %s, v%d' % (v(st_, 2), t0)); e_('ds_read_b64 %s, v%d offset:128' % (v(st_ + 2, 2), t0))
        e_('v_lshlrev_b32 v%d, 4, v%d' % (t0, vG)); e_('v_add_u32 v%d, %d, v%d' % (t0, TB + 1024, t0))
        for ng in range(8):
            e_('ds_read_b128 %s, v%d offset:%d' % (v(uvb + 8 * ng, 4), t0, ng * 64)); e_('ds_read_b128 %s, v%d offset:%d' % (v(uvb + 8 * ng + 4, 4), t0, 512 + ng * 64))
    e_('s_waitcnt lgkmcnt(0)'); e_('s_barrier')
    n = 0
    for t in range(H2, TG):
        for ng in range(NG):
            e_('ds_read_b128 %s, v%d offset:%d' % (v(ACC(ng, t), 4), t1, n * 1024)); n += 1
    e_ = e_real
    def addp(t, ng):
        return ['v_pk_add_f32 %s, %s, %s' % (v(ACC(ng, t) + 2 * h, 2), v(ACC(ng, t) + 2 * h, 2), v(ACC(ng, t + H2) + 2 * h, 2)) for h in range(2)]
    if kind == 'oproj':
        sm = vT + 4
        for j in range(4): e_('v_mov_b32 v%d, 0' % (sm + j))
        e_('v_lshl_add_u32 v%d, v%d, 10, 0' % (t2, vW)); e_('v_lshl_add_u32 v%d, v%d, 4, v%d' % (t2, vL, t2))
        e_('s_mul_i32 s%d, s%d, 5' % (sT0, sNT))
        for ng in range(5):
            ac = ACC(ng, 0); xr = vT + 8
            for h in range(2):
                e_('v_lshlrev_b32 v%d, 16, v%d' % (xr + 2 * h, eX + 2 * ng + h)); e_('v_and_b32 v%d, 0xffff0000, v%d' % (xr + 2 * h + 1, eX + 2 * ng + h))
            for x in addp(0, ng): e_(x)
            for h in range(2):
                e_('v_pk_fma_f32 %s, %s, %s, %s' % (v(ac + 2 * h, 2), v(ac + 2 * h, 2), v(eA + 4 * ng + 2 * h, 2), v(xr + 2 * h, 2)))
            for h in range(2):
                e_('v_cvt_pk_bf16_f32 v%d, v%d, v%d' % (eX + 2 * ng + h, ac + 2 * h, ac + 2 * h + 1))
            for h in range(2):
                e_('v_lshlrev_b32 v%d, 16, v%d' % (ac + 2 * h, eX + 2 * ng + h)); e_('v_and_b32 v%d, 0xffff0000, v%d' % (ac + 2 * h + 1, eX + 2 * ng + h))
            for h in range(2):
                e_('v_pk_add_f32 %s, %s, %s' % (v(sm, 2), v(sm, 2), v(ac + 2 * h, 2)))
                e_('v_pk_fma_f32 %s, %s, %s, %s' % (v(sm + 2, 2), v(ac + 2 * h, 2), v(ac + 2 * h, 2), v(sm + 2, 2)))
                e_('v_pk_mul_f32 %s, %s, %s' % (v(ac + 2 * h, 2), v(ac + 2 * h, 2), v(eB + 4 * ng + 2 * h, 2)))
            for h in range(2):
                e_('v_cvt_pk_bf16_f32 v%d, v%d, v%d' % (ac + h, ac + 2 * h, ac + 2 * h + 1))
            e_('s_add_u32 s%d, s%d, %d' % (sT1, sT0, ng)); e_('s_lshr_b32 s%d, s%d, 1' % (sT2, sT1)); e_('s_lshl_b32 s%d, s%d, 12' % (sT2, sT2))
            e_('s_and_b32 s%d, s%d, 1' % (sT1, sT1)); e_('s_lshl_b32 s%d, s%d, 3' % (sT1, sT1)); e_('s_add_u32 s%d, s%d, s%d' % (sT1, sT1, sT2))
            e_('buffer_store_dwordx2 %s, v%d, %s, s%d offen%s' % (v(ac, 2), t2, s(sO1, 4), sT1, SMOD))
            if ng == 1: e_('buffer_store_dwordx4 %s, v%d, %s, 0 offen%s' % (v(eX, 4), vX1, s(sO2, 4), SMOD))
            if ng == 3: e_('buffer_store_dwordx4 %s, v%d, %s, 0 offen offset:1024%s' % (v(eX + 4, 4), vX1, s(sO2, 4), SMOD))
            if ng == 4: e_('buffer_store_dwordx2 %s, v%d, %s, 0 offen offset:2048%s' % (v(eX + 8, 2), vX1 + 1, s(sO2, 4), SMOD))
        e_('v_add_f32 v%d, v%d, v%d' % (sm, sm, sm + 1)); e_('v_add_f32 v%d, v%d, v%d' % (sm + 1, sm + 2, sm + 3))
        for sw in ('v_permlane32_swap_b32', 'v_permlane16_swap_b32'):
            e_('v_mov_b32 v%d, v%d' % (sm + 2, sm)); e_('v_mov_b32 v%d, v%d' % (sm + 3, sm + 1))
            e_('%s v%d, v%d' % (sw, sm, sm + 2)); e_('%s v%d, v%d' % (sw, sm + 1, sm + 3))
            e_('v_pk_add_f32 %s, %s, %s' % (v(sm, 2), v(sm, 2), v(sm + 2, 2)))
        e_('v_lshl_add_u32 v%d, v%d, 4, v%d' % (t0, vW, vK)); e_('v_lshlrev_b32 v%d, 3, v%d' % (t0, t0)); e_('v_lshl_add_u32 v%d, v%d, 12, v%d' % (t0, vG, t0))
        e_('buffer_store_dwordx2 %s, v%d, %s, 0 offen%s' % (v(sm, 2), t0, s(sO3, 4), SMOD))
    elif kind == 'mlp2':
        for ng in range(5):
            ac = ACC(ng, 0); xr = vT + 4; br = vT + 8
            for h in range(2):
                e_('v_lshlrev_b32 v%d, 16, v%d' % (xr + 2 * h, eX + 2 * ng + h)); e_('v_and_b32 v%d, 0xffff0000, v%d' % (xr + 2 * h + 1, eX + 2 * ng + h))
                e_('v_lshlrev_b32 v%d, 16, v%d' % (br + 2 * h, eB + 2 * ng + h)); e_('v_and_b32 v%d, 0xffff0000, v%d' % (br + 2 * h + 1, eB + 2 * ng + h))
            for x in addp(0, ng): e_(x)
            for h in range(2):
                e_('v_pk_add_f32 %s, %s, %s' % (v(ac + 2 * h, 2), v(ac + 2 * h, 2), v(br + 2 * h, 2)))
            for h in range(2):
                e_('v_pk_fma_f32 %s, %s, %s, %s' % (v(ac + 2 * h, 2), v(ac + 2 * h, 2), v(eA + 4 * ng + 2 * h, 2), v(xr + 2 * h, 2)))
            for h in range(2):
                e_('v_cvt_pk_bf16_f32 v%d, v%d, v%d' % (ac + h, ac + 2 * h, ac + 2 * h + 1))
            e_('buffer_store_dwordx2 %s, v%d, %s, 0 offen offset:%d%s' % (v(ac, 2), vRM, s(sO1, 4), ng * 32, SMOD))
    elif EP4:
        for t in range(2):
            for m in range(4):
                tl = [(2 * m + a_, ACC(2 * m + a_, t), ACC(2 * m + a_, t + 2), UVR(2 * m + a_) + (4 if t == 0 else 0)) for a_ in range(2)]
                for ng, ac, pc, w_ in tl:
                    for h in range(2): e_('v_pk_fma_f32 %s, %s, %s, %s op_sel:[0,0,0] op_sel_hi:[1,0,1]' % (v(ac + 2 * h, 2), v(ac + 2 * h, 2), v(xs + 2 * t, 2), v(w_ + 2 * h, 2)))
                for ng, ac, pc, w_ in tl:
                    for h in range(2): e_('v_pk_fma_f32 %s, %s, %s, %s op_sel:[0,0,0] op_sel_hi:[1,0,1]' % (v(ac + 2 * h, 2), v(pc + 2 * h, 2), v(xs + 2 * t, 2), v(ac + 2 * h, 2)))
                for ng, ac, pc, w_ in tl:
                    for j in range(4): e_('v_max_f32 v%d, 0, v%d' % (ac + j, ac + j))
                for ng, ac, pc, w_ in tl:
                    for h in range(2): e_('v_pk_mul_f32 %s, %s, %s' % (v(ac + 2 * h, 2), v(ac + 2 * h, 2), v(ac + 2 * h, 2)))
                dst = ACC(2 * m, t + 2)
                for a_, (ng, ac, pc, w_) in enumerate(tl):
                    for h in range(2): e_('v_cvt_pk_bf16_f32 v%d, v%d, v%d' % (dst + 2 * a_ + h, ac + 2 * h, ac + 2 * h + 1))
                e_('buffer_store_dwordx4 %s, v%d, %s, s%d offen offset:%d%s' % (v(dst, 4), t2, s(sO1, 4), sG + m, t * 1024, SMOD))
    else:
        e_('v_and_b32 v%d, 1, v%d' % (t2, vW)); e_('v_lshlrev_b32 v%d, 11, v%d' % (t2, t2)); e_('v_lshl_add_u32 v%d, v%d, 4, v%d' % (t2, vL, t2))
        e_('s_lshl_b32 s%d, s%d, 14' % (sT0, sNT))
        for t in range(2):
            for m in range(4):
                for a_ in range(2):
                    ng = 2 * m + a_; ac = ACC(ng, t)
                    for h in range(2):
                        e_('v_pk_fma_f32 %s, %s, %s, %s op_sel:[0,1,0] op_sel_hi:[1,1,1]' % (v(tp + 2 * h, 2), v(uvb + 8 * ng + 2 * h, 2), v(st_ + 2 * t, 2), v(uvb + 8 * ng + 4 + 2 * h, 2)))
                    for x in addp(t, ng): e_(x)
                    for h in range(2):
                        e_('v_pk_fma_f32 %s, %s, %s, %s op_sel:[0,0,0] op_sel_hi:[1,0,1]' % (v(ac + 2 * h, 2), v(ac + 2 * h, 2), v(st_ + 2 * t, 2), v(tp + 2 * h, 2)))
                    for j in range(4): e_('v_max_f32 v%d, 0, v%d' % (ac + j, ac + j))
                    for h in range(2): e_('v_pk_mul_f32 %s, %s, %s' % (v(ac + 2 * h, 2), v(ac + 2 * h, 2), v(ac + 2 * h, 2)))
                    dst = ACC(2 * m, t + 2)
                    for h in range(2): e_('v_cvt_pk_bf16_f32 v%d, v%d, v%d' % (dst + 2 * a_ + h, ac + 2 * h, ac + 2 * h + 1))
                e_('buffer_store_dwordx4 %s, v%d, %s, s%d offen offset:%d%s' % (v(ACC(2 * m, t + 2), 4), t2, s(sO1, 4), sT0, t * 1024, SMOD))
                e_('s_add_u32 s%d, s%d, %d' % (sT0, sT0, 4096 if m < 3 else -3 * 4096))
    if prof:
        stamp(e_, 4); e_('s_waitcnt vmcnt(0)'); stamp(e_, 5); e_('s_memrealtime s[98:99]'); e_('s_waitcnt lgkmcnt(0)')
        mk_srd(e_, sWS, sWS, PROF + pidx * 65536, 65536)
        e_('s_lshl_b32 s60, s2, 2'); e_('s_add_u32 s60, s60, s%d' % sW); e_('s_lshl_b32 s60, s60, 6')
        for i in range(8): e_('v_mov_b32 v%d, s%d' % (i, 84 + 2 * i))
        e_('v_mov_b32 v12, 0')
        for i in range(2): e_('buffer_store_dwordx4 %s, v12, %s, s60 offen offset:%d' % (v(4 * i, 4), s(sWS, 4), 16 * i))
    e_(Lend + ':'); e_('s_endpgm')
    segs.append(('once', e_))

    l = Seq()
    l(Lld + ':'); l.forget()
    vD = 8; vS = 16; u = 60
    l('s_sub_u32 s%d, s%d, 4' % (sW, sW))
    l('s_mul_i32 s%d, s%d, %d' % (sWQ, sW, WQ))
    if NG == 5:
        l('v_mul_u32_u24 v%d, %d, v%d' % (t0, WQ, vW)); l('v_lshl_add_u32 v%d, v%d, 4, v%d' % (vD, vL, t0))
        l('v_add_u32 v%d, 4096, v%d' % (vD + 4, vD))
        l('s_mul_i32 s%d, s%d, %d' % (sT0, sNT, KK * 160)); l('s_add_u32 s%d, s%d, %d' % (sT0, sT0, c['w']))
    else:
        l('v_lshrrev_b32 v%d, 4, v%d' % (t0, vL)); l('v_and_b32 v%d, 15, v%d' % (t1, vL))
        l('v_lshl_add_u32 v%d, v%d, 4, v%d' % (t2, vW, t0)); l('v_mul_u32_u24 v%d, %d, v%d' % (t2, pitch, t2))
        l('v_lshlrev_b32 v%d, 1, v%d' % (t0, t0)); l('v_xor_b32 v%d, v%d, v%d' % (t1, t1, t0))
        l('v_lshl_add_u32 v%d, v%d, 4, v%d' % (vD, t1, t2))
        l('v_xor_b32 v%d, 8, v%d' % (t1, t1)); l('v_lshl_add_u32 v%d, v%d, 4, v%d' % (vD + 1, t1, t2))
        l('v_add_u32 v%d, %d, v%d' % (vD + 1, 4 * pitch - 1024, vD + 1))
        for j in (2, 3): l('v_add_u32 v%d, %d, v%d' % (vD + j, 8 * pitch - 2048, vD + j - 2))
        l('s_mul_i32 s%d, s%d, %d' % (sT0, sNT, RB)); l('s_sub_u32 s%d, %d, s%d' % (sT1, KK * pitch, sT0))
    l('s_mov_b32 s%d, 0' % sWO)
    l('s_waitcnt lgkmcnt(0)')
    if kind == 'mlp1':
        mk_srd(l, sX, sWT + 2, None, 1728 * 2)
        mk_srd(l, sWT, sWT, 's%d' % sT0, 's%d' % sT1)
    else:
        mk_srd(l, sWT, sWS, 's%d' % sT0, KK * 160)
    def wstage(st):
        sl = st % UL
        l('s_add_u32 m0, s%d, %d' % (sWQ, sl * SB) if sl else 's_mov_b32 m0, s%d' % sWQ)
        for j in range(ND):
            if j == 4: l('s_add_u32 m0, m0, 4096')
            if 'nodma' not in EXP or st < DL:
                l('buffer_load_dwordx4 v%d, %s, s%d offen offset:%d lds' % (vD + (j if NG == 8 else j & 4), s(sWT, 4), sWO, (j & 3) * 1024), ('dma', st))
        l('s_add_u32 s%d, s%d, %d' % (sWO, sWO, RS * pitch))
    for st in range(DL): wstage(st)
    PF = _cfg(kind, 'PF', 0)
    vPF, vPS, vPD = 96, 97, 100
    sPF = sO1
    def touch(st):
        if PF and st < nst:
            l('buffer_load_dword v%d, v%d, %s, 0 offen' % (vPD + st, vPF, s(sPF, 4))); l('v_add_u32 v%d, v%d, v%d' % (vPF, vPF, vPS))
    if PF:
        mk_srd(l, sPF, sWS, None, WP5 + 8 * 1728 * 160)
        l('s_and_b32 s%d, s%d, 3' % (sT0, sNT)); l('s_lshl_b32 s%d, s%d, 12' % (sT0, sT0)); l('s_mul_i32 s%d, s%d, %d' % (sT1, sTT, nks * 4096)); l('s_add_u32 s%d, s%d, s%d' % (sT0, sT0, sT1))
        l('s_lshl_b32 s%d, s%d, 10' % (sT1, sW)); l('s_add_u32 s%d, s%d, s%d' % (sT0, sT0, sT1)); l('s_add_u32 s%d, s%d, %d' % (sT0, sT0, c['bsrc'] + D * 16384))
        l('s_and_b32 s%d, s%d, 7' % (sT1, sTT)); l('s_mul_i32 s%d, s%d, 2560' % (sT1, sT1)); l('s_mul_i32 s%d, s%d, %d' % (sT2, sNT, KK * 160)); l('s_add_u32 s%d, s%d, s%d' % (sT1, sT1, sT2))
        l('s_mul_i32 s%d, s%d, 640' % (sT2, sW)); l('s_add_u32 s%d, s%d, s%d' % (sT1, sT1, sT2)); l('s_add_u32 s%d, s%d, %d' % (sT1, sT1, c['w'] + DL * SB - 1024))
        l('v_mov_b32 v%d, s%d' % (vPF, sT1)); l('v_mov_b32 v%d, s%d' % (t0, sT0)); l('v_mov_b32 v%d, %d' % (vPS, SB)); l('v_mov_b32 v%d, 16384' % t1)
        GR = _cfg(kind, 'GR', 6); l('v_cmp_gt_u32 vcc, %d, v%d' % (1024 >> GR, vL)); l('v_cndmask_b32 v%d, v%d, v%d, vcc' % (vPF, vPF, t0)); l('v_cndmask_b32 v%d, v%d, v%d, vcc' % (vPS, vPS, t1))
        l('v_lshl_add_u32 v%d, v%d, %d, v%d' % (vPF, vL, GR, vPF))
        l('v_mov_b32 v%d, 0x7ffffff0' % t0)
        l('v_cmp_gt_u32 vcc, %d, v%d' % (1664 >> GR, vL)); l('v_cndmask_b32 v%d, v%d, v%d, vcc' % (vPF, t0, vPF)); l('v_cndmask_b32 v%d, 0, v%d, vcc' % (vPS, vPS))
        for st in range(DL, DL + PF): touch(st)
    job = {}
    if kind == 'oproj':
        l('s_lshr_b32 s%d, s2, 3' % sT1); l('s_mul_i32 s%d, s%d, 37' % (sT0, sT1)); l('s_lshr_b32 s%d, s%d, 8' % (sT0, sT0))
        l('s_mul_i32 s%d, s%d, 7' % (sT2, sT0)); l('s_sub_u32 s%d, s%d, s%d' % (sT1, sT1, sT2))
        l('s_and_b32 s%d, s2, 1' % sT2); l('s_mul_i32 s%d, s%d, 7' % (sT2, sT2)); l('s_add_u32 s%d, s%d, s%d' % (sT1, sT1, sT2))
        l('s_and_b32 s%d, s2, 6' % sT2); l('s_lshl_b32 s%d, s%d, 1' % (sT2, sT2)); l('s_add_u32 s%d, s%d, s%d' % (sT0, sT0, sT2))
        l('s_mul_i32 s%d, s%d, 40' % (sT2, sT0)); l('s_mul_i32 s%d, s%d, 10' % (sT3, sW)); l('s_add_u32 s%d, s%d, s%d' % (sT2, sT2, sT3))
        l('s_min_u32 s%d, s%d, 630' % (sT2, sT2))
        l('s_lshl_b32 s%d, s%d, 2' % (sT3, sT2)); l('s_add_u32 s%d, s%d, %d' % (sT3, sT3, MOD + 3 * 2560))
        l('s_load_dwordx8 s[%d:%d], s[%d:%d], s%d' % (sG, sG + 7, sWS, sWS + 1, sT3)); l('s_load_dwordx2 s[%d:%d], s[%d:%d], s%d offset:32' % (sG + 8, sG + 9, sWS, sWS + 1, sT3))
        l('s_load_dwordx8 s[%d:%d], s[%d:%d], s%d offset:2560' % (sG + 12, sG + 19, sWS, sWS + 1, sT3)); l('s_load_dwordx2 s[%d:%d], s[%d:%d], s%d offset:2592' % (sG + 20, sG + 21, sWS, sWS + 1, sT3))
        l('s_cmp_lt_u32 s2, 224'); l('s_cselect_b32 s%d, %d, 0' % (sU1 + 2, 640 * 3456)); l('s_mov_b32 s%d, 0x00020000' % (sU1 + 3))
        l('s_cselect_b32 s%d, 1024, 0' % (sU2 + 2)); l('s_mov_b32 s%d, 0x00020000' % (sU2 + 3))
        l('s_mul_i32 s%d, s%d, %d' % (sT0, sT0, 1792 * 8)); l('s_lshl_b32 s%d, s%d, 10' % (sT3, sT1)); l('s_add_u32 s%d, s%d, s%d' % (sT0, sT0, sT3)); l('s_add_u32 s%d, s%d, %d' % (sT0, sT0, UV))
        l('s_add_u32 s%d, s%d, s%d' % (sU2, sWS, sT0)); l('s_addc_u32 s%d, s%d, 0' % (sU2 + 1, sWS + 1))
        l('s_mul_i32 s%d, s%d, 3456' % (sT2, sT2)); l('s_lshl_b32 s%d, s%d, 8' % (sT1, sT1)); l('s_add_u32 s%d, s%d, s%d' % (sT2, sT2, sT1))
        l('v_lshlrev_b32 v%d, 2, v%d' % (t0, vL))
        def j_load():
            for i in range(10):
                l('buffer_load_dword v%d, v%d, %s, s%d offen' % (vS + i, t0, s(sU1, 4), sT2))
                if i < 9: l('s_add_u32 s%d, s%d, 3456' % (sT2, sT2))
        def j_math():
            for i in range(10):
                l('v_lshlrev_b32 v%d, 16, v%d' % (t0, vS + i)); l('v_and_b32 v%d, 0xffff0000, v%d' % (t1, vS + i))
                sb_, g2_ = sG + i, sG + 12 + i
                op = 'v_fmac_f32' if i else 'v_mul_f32'
                l('%s v%d, s%d, v%d' % (op, u, g2_, t0)); l('%s v%d, s%d, v%d' % (op, u + 1, sb_, t0))
                l('%s v%d, s%d, v%d' % (op, u + 2, g2_, t1)); l('%s v%d, s%d, v%d' % (op, u + 3, sb_, t1))
            l('v_lshlrev_b32 v%d, 4, v%d' % (t0, vID)); l('v_add_u32 v%d, %d, v%d' % (t0, TB, t0)); l('ds_write_b128 v%d, %s' % (t0, v(u, 4)))
            l('v_lshlrev_b32 v%d, 2, v%d' % (t1, vID)); l('v_add_u32 v%d, %d, v%d' % (t0, TB, t1))
            l('s_waitcnt lgkmcnt(0)')
        def j_out():
            for j in range(4): l('ds_read_b32 v%d, v%d offset:%d' % (u + j, t0, 1024 * j))
            l('v_add_f32 v%d, v%d, v%d' % (u, u, u + 1)); l('v_add_f32 v%d, v%d, v%d' % (u + 2, u + 2, u + 3)); l('v_add_f32 v%d, v%d, v%d' % (u, u, u + 2))
            l('buffer_store_dword v%d, v%d, %s, 0 offen%s' % (u, t1, s(sU2, 4), SMOD))
        job = {nst - 4: j_load, nst - 3: j_math, nst - 2: j_out}
    elif kind == 'mlp1':
        l('s_lshr_b32 s%d, s%d, 1' % (sTH, sW))
        l('s_lshl_b32 s%d, s%d, 10' % (sT0, sTT)); l('s_add_u32 s%d, s%d, %d' % (sT0, sT0, STATS))
        l('s_lshl_b32 s%d, s%d, 10' % (sT1, sNT)); l('s_add_u32 s%d, s%d, %d' % (sT1, sT1, UV))
        l('s_cmp_eq_u32 s%d, 0' % sTH)
        l('s_cselect_b32 s%d, s%d, s%d' % (sT0, sT0, sT1))
        l('s_cselect_b32 s%d, %d, %d' % (sU1 + 2, 1, 2)); l('s_mov_b32 s%d, 14336' % sT2); l('s_cselect_b32 s%d, 16384, s%d' % (sT3, sT2))
        l('s_mul_i32 s%d, s%d, %d' % (sU1 + 2, sU1 + 2, 7 * 16384 + 1024))
        l('s_add_u32 s%d, s%d, s%d' % (sU1, sWS, sT0)); l('s_addc_u32 s%d, s%d, 0' % (sU1 + 1, sWS + 1)); l('s_mov_b32 s%d, 0x00020000' % (sU1 + 3))
        l('v_and_b32 v%d, 127, v%d' % (t2, vID)); l('v_lshlrev_b32 v%d, 3, v%d' % (t1, t2)); l('v_lshlrev_b32 v%d, 1, v%d' % (t0, t2))
        l('s_mov_b32 s%d, 0' % sT2); l('s_lshl_b32 s%d, s%d, 8' % (sG, sNT))
        def j_load():
            for i in range(16):
                l('buffer_load_dwordx2 %s, v%d, %s, s%d offen' % (v(vS + 2 * i, 2), t1, s(sU1, 4), sT2))
                if i < 15: l('s_add_u32 s%d, s%d, s%d' % (sT2, sT2, sT3))
            l('buffer_load_ushort v%d, v%d, %s, s%d offen' % (vS + 32, t0, s(sX, 4), sG))
        def j_math():
            for st_ in (8, 4, 2, 1):
                for j in range(st_): l('v_pk_add_f32 %s, %s, %s' % (v(vS + 2 * j, 2), v(vS + 2 * j, 2), v(vS + 2 * j + 2 * st_, 2)))
            Lu, Lj = k.label('uv'), k.label('jn')
            l('v_lshlrev_b32 v%d, 16, v%d' % (t1, vS + 32))
            l('s_cmp_lg_u32 s%d, 0' % sTH); l('s_cbranch_scc1 %s' % Lu)
            l('v_mul_f32 v%d, %s, v%d' % (vS, f32(1.0 / 640), vS)); l('v_mul_f32 v%d, %s, v%d' % (vS + 1, f32(1.0 / 640), vS + 1))
            l('v_fma_f32 v%d, -v%d, v%d, v%d' % (vS + 1, vS, vS, vS + 1)); l('v_max_f32 v%d, 0, v%d' % (vS + 1, vS + 1)); l('v_add_f32 v%d, %s, v%d' % (vS + 1, f32(1e-5), vS + 1))
            l('v_rsq_f32 v%d, v%d' % (vS + 2, vS + 1)); l('v_mul_f32 v%d, -v%d, v%d' % (vS + 3, vS, vS + 2))
            l('v_lshlrev_b32 v%d, 3, v%d' % (t0, t2)); l('v_add_u32 v%d, %d, v%d' % (t0, TB, t0))
            l('ds_write_b64 v%d, %s' % (t0, v(vS + 2, 2)))
            l('s_branch %s' % Lj)
            l(Lu + ':')
            l('v_add_f32 v%d, v%d, v%d' % (vS + 1, vS + 1, t1))
            l('v_lshlrev_b32 v%d, 2, v%d' % (t0, t2)); l('v_add_u32 v%d, %d, v%d' % (t0, TB, t0))
            l('ds_write_b32 v%d, v%d offset:1024' % (t0, vS)); l('ds_write_b32 v%d, v%d offset:1536' % (t0, vS + 1))
            l(Lj + ':')
            l('s_waitcnt lgkmcnt(0)')
        job = {nst - 4: j_load, nst - 3: j_math}
    l.need(lambda t: t[0] == 'dma' and t[1] <= 0); l('s_barrier')
    for st in range(nst - 1):
        l.need(lambda t, st=st: t[0] == 'dma' and t[1] <= st + 1)
        if 'xbar' not in EXP: l('s_barrier')
        if st + DL < nst: wstage(st + DL)
        touch(st + DL + PF)
        if st in job: job[st]()
    l('s_waitcnt vmcnt(0)')
    l('s_endpgm')
    segs.append(('once', l))
    assemble(k, segs)
    return k
```
